```python
import torch

def _softmax(x, axis=-1):
    return torch.softmax(x, dim=axis)
def _gelu(x):
    return torch.nn.functional.gelu(x, approximate="tanh")
def _silu(x):
    return torch.nn.functional.silu(x)
def _sigmoid(x):
    return torch.sigmoid(x)
def _layernorm(x, axis=-1, eps=1e-5):
    m = x.mean(dim=axis, keepdim=True)
    v = x.var(dim=axis, keepdim=True, unbiased=False)
    return (x - m) / torch.sqrt(v + eps)
def _scatter_add(tgt, idx, src, axis=0):
    return tgt.clone().index_add_(axis, idx, src)
def _segment_sum(src, seg, n):
    out = torch.zeros((n,) + src.shape[1:], dtype=src.dtype)
    return out.index_add_(0, seg, src)
def _pad(x, pw):
    flat = tuple(v for pair in reversed(pw) for v in pair)
    return torch.nn.functional.pad(x, flat)

kernel_name = 'standalone__paged_block_table_kv_pagedattention__sampling'

def setup_inputs():

    _w = (lambda a: (lambda t: t.to(torch.bfloat16) if t.is_floating_point() else t)(torch.as_tensor(a)))
    B, Hq, Hkv, Sq, Skv, D = 8, 32, 8, 32, 8192, 128
    bs = 16
    nbps = max(1, Skv // bs)
    num_phys = B * nbps + 4
    bt = torch.randperm(num_phys)[: B * nbps].reshape(B, nbps).to(torch.int64)
    cl = (nbps * bs - (torch.arange(1, B + 1, dtype=torch.int64) * 2654435761) % max(1, nbps * bs // 2)).to(torch.int64)
    return {
        "q": _w((lambda *s: torch.randn(*s, dtype=torch.bfloat16) * 0.8)(B, Hq, Sq, D)),
        "k_cache": _w((lambda *s: torch.randn(*s, dtype=torch.bfloat16) * 0.8)(num_phys, bs, Hkv, D)),
        "v_cache": _w((lambda *s: torch.randn(*s, dtype=torch.bfloat16) * 0.05)(num_phys, bs, Hkv, D)),
        "block_table": _w(bt),
        "context_lens": _w(cl),
    }

def reference(q, k_cache, v_cache, block_table, context_lens):
    B, Hq, Sq, D = q.shape
    bs = k_cache.shape[1]
    Hkv = k_cache.shape[2]
    nbps = block_table.shape[1]
    Skv = nbps * bs
    bt = block_table.reshape(-1)
    k = (lambda x, *d: x.permute(*d))(k_cache[bt].reshape(B, Skv, Hkv, D), 0, 2, 1, 3)
    v = (lambda x, *d: x.permute(*d))(v_cache[bt].reshape(B, Skv, Hkv, D), 0, 2, 1, 3)
    g = Hq // Hkv
    qg = q.reshape(B, Hkv, g, Sq, D)
    scores = torch.einsum("bhgqd,bhkd->bhgqk", qg, k) * (D ** -0.5)
    pos = torch.arange(Skv)
    msk = pos[None, :] < context_lens[:, None]
    scores = torch.where(msk[:, None, None, None, :], scores, -1e9)
    p = _softmax(scores, axis=-1)
    out = torch.einsum("bhgqk,bhkd->bhgqd", p, v)
    return out.reshape(B, Hq, Sq, D)
```

```python
import sys, struct, math

NAME = "standalone__paged_block_table_kv_pagedattention__sampling"
DEF = dict(NS=9, nt=1, hmap=0, compute=1, stamp=0, exactwait=1)

def f2u(x):
    return struct.unpack("<I", struct.pack("<f", x))[0]

CSCALE = f2u(128 ** -0.5 * math.log2(math.e))
THR = f2u(8.0)
NEGINF = 0xFF800000
OOB = 0x80000000
KV_BYTES = 4100 * 32768
Q_BYTES = 8 * 32 * 32 * 128 * 2
NSLOT_H = 40
ML_OFF = 8 * NSLOT_H * 32768
WS_USED = ML_OFF + 8 * NSLOT_H * 2048
STAMP_OFF = 16 << 20

class E:
    def __init__(self):
        self.l = []
    def __call__(self, s):
        for x in s.strip("\n").split("\n"):
            x = x.strip()
            if x:
                self.l.append(("" if x.endswith(":") else "    ") + x)
    def text(self):
        return "\n".join(self.l) + "\n"

def srd(e, d, p, nbytes):
    e(f"s_mov_b32 s{d}, s{p}\ns_and_b32 s{d+1}, s{p+1}, 0xffff\ns_mov_b32 s{d+2}, {nbytes:#x}\ns_mov_b32 s{d+3}, 0x20000")

SQ, SK, SV, SW, SB, SO = 36, 40, 44, 48, 52, 64
SCL = 56
SC = 68
SS = 76

def batch_tables(e):
    e(f"s_mov_b32 s{SS}, 0")
    for b in range(8):
        e(f"""
        s_min_i32 s{SC+b}, s{SCL+b}, 0x2000
        s_cmp_lt_i32 s{SCL+b}, 1
        s_cselect_b32 s{SC+b}, 0x2000, s{SC+b}
        s_add_u32 s3, s{SC+b}, 31
        s_lshr_b32 s3, s3, 5
        s_add_u32 s{SS+b+1}, s{SS+b}, s3
        """)

def interleave(e, mf, fill):
    for m, f in zip(mf, fill):
        e(m)
        for x in f:
            e(x)

def main_kernel(o):
    NS = o["NS"]; nt = " nt" if o["nt"] else ""
    e = E()
    vO, vS, vX, vK, vV, vP = 0, 64, 80, 96, 128, 160
    vKA, vVA = 168, 176
    vDK0, vDK1, vDV0, vDV1 = 180, 181, 182, 183
    vPG, vB, vC, vST, vZ = 184, 185, 186, 187, 188
    vM, vL, vT, vT2, vAL = 189, 190, 192, 193, 194
    vLane, vQA, vWO, vWM, vTok, vNI = 195, 196, 197, 198, 199, 200
    vML = 202
    sH, sJ, sW, sLO, sNT = 4, 5, 6, 7, 8
    sI, sE, sMK, sREM, sSC = 9, 10, 11, 12, 13
    sLD, sDS, sPG, sDEL, sRS = 14, 15, 32, 33, 34
    sFL, sSEG, sBB, sXW, sWB = 35, 85, 86, 87, 88
    sTHR, sT0, sT1 = 89, 90, 91
    WN = 4 * (NS - 3)
    EXTRA = 17

    e(f"""
    .globl {NAME}_kernel
    .p2align 8
    .type {NAME}_kernel,@function
    {NAME}_kernel:
    s_cmp_ge_u32 s2, 256
    s_cbranch_scc1 L_end
    s_load_dwordx16 s[16:31], s[0:1], 0
    """)
    if o["stamp"]:
        e("s_memrealtime s[92:93]")
    if o["hmap"] == 0:
        e(f"s_and_b32 s{sH}, s2, 7\ns_lshr_b32 s{sJ}, s2, 3")
    else:
        e(f"s_lshr_b32 s{sH}, s2, 5\ns_and_b32 s{sJ}, s2, 31")
    e(f"""
    v_lshrrev_b32 v{vT}, 6, v0
    v_and_b32 v{vLane}, 63, v0
    v_readfirstlane_b32 s{sW}, v{vT}
    s_waitcnt lgkmcnt(0)
    s_load_dwordx8 s[{SCL}:{SCL+7}], s[24:25], 0
    """)
    srd(e, SQ, 16, Q_BYTES); srd(e, SK, 18, KV_BYTES); srd(e, SV, 20, KV_BYTES)
    srd(e, SB, 22, 8 * 512 * 4); srd(e, SW, 30, 32 << 20)
    e(f"""
    v_and_b32 v{vT}, 31, v{vLane}
    v_lshrrev_b32 v{vT2}, 5, v{vLane}
    v_lshlrev_b32 v{vQA}, 8, v{vT}
    v_lshl_add_u32 v{vQA}, v{vT2}, 4, v{vQA}
    v_lshlrev_b32 v{vTok}, 2, v{vT2}
    v_and_b32 v{vAL}, 15, v{vLane}
    v_xor_b32 v{vAL}, v{vAL}, v{vT2}
    v_lshlrev_b32 v{vAL}, 4, v{vAL}
    v_lshl_add_u32 v{vKA}, v{vT}, 8, v{vAL}
    """)
    for ks in range(1, 8):
        e(f"v_xor_b32 v{vKA+ks}, {ks<<5}, v{vKA}")
    e(f"""
    v_bfe_u32 v{vT}, v{vLane}, 2, 2
    v_lshl_add_u32 v{vAL}, v{vT2}, 2, v{vT}
    v_lshlrev_b32 v{vAL}, 8, v{vAL}
    v_lshl_add_u32 v{vAL}, v{vT}, 6, v{vAL}
    v_bfe_u32 v{vT}, v{vLane}, 4, 1
    v_lshl_add_u32 v{vAL}, v{vT}, 5, v{vAL}
    v_and_b32 v{vT}, 3, v{vLane}
    v_lshl_add_u32 v{vAL}, v{vT}, 3, v{vAL}
    v_add_u32 v{vVA}, {8192 + (NS-1)*16384}, v{vAL}
    """)
    for db in range(1, 4):
        e(f"v_xor_b32 v{vVA+db}, {db<<6}, v{vVA}")
    e(f"""
    s_and_b32 s{sT0}, s{sW}, 1
    s_lshl_b32 s{sT0}, s{sT0}, 3
    s_lshl_b32 s{sT1}, s{sH}, 8
    v_lshrrev_b32 v{vT}, 4, v{vLane}
    v_add_u32 v{vT2}, s{sT0}, v{vT}
    v_and_b32 v{vAL}, 15, v{vLane}
    v_xor_b32 v{vM}, v{vAL}, v{vT2}
    v_lshlrev_b32 v{vM}, 4, v{vM}
    v_lshl_add_u32 v{vM}, v{vT2}, 11, v{vM}
    v_add_u32 v{vDK0}, s{sT1}, v{vM}
    v_xor_b32 v{vDK1}, 64, v{vDK0}
    v_add_u32 v{vDK1}, {8192-1024}, v{vDK1}
    v_lshlrev_b32 v{vT}, 2, v{vT}
    v_xor_b32 v{vM}, v{vAL}, v{vT}
    v_lshlrev_b32 v{vM}, 4, v{vM}
    v_lshl_add_u32 v{vM}, v{vT2}, 11, v{vM}
    v_add_u32 v{vDV0}, s{sT1}, v{vM}
    v_add_u32 v{vDV1}, {8192-1024}, v{vDV0}
    s_lshl_b32 s{sWB}, s{sW}, 11
    s_lshl_b32 s{sT0}, s{sW}, 13
    v_lshlrev_b32 v{vWO}, 4, v{vLane}
    v_add_u32 v{vWO}, s{sT0}, v{vWO}
    s_lshl_b32 s{sT0}, s{sW}, 9
    s_add_u32 s{sT0}, s{sT0}, {ML_OFF}
    v_lshlrev_b32 v{vWM}, 3, v{vLane}
    v_add_u32 v{vWM}, s{sT0}, v{vWM}
    v_mov_b32 v{vNI}, {NEGINF:#x}
    s_mov_b32 s{sTHR}, {THR:#x}
    s_mov_b32 s96, 16384
    s_waitcnt lgkmcnt(0)
    """)
    batch_tables(e)
    e(f"""
    s_mul_i32 s{sLO}, s{sJ}, s{SS+8}
    s_add_u32 s{sNT}, s{sLO}, s{SS+8}
    s_lshr_b32 s{sLO}, s{sLO}, 5
    s_lshr_b32 s{sNT}, s{sNT}, 5
    s_sub_u32 s{sNT}, s{sNT}, s{sLO}
    s_cmp_eq_u32 s{sNT}, 0
    s_cbranch_scc1 L_end
    v_add_u32 v{vT}, s{sLO}, v{vLane}
    v_mov_b32 v{vB}, 0
    v_mov_b32 v{vC}, s{SC}
    v_mov_b32 v{vST}, 0
    v_mov_b32 v{vZ}, s{SCL}
    """)
    for b in range(1, 8):
        e(f"""
        v_cmp_le_u32 vcc, s{SS+b}, v{vT}
        v_mov_b32 v{vT2}, s{SC+b}
        v_mov_b32 v{vAL}, s{SS+b}
        v_mov_b32 v{vM}, s{SCL+b}
        v_cndmask_b32 v{vC}, v{vC}, v{vT2}, vcc
        v_cndmask_b32 v{vST}, v{vST}, v{vAL}, vcc
        v_cndmask_b32 v{vZ}, v{vZ}, v{vM}, vcc
        v_addc_co_u32 v{vB}, vcc, 0, v{vB}, vcc
        """)
    e(f"""
    s_lshr_b32 s{sT0}, s{sW}, 1
    v_sub_u32 v{vT}, v{vT}, v{vST}
    v_lshl_add_u32 v{vT}, v{vT}, 1, s{sT0}
    v_lshl_add_u32 v{vT2}, v{vB}, 9, v{vT}
    v_lshlrev_b32 v{vT2}, 2, v{vT2}
    buffer_load_dword v{vPG}, v{vT2}, s[{SB}:{SB+3}], 0 offen
    v_lshlrev_b32 v{vT}, 4, v{vT}
    v_cmp_lt_u32 s[92+2:92+3], v{vT}, v{vC}
    v_cmp_gt_u32 vcc, s{sNT}, v{vLane}
    v_mov_b32 v{vM}, {CSCALE:#x}
    s_and_b64 s[94:95], s[94:95], vcc
    v_cmp_lt_i32 vcc, 0, v{vZ}
    s_mov_b32 s{sI}, 0
    s_mov_b32 s{sSEG}, 0
    v_cndmask_b32 v{vZ}, 0, v{vM}, vcc
    """.replace("s[92+2:92+3]", "s[94:95]"))

    def seg_params():
        e(f"""
        v_readlane_b32 s{sBB}, v{vB}, s{sI}
        v_readlane_b32 s{sREM}, v{vC}, s{sI}
        v_readlane_b32 s{sMK}, v{vST}, s{sI}
        v_readlane_b32 s{sSC}, v{vZ}, s{sI}
        s_add_u32 s{sT0}, s{sREM}, 31
        s_lshr_b32 s{sT0}, s{sT0}, 5
        s_add_u32 s{sMK}, s{sMK}, s{sT0}
        s_sub_u32 s{sMK}, s{sMK}, s{sLO}
        s_min_u32 s{sE}, s{sMK}, s{sNT}
        s_sub_u32 s{sMK}, s{sMK}, 1
        s_sub_u32 s{sT0}, s{sT0}, 1
        s_lshl_b32 s{sT0}, s{sT0}, 5
        s_sub_u32 s{sREM}, s{sREM}, s{sT0}
        """)
    def q_load(dst, boff):
        e(f"""
        s_add_u32 s{sT0}, s{sBB}, {boff}
        s_lshl_b32 s{sT0}, s{sT0}, 3
        s_add_u32 s{sT0}, s{sT0}, s{sH}
        s_lshl_b32 s{sT0}, s{sT0}, 2
        s_add_u32 s{sT0}, s{sT0}, s{sW}
        s_lshl_b32 s{sT0}, s{sT0}, 13
        """)
        if boff:
            e(f"s_cmp_lt_u32 s{sE}, s{sNT}\ns_cselect_b32 s{sT0}, s{sT0}, {OOB:#x}")
        for ks in range(8):
            e(f"buffer_load_dwordx4 a[{dst+4*ks}:{dst+4*ks+3}], v{vQA}, s[{SQ}:{SQ+3}], s{sT0} offen offset:{32*ks}")
    e("s_nop 1")
    seg_params()
    q_load(0, 0)
    q_load(32, 1)
    e(f"""
    s_waitcnt vmcnt(16)
    v_lshlrev_b32 v{vPG}, 15, v{vPG}
    v_mov_b32 v{vT}, {OOB:#x}
    v_cndmask_b32 v{vPG}, v{vT}, v{vPG}, s[94:95]
    s_mov_b32 s{sLD}, 0
    s_mov_b32 s{sDS}, s{sWB}
    s_mov_b32 s{sRS}, 0
    s_mov_b32 s{sXW}, 0
    s_mov_b32 s{sFL}, 0
    """)
    def next_page():
        return [f"v_readlane_b32 s{sPG}, v{vPG}, s{sLD}",
                f"s_cmp_lt_u32 s{sLD}, 64",
                f"s_cselect_b32 s{sPG}, s{sPG}, {OOB:#x}",
                f"s_add_u32 s{sLD}, s{sLD}, 1"]
    def dma():
        return [f"s_mov_b32 m0, s{sDS}",
                f"s_add_u32 s{sT1}, s{sDS}, 8192",
                f"buffer_load_dwordx4 v{vDK0}, s[{SK}:{SK+3}], s{sPG} offen{nt} lds",
                f"buffer_load_dwordx4 v{vDK1}, s[{SK}:{SK+3}], s{sPG} offen offset:1024{nt} lds",
                f"s_mov_b32 m0, s{sT1}",
                f"s_add_u32 s{sDS}, s{sDS}, 16384",
                f"buffer_load_dwordx4 v{vDV0}, s[{SV}:{SV+3}], s{sPG} offen{nt} lds",
                f"buffer_load_dwordx4 v{vDV1}, s[{SV}:{SV+3}], s{sPG} offen offset:1024{nt} lds",
                f"s_cmp_ge_u32 s{sDS}, {NS*16384}",
                f"s_cselect_b32 s{sT1}, {NS*16384}, 0",
                f"s_sub_u32 s{sDS}, s{sDS}, s{sT1}"]
    for t in range(NS - 2):
        for x in next_page(): e(x)
        e("s_nop 2")
        for x in dma(): e(x)
    for x in next_page(): e(x)

    def sync(tag):
        if o["exactwait"]:
            e(f"""
            s_cmp_eq_u32 s{sXW}, 0
            s_cbranch_scc1 L_w0_{tag}
            s_sub_u32 s{sXW}, s{sXW}, 1
            s_waitcnt vmcnt({WN+EXTRA})
            s_branch L_w1_{tag}
            L_w0_{tag}:
            s_waitcnt vmcnt({WN})
            L_w1_{tag}:
            """)
        else:
            e(f"s_waitcnt vmcnt({WN})")
        e("s_barrier")
    def kread(ks):
        return f"ds_read_b128 v[{vK+4*ks}:{vK+4*ks+3}], v{vKA+ks}"
    def vread(kk, db, u):
        r = vV + 16 * kk + 4 * db + 2 * u
        return f"ds_read_b64_tr_b16 v[{r}:{r+1}], v{vVA+db} offset:{4096*kk+2048*u}"
    def qk(ks):
        c = "0" if ks == 0 else f"v[{vS}:{vS+15}]"
        return f"v_mfma_f32_32x32x16_bf16 v[{vS}:{vS+15}], v[{vK+4*ks}:{vK+4*ks+3}], a[{4*ks}:{4*ks+3}], {c}"
    def pv(kk, db):
        a = vV + 16 * kk + 4 * db
        return f"v_mfma_f32_32x32x16_bf16 v[{vO+16*db}:{vO+16*db+15}], v[{a}:{a+3}], v[{vP+4*kk}:{vP+4*kk+3}], v[{vO+16*db}:{vO+16*db+15}]"
    EX = lambda i: f"v_exp_f32 v{vX+i}, v{vX+i}"
    AD = lambda i: f"v_add_f32 v{vL}, v{vL}, v{vX+i}"
    CV = lambda m: f"v_cvt_pk_bf16_f32 v{vP+m}, v{vX+2*m}, v{vX+2*m+1}"
    FM = lambda i: f"v_fma_f32 v{vX+i}, v{vS+i}, s{sSC}, -v{vM}"
    def maxops():
        r = [f"v_max3_f32 v{vT}, v{vS}, v{vS+1}, v{vS+2}"]
        for i in range(3, 15, 2):
            r.append(f"v_max3_f32 v{vT}, v{vT}, v{vS+i}, v{vS+i+1}")
        r.append(f"v_max_f32 v{vT}, v{vT}, v{vS+15}")
        return r
    def slot_delta():
        return [f"s_add_u32 s{sRS}, s{sRS}, 1",
                f"s_cmp_eq_u32 s{sRS}, {NS}",
                f"s_cselect_b32 s{sRS}, 0, s{sRS}"]
    def kadv():
        r = [f"s_cmp_eq_u32 s{sRS}, {NS-1}",
             f"s_cselect_b32 s{sDEL}, {(-(NS-1)*16384) & 0xffffffff:#x}, s96"]
        return r + [f"v_add_u32 v{vKA+i}, s{sDEL}, v{vKA+i}" for i in range(8)]
    def vadv():
        r = [f"s_cmp_eq_u32 s{sRS}, 0",
             f"s_cselect_b32 s{sDEL}, {(-(NS-1)*16384) & 0xffffffff:#x}, s96"]
        return r + [f"v_add_u32 v{vVA+i}, s{sDEL}, v{vVA+i}" for i in range(4)]
    def mask_block():
        for r in range(16):
            tok = (r & 3) + 8 * (r >> 2)
            e(f"""
            v_add_u32 v{vT2}, {tok}, v{vTok}
            v_cmp_gt_u32 vcc, s{sREM}, v{vT2}
            s_nop 1
            v_cndmask_b32 v{vS+r}, v{vNI}, v{vS+r}, vcc
            """)
    def fullmax():
        e(f"""
        v_mov_b32 v{vT2}, v{vT}
        s_nop 1
        v_permlane32_swap_b32 v{vT}, v{vT2}
        v_max_f32 v{vT}, v{vT}, v{vT2}
        v_mul_f32 v{vT}, s{sSC}, v{vT}
        """)

    e("L_seg:")
    sync("f")
    for ks in range(8): e(kread(ks))
    for x in dma(): e(x)
    for i in range(64): e(f"v_mov_b32 v{vO+i}, 0")
    e(f"v_mov_b32 v{vL}, 0")
    for ks in range(8):
        e(f"s_waitcnt lgkmcnt({7-ks})")
        e(qk(ks))
    for x in kadv() + vadv() + slot_delta() + next_page(): e(x)
    e(f"s_cmp_lg_u32 s{sI}, s{sMK}\ns_cbranch_scc1 L_f_nomask")
    mask_block()
    e("L_f_nomask:")
    for x in maxops(): e(x)
    fullmax()
    e(f"v_mov_b32 v{vM}, v{vT}")
    for i in range(16): e(FM(i))
    e(f"""
    s_add_u32 s{sI}, s{sI}, 1
    s_cmp_ge_u32 s{sI}, s{sE}
    s_cbranch_scc1 L_last
    .p2align 3
    L_loop:
    """)
    sync("l")
    if o["compute"]:
        d = dma()
        for ks in range(8): e(kread(ks))
        for x in d[:4]: e(x)
        e(EX(0)); e(EX(1))
        for x in d[4:]: e(x)
        e(EX(2)); e(EX(3)); e(AD(0)); e(AD(1)); e(CV(0))
        vr = [vread(kk, db, u) for kk in range(2) for db in range(4) for u in range(2)]
        mf, fl = [], []
        for ks in range(8):
            nv = min(2 * ks, 8)
            mf.append(f"s_waitcnt lgkmcnt({7-ks+nv})\n" + qk(ks))
        fl.append([vr[0], vr[1], EX(4), AD(2), EX(5), AD(3), CV(1)])
        fl.append([vr[2], vr[3], EX(6), AD(4), EX(7), AD(5), CV(2)])
        fl.append([vr[4], vr[5], EX(8), AD(6), EX(9), AD(7), CV(3)])
        fl.append([vr[6], vr[7], EX(10), AD(8), EX(11), AD(9), CV(4)])
        fl.append([EX(12), AD(10), EX(13), AD(11), CV(5)])
        fl.append([EX(14), AD(12), EX(15), AD(13), CV(6)])
        fl.append([vr[8], vr[9], vr[10], vr[11], AD(14), AD(15), CV(7)])
        fl.append([vr[12], vr[13], vr[14], vr[15]])
        interleave(e, mf, fl)
        ka, va, mx = kadv(), vadv(), maxops()
        e("s_waitcnt lgkmcnt(14)"); e(pv(0, 0))
        for x in ka[:6]: e(x)
        e("s_waitcnt lgkmcnt(12)"); e(pv(0, 1))
        for x in ka[6:]: e(x)
        e(f"s_cmp_eq_u32 s{sI}, s{sMK}\ns_cbranch_scc1 L_mask\nL_mask_ret:")
        e("s_waitcnt lgkmcnt(10)"); e(pv(0, 2))
        for x in mx[:5]: e(x)
        e("s_waitcnt lgkmcnt(8)"); e(pv(0, 3))
        for x in mx[5:]: e(x)
        e(f"v_fma_f32 v{vT2}, v{vT}, s{sSC}, -v{vM}\nv_cmp_lt_f32 vcc, s{sTHR}, v{vT2}")
        e("s_waitcnt lgkmcnt(6)"); e(pv(1, 0))
        e("s_cbranch_vccnz L_newmax\nL_newmax_ret:")
        for i in range(0, 5): e(FM(i))
        e("s_waitcnt lgkmcnt(4)"); e(pv(1, 1))
        for i in range(5, 10): e(FM(i))
        e("s_waitcnt lgkmcnt(2)"); e(pv(1, 2))
        for i in range(10, 16): e(FM(i))
        e("s_waitcnt lgkmcnt(0)"); e(pv(1, 3))
        for x in va + slot_delta() + next_page(): e(x)
        e(f"s_cmp_lg_u32 s{sFL}, 0\ns_cbranch_scc1 L_rescale\nL_rescale_ret:")
    else:
        for x in dma() + next_page(): e(x)
        e("s_nop 4")
    e(f"""
    s_add_u32 s{sI}, s{sI}, 1
    s_cmp_lt_u32 s{sI}, s{sE}
    s_cbranch_scc1 L_loop
    L_last:
    """)
    vr = [vread(kk, db, u) for kk in range(2) for db in range(4) for u in range(2)]
    for x in vr[:8]: e(x)
    for i in range(16): e(EX(i))
    for x in vr[8:]: e(x)
    for i in range(16): e(AD(i))
    for m in range(8): e(CV(m))
    e("s_waitcnt lgkmcnt(0)")
    for kk in range(2):
        for db in range(4): e(pv(kk, db))
    e(f"""
    v_mov_b32 v{vT2}, v{vL}
    s_add_u32 s{sT0}, s{sJ}, s{sBB}
    s_mul_i32 s{sT1}, s{sH}, {NSLOT_H}
    v_permlane32_swap_b32 v{vL}, v{vT2}
    s_add_u32 s{sT0}, s{sT0}, s{sT1}
    v_add_f32 v{vML+1}, v{vL}, v{vT2}
    v_mov_b32 v{vML}, v{vM}
    s_lshl_b32 s{sT1}, s{sT0}, 11
    s_lshl_b32 s{sT0}, s{sT0}, 15
    buffer_store_dwordx2 v[{vML}:{vML+1}], v{vWM}, s[{SW}:{SW+3}], s{sT1} offen
    s_add_u32 s{sT1}, s{sT0}, 4096
    s_nop 7
    """)
    for q in range(8):
        for n in range(4):
            e(f"v_cvt_pk_bf16_f32 v{vK+4*q+n}, v{vO+8*q+2*n}, v{vO+8*q+2*n+1}")
        e(f"buffer_store_dwordx4 v[{vK+4*q}:{vK+4*q+3}], v{vWO}, s[{SW}:{SW+3}], s{sT0 if q<4 else sT1} offen offset:{1024*(q&3)}")
    e(f"""
    s_cmp_ge_u32 s{sI}, s{sNT}
    s_cbranch_scc1 L_done
    s_cmp_eq_u32 s{sSEG}, 0
    s_cbranch_scc1 L_qready
    s_waitcnt vmcnt(0)
    L_qready:
    s_mov_b32 s{sSEG}, 1
    """)
    for i in range(32): e(f"v_accvgpr_mov_b32 a{i}, a{32+i}")
    seg_params()
    q_load(32, 1)
    e(f"s_mov_b32 s{sXW}, {NS-2}\ns_branch L_seg")
    e("L_mask:")
    mask_block()
    e("s_branch L_mask_ret\nL_newmax:")
    fullmax()
    e(f"""
    v_max_f32 v{vT}, v{vT}, v{vM}
    v_sub_f32 v{vAL}, v{vM}, v{vT}
    v_exp_f32 v{vAL}, v{vAL}
    v_mov_b32 v{vM}, v{vT}
    s_mov_b32 s{sFL}, 1
    v_mul_f32 v{vL}, v{vL}, v{vAL}
    s_branch L_newmax_ret
    L_rescale:
    s_mov_b32 s{sFL}, 0
    s_nop 7
    """)
    for i in range(64): e(f"v_mul_f32 v{vO+i}, v{vO+i}, v{vAL}")
    e("s_branch L_rescale_ret\nL_done:")
    if o["stamp"]:
        e(f"""
        s_waitcnt vmcnt(0)
        s_memrealtime s[94:95]
        s_lshl_b32 s{sT0}, s2, 2
        s_add_u32 s{sT0}, s{sT0}, s{sW}
        s_lshl_b32 s{sT0}, s{sT0}, 4
        s_add_u32 s{sT0}, s{sT0}, {STAMP_OFF}
        s_waitcnt lgkmcnt(0)
        v_mov_b32 v4, s92
        v_mov_b32 v5, s93
        v_mov_b32 v6, s94
        v_mov_b32 v7, s95
        v_mov_b32 v8, 0
        buffer_store_dwordx4 v[4:7], v8, s[{SW}:{SW+3}], s{sT0} offen
        """)
    e("L_end:\ns_endpgm")
    return e.text(), NS * 16384

def combine_kernel(o):
    e = E()
    sH, sB, sG, sD, sT0, sT1, sJ, sJE, sLO, sHI = 4, 5, 6, 7, 8, 9, 10, 11, 12, 13
    sA, sZ = 14, 15
    CH = 6
    vAcc, vM, vL, vOA, vMA, vT, vW, vAL, vOut = 0, 16, 17, 18, 19, 20, 21, 22, 23
    vD, vML = 24, 24 + 8 * CH
    e(f"""
    .globl combine_kernel
    .p2align 8
    .type combine_kernel,@function
    combine_kernel:
    s_cmp_ge_u32 s2, 256
    s_cbranch_scc1 C_end
    s_load_dwordx16 s[16:31], s[0:1], 0
    """)
    if o["stamp"]:
        e("s_memrealtime s[92:93]")
    e(f"""
    s_and_b32 s{sH}, s2, 7
    s_bfe_u32 s{sB}, s2, 0x30003
    s_lshr_b32 s{sG}, s2, 6
    v_lshrrev_b32 v{vT}, 6, v0
    v_and_b32 v{vW}, 63, v0
    v_readfirstlane_b32 s{sD}, v{vT}
    s_waitcnt lgkmcnt(0)
    s_load_dwordx8 s[{SCL}:{SCL+7}], s[24:25], 0
    """)
    srd(e, SW, 30, 32 << 20); srd(e, SO, 26, Q_BYTES)
    e(f"""
    s_lshl_b32 s{sT0}, s{sG}, 13
    s_lshl_b32 s{sT1}, s{sD}, 11
    s_add_u32 s{sT0}, s{sT0}, s{sT1}
    v_lshlrev_b32 v{vOA}, 4, v{vW}
    v_add_u32 v{vOA}, s{sT0}, v{vOA}
    s_lshl_b32 s{sT0}, s{sG}, 9
    s_add_u32 s{sT0}, s{sT0}, {ML_OFF}
    v_lshlrev_b32 v{vMA}, 3, v{vW}
    v_add_u32 v{vMA}, s{sT0}, v{vMA}
    s_lshl_b32 s{sT0}, s{sB}, 3
    s_add_u32 s{sT0}, s{sT0}, s{sH}
    s_lshl_b32 s{sT0}, s{sT0}, 2
    s_add_u32 s{sT0}, s{sT0}, s{sG}
    s_lshl_b32 s{sT0}, s{sT0}, 13
    s_lshl_b32 s{sT1}, s{sD}, 6
    s_add_u32 s{sT0}, s{sT0}, s{sT1}
    v_and_b32 v{vT}, 31, v{vW}
    v_lshlrev_b32 v{vOut}, 8, v{vT}
    v_lshrrev_b32 v{vT}, 5, v{vW}
    v_lshl_add_u32 v{vOut}, v{vT}, 4, v{vOut}
    v_add_u32 v{vOut}, s{sT0}, v{vOut}
    v_mov_b32 v{vM}, {NEGINF:#x}
    v_mov_b32 v{vL}, 0
    """)
    for i in range(16): e(f"v_mov_b32 v{vAcc+i}, 0")
    e("s_waitcnt lgkmcnt(0)")
    batch_tables(e)
    e(f"s_mov_b32 s{sA}, s{SS}\ns_mov_b32 s{sZ}, s{SS+1}")
    for b in range(1, 8):
        e(f"s_cmp_eq_u32 s{sB}, {b}\ns_cselect_b32 s{sA}, s{SS+b}, s{sA}\ns_cselect_b32 s{sZ}, s{SS+b+1}, s{sZ}")
    e(f"""
    v_mul_u32_u24 v{vT}, s{SS+8}, v{vW}
    v_add_u32 v{vAL}, s{SS+8}, v{vT}
    v_lshrrev_b32 v{vT}, 5, v{vT}
    v_lshrrev_b32 v{vAL}, 5, v{vAL}
    v_max_u32 v{vT}, s{sA}, v{vT}
    v_min_u32 v{vAL}, s{sZ}, v{vAL}
    v_cmp_lt_u32 vcc, v{vT}, v{vAL}
    s_mul_i32 s{sLO}, s{sH}, {NSLOT_H}
    s_add_u32 s{sLO}, s{sLO}, s{sB}
    s_nop 1
    s_mov_b32 s{sJE}, vcc_lo
    C_chunk:
    """)
    for c in range(CH):
        e(f"""
        s_ff1_i32_b32 s{sJ}, s{sJE}
        s_cmp_lg_u32 s{sJE}, 0
        s_cselect_b32 s{96+c}, 0, {NEGINF:#x}
        s_bitset0_b32 s{sJE}, s{sJ}
        s_add_u32 s{sJ}, s{sJ}, s{sLO}
        s_cmp_eq_u32 s{96+c}, 0
        s_cselect_b32 s{sJ}, s{sJ}, 0x8000
        s_lshl_b32 s{sT0}, s{sJ}, 11
        s_lshl_b32 s{sT1}, s{sJ}, 15
        buffer_load_dwordx2 v[{vML+2*c}:{vML+2*c+1}], v{vMA}, s[{SW}:{SW+3}], s{sT0} offen
        buffer_load_dwordx4 v[{vD+8*c}:{vD+8*c+3}], v{vOA}, s[{SW}:{SW+3}], s{sT1} offen
        buffer_load_dwordx4 v[{vD+8*c+4}:{vD+8*c+7}], v{vOA}, s[{SW}:{SW+3}], s{sT1} offen offset:1024
        """)
    for c in range(CH):
        m, l = vML + 2 * c, vML + 2 * c + 1
        e(f"""
        s_waitcnt vmcnt({3*(CH-1-c)})
        v_add_f32 v{m}, s{96+c}, v{m}
        v_max_f32 v{vT}, v{vM}, v{m}
        v_sub_f32 v{vAL}, v{vM}, v{vT}
        v_sub_f32 v{vW}, v{m}, v{vT}
        v_exp_f32 v{vAL}, v{vAL}
        v_exp_f32 v{vW}, v{vW}
        v_mov_b32 v{vM}, v{vT}
        v_mul_f32 v{vL}, v{vL}, v{vAL}
        v_fmac_f32 v{vL}, v{l}, v{vW}
        """)
        for n in range(8):
            r = vD + 8 * c + n
            e(f"""
            v_lshlrev_b32 v{vT}, 16, v{r}
            v_and_b32 v{r}, 0xffff0000, v{r}
            v_mul_f32 v{vAcc+2*n}, v{vAcc+2*n}, v{vAL}
            v_mul_f32 v{vAcc+2*n+1}, v{vAcc+2*n+1}, v{vAL}
            v_fmac_f32 v{vAcc+2*n}, v{vT}, v{vW}
            v_fmac_f32 v{vAcc+2*n+1}, v{r}, v{vW}
            """)
    e(f"""
    s_cmp_lg_u32 s{sJE}, 0
    s_cbranch_scc1 C_chunk
    v_rcp_f32 v{vL}, v{vL}
    s_nop 0
    """)
    for i in range(16): e(f"v_mul_f32 v{vAcc+i}, v{vAcc+i}, v{vL}")
    for n in range(8): e(f"v_cvt_pk_bf16_f32 v{vD+n}, v{vAcc+2*n}, v{vAcc+2*n+1}")
    e("s_nop 1")
    for p in range(2):
        r = vD + 4 * p
        e(f"v_permlane32_swap_b32 v{r}, v{r+2}\nv_permlane32_swap_b32 v{r+1}, v{r+3}")
    for p in range(2):
        r = vD + 4 * p
        e(f"buffer_store_dwordx4 v[{r}:{r+3}], v{vOut}, s[{SO}:{SO+3}], 0 offen offset:{32*p}")
    if o["stamp"]:
        e(f"""
        s_waitcnt vmcnt(0)
        s_memrealtime s[94:95]
        s_lshl_b32 s{sT0}, s2, 2
        s_add_u32 s{sT0}, s{sT0}, s{sD}
        s_lshl_b32 s{sT0}, s{sT0}, 4
        s_add_u32 s{sT0}, s{sT0}, {STAMP_OFF + 16384}
        s_waitcnt lgkmcnt(0)
        v_mov_b32 v4, s92
        v_mov_b32 v5, s93
        v_mov_b32 v6, s94
        v_mov_b32 v7, s95
        v_mov_b32 v8, 0
        buffer_store_dwordx4 v[4:7], v8, s[{SW}:{SW+3}], s{sT0} offen
        """)
    e("C_end:\ns_endpgm")
    return e.text()

def desc(name, nv, acc):
    return f""".p2align 6
.amdhsa_kernel {name}
  .amdhsa_next_free_vgpr {nv}
  .amdhsa_next_free_sgpr 102
  .amdhsa_accum_offset {acc}
  .amdhsa_group_segment_fixed_size 0
  .amdhsa_kernarg_size 64
  .amdhsa_user_sgpr_count 2
  .amdhsa_user_sgpr_kernarg_segment_ptr 1
  .amdhsa_system_sgpr_workgroup_id_x 1
.end_amdhsa_kernel
"""

def build(**kw):
    o = dict(DEF); o.update(kw)
    k1, lds = main_kernel(o)
    k2 = combine_kernel(o)
    s = f"; @launch kernel={NAME}_kernel grid=(256,1,1) block=(256,1,1) lds={lds}\n"
    s += "; @launch kernel=combine_kernel grid=(256,1,1) block=(256,1,1) lds=0\n"
    s += '.amdgcn_target "amdgcn-amd-amdhsa--gfx950"\n.text\n' + k1 + k2
    s += '.section .rodata,"a"\n' + desc(NAME + "_kernel", 208 + 64, 208) + desc("combine_kernel", 88, 88)
    return s

if __name__ == "__main__":
    kw = {}
    for a in sys.argv[2:]:
        k, v = a.split("="); kw[k] = int(v)
    open(sys.argv[1], "w").write(build(**kw))
```

```python
import sys, struct, math

NAME = "standalone__paged_block_table_kv_pagedattention__sampling"
DEF = dict(NS=9, nt=1, hmap=0, compute=1, stamp=0, exactwait=1, empty=0, single=0)

def f2u(x):
    return struct.unpack("<I", struct.pack("<f", x))[0]

CSCALE = f2u(128 ** -0.5 * math.log2(math.e))
THR = f2u(8.0)
NEGINF = 0xFF800000
OOB = 0x80000000
KV_BYTES = 4100 * 32768
Q_BYTES = 8 * 32 * 32 * 128 * 2
NSLOT_H = 40
ML_OFF = 8 * NSLOT_H * 32768
WS_USED = ML_OFF + 8 * NSLOT_H * 2048
STAMP_OFF = 16 << 20

class E:
    def __init__(self):
        self.l = []
    def __call__(self, s):
        for x in s.strip("\n").split("\n"):
            x = x.strip()
            if x:
                self.l.append(("" if x.endswith(":") else "    ") + x)
    def text(self):
        return "\n".join(self.l) + "\n"

def srd(e, d, p, nbytes):
    e(f"s_mov_b32 s{d}, s{p}\ns_and_b32 s{d+1}, s{p+1}, 0xffff\ns_mov_b32 s{d+2}, {nbytes:#x}\ns_mov_b32 s{d+3}, 0x20000")

SQ, SK, SV, SW, SB, SO = 36, 40, 44, 48, 52, 64
SCL = 56
SC = 68
SS = 76

def batch_tables(e):
    e(f"s_mov_b32 s{SS}, 0")
    for b in range(8):
        e(f"""
        s_min_i32 s{SC+b}, s{SCL+b}, 0x2000
        s_cmp_lt_i32 s{SCL+b}, 1
        s_cselect_b32 s{SC+b}, 0x2000, s{SC+b}
        s_add_u32 s3, s{SC+b}, 31
        s_lshr_b32 s3, s3, 5
        s_add_u32 s{SS+b+1}, s{SS+b}, s3
        """)

def stamp_store(e, v, sw, off):
    e(f"""
    s_lshl_b32 s3, s2, 2
    s_add_u32 s3, s3, s{sw}
    s_lshl_b32 s3, s3, 5
    s_add_u32 s3, s3, {STAMP_OFF + off}
    v_mbcnt_lo_u32_b32 v8, -1, 0
    v_lshlrev_b32 v8, 2, v8
    s_mov_b64 exec, 0xff
    buffer_store_dword v{v}, v8, s[{SW}:{SW+3}], s3 offen
    """)

def interleave(e, mf, fill):
    for m, f in zip(mf, fill):
        e(m)
        for x in f:
            e(x)

def main_kernel(o):
    NS = o["NS"]; nt = " nt" if o["nt"] else ""
    e = E()
    vO, vS, vX, vK, vV, vP = 0, 64, 80, 96, 128, 160
    vKA, vVA = 168, 176
    vDK0, vDK1, vDV0, vDV1 = 180, 181, 182, 183
    vPG, vB, vC, vST, vZ = 184, 185, 186, 187, 188
    vM, vL, vT, vT2, vAL = 189, 190, 192, 193, 194
    vLane, vQA, vWO, vWM, vTok, vNI = 195, 196, 197, 198, 199, 200
    vML = 202
    sH, sJ, sW, sLO, sNT = 4, 5, 6, 7, 8
    sI, sE, sMK, sREM, sSC = 9, 10, 11, 12, 13
    sLD, sDS, sPG, sDEL, sRS = 14, 15, 32, 33, 34
    sFL, sSEG, sBB, sXW, sWB = 35, 85, 86, 87, 88
    sTHR, sT0, sT1 = 89, 90, 91
    WN = 4 * (NS - 3)
    EXTRA = 17

    e(f"""
    .globl {NAME}_kernel
    .p2align 8
    .type {NAME}_kernel,@function
    {NAME}_kernel:
    s_cmp_ge_u32 s2, {0 if o["empty"] else 256}
    s_cbranch_scc1 L_end
    s_load_dwordx16 s[16:31], s[0:1], 0
    """)
    def stamp(i):
        if o["stamp"]:
            e(f"s_memrealtime s[92:93]\ns_waitcnt lgkmcnt(0)\nv_writelane_b32 v204, s92, {i}")
    stamp(0)
    if o["hmap"] == 0:
        e(f"s_and_b32 s{sH}, s2, 7\ns_lshr_b32 s{sJ}, s2, 3")
    else:
        e(f"s_lshr_b32 s{sH}, s2, 5\ns_and_b32 s{sJ}, s2, 31")
    e(f"""
    v_lshrrev_b32 v{vT}, 6, v0
    v_and_b32 v{vLane}, 63, v0
    v_readfirstlane_b32 s{sW}, v{vT}
    s_waitcnt lgkmcnt(0)
    s_load_dwordx8 s[{SCL}:{SCL+7}], s[24:25], 0
    """)
    srd(e, SQ, 16, Q_BYTES); srd(e, SK, 18, KV_BYTES); srd(e, SV, 20, KV_BYTES)
    srd(e, SB, 22, 8 * 512 * 4); srd(e, SW, 30, 32 << 20)
    e(f"""
    v_and_b32 v{vT}, 31, v{vLane}
    v_lshrrev_b32 v{vT2}, 5, v{vLane}
    v_lshlrev_b32 v{vQA}, 8, v{vT}
    v_lshl_add_u32 v{vQA}, v{vT2}, 4, v{vQA}
    v_lshlrev_b32 v{vTok}, 2, v{vT2}
    v_and_b32 v{vAL}, 15, v{vLane}
    v_xor_b32 v{vAL}, v{vAL}, v{vT2}
    v_lshlrev_b32 v{vAL}, 4, v{vAL}
    v_lshl_add_u32 v{vKA}, v{vT}, 8, v{vAL}
    """)
    for ks in range(1, 8):
        e(f"v_xor_b32 v{vKA+ks}, {ks<<5}, v{vKA}")
    e(f"""
    v_bfe_u32 v{vT}, v{vLane}, 2, 2
    v_lshl_add_u32 v{vAL}, v{vT2}, 2, v{vT}
    v_lshlrev_b32 v{vAL}, 8, v{vAL}
    v_lshl_add_u32 v{vAL}, v{vT}, 6, v{vAL}
    v_bfe_u32 v{vT}, v{vLane}, 4, 1
    v_lshl_add_u32 v{vAL}, v{vT}, 5, v{vAL}
    v_and_b32 v{vT}, 3, v{vLane}
    v_lshl_add_u32 v{vAL}, v{vT}, 3, v{vAL}
    v_add_u32 v{vVA}, {8192 + (NS-1)*16384}, v{vAL}
    """)
    for db in range(1, 4):
        e(f"v_xor_b32 v{vVA+db}, {db<<6}, v{vVA}")
    e(f"""
    s_and_b32 s{sT0}, s{sW}, 1
    s_lshl_b32 s{sT0}, s{sT0}, 3
    s_lshl_b32 s{sT1}, s{sH}, 8
    v_lshrrev_b32 v{vT}, 4, v{vLane}
    v_add_u32 v{vT2}, s{sT0}, v{vT}
    v_and_b32 v{vAL}, 15, v{vLane}
    v_xor_b32 v{vM}, v{vAL}, v{vT2}
    v_lshlrev_b32 v{vM}, 4, v{vM}
    v_lshl_add_u32 v{vM}, v{vT2}, 11, v{vM}
    v_add_u32 v{vDK0}, s{sT1}, v{vM}
    v_xor_b32 v{vDK1}, 64, v{vDK0}
    v_add_u32 v{vDK1}, {8192-1024}, v{vDK1}
    v_lshlrev_b32 v{vT}, 2, v{vT}
    v_xor_b32 v{vM}, v{vAL}, v{vT}
    v_lshlrev_b32 v{vM}, 4, v{vM}
    v_lshl_add_u32 v{vM}, v{vT2}, 11, v{vM}
    v_add_u32 v{vDV0}, s{sT1}, v{vM}
    v_add_u32 v{vDV1}, {8192-1024}, v{vDV0}
    s_lshl_b32 s{sWB}, s{sW}, 11
    s_lshl_b32 s{sT0}, s{sW}, 13
    v_lshlrev_b32 v{vWO}, 4, v{vLane}
    v_add_u32 v{vWO}, s{sT0}, v{vWO}
    s_lshl_b32 s{sT0}, s{sW}, 9
    s_add_u32 s{sT0}, s{sT0}, {ML_OFF}
    v_lshlrev_b32 v{vWM}, 3, v{vLane}
    v_add_u32 v{vWM}, s{sT0}, v{vWM}
    v_mov_b32 v{vNI}, {NEGINF:#x}
    s_mov_b32 s{sTHR}, {THR:#x}
    s_mov_b32 s96, 16384
    s_waitcnt lgkmcnt(0)
    """)
    stamp(1)
    batch_tables(e)
    e(f"""
    s_mul_i32 s{sLO}, s{sJ}, s{SS+8}
    s_add_u32 s{sNT}, s{sLO}, s{SS+8}
    s_lshr_b32 s{sLO}, s{sLO}, 5
    s_lshr_b32 s{sNT}, s{sNT}, 5
    s_sub_u32 s{sNT}, s{sNT}, s{sLO}
    s_cmp_eq_u32 s{sNT}, 0
    s_cbranch_scc1 L_end
    v_add_u32 v{vT}, s{sLO}, v{vLane}
    v_mov_b32 v{vB}, 0
    v_mov_b32 v{vC}, s{SC}
    v_mov_b32 v{vST}, 0
    v_mov_b32 v{vZ}, s{SCL}
    """)
    for b in range(1, 8):
        e(f"""
        v_cmp_le_u32 vcc, s{SS+b}, v{vT}
        v_mov_b32 v{vT2}, s{SC+b}
        v_mov_b32 v{vAL}, s{SS+b}
        v_mov_b32 v{vM}, s{SCL+b}
        v_cndmask_b32 v{vC}, v{vC}, v{vT2}, vcc
        v_cndmask_b32 v{vST}, v{vST}, v{vAL}, vcc
        v_cndmask_b32 v{vZ}, v{vZ}, v{vM}, vcc
        v_addc_co_u32 v{vB}, vcc, 0, v{vB}, vcc
        """)
    e(f"""
    s_lshr_b32 s{sT0}, s{sW}, 1
    v_sub_u32 v{vT}, v{vT}, v{vST}
    v_lshl_add_u32 v{vT}, v{vT}, 1, s{sT0}
    v_lshl_add_u32 v{vT2}, v{vB}, 9, v{vT}
    v_lshlrev_b32 v{vT2}, 2, v{vT2}
    buffer_load_dword v{vPG}, v{vT2}, s[{SB}:{SB+3}], 0 offen
    v_lshlrev_b32 v{vT}, 4, v{vT}
    v_cmp_lt_u32 s[92+2:92+3], v{vT}, v{vC}
    v_cmp_gt_u32 vcc, s{sNT}, v{vLane}
    v_mov_b32 v{vM}, {CSCALE:#x}
    s_and_b64 s[94:95], s[94:95], vcc
    v_cmp_lt_i32 vcc, 0, v{vZ}
    s_mov_b32 s{sI}, 0
    s_mov_b32 s{sSEG}, 0
    v_cndmask_b32 v{vZ}, 0, v{vM}, vcc
    """.replace("s[92+2:92+3]", "s[94:95]"))

    def seg_params():
        e(f"""
        v_readlane_b32 s{sBB}, v{vB}, s{sI}
        v_readlane_b32 s{sREM}, v{vC}, s{sI}
        v_readlane_b32 s{sMK}, v{vST}, s{sI}
        v_readlane_b32 s{sSC}, v{vZ}, s{sI}
        s_add_u32 s{sT0}, s{sREM}, 31
        s_lshr_b32 s{sT0}, s{sT0}, 5
        s_add_u32 s{sMK}, s{sMK}, s{sT0}
        s_sub_u32 s{sMK}, s{sMK}, s{sLO}
        s_min_u32 s{sE}, s{sMK}, s{sNT}
        s_sub_u32 s{sMK}, s{sMK}, 1
        s_sub_u32 s{sT0}, s{sT0}, 1
        s_lshl_b32 s{sT0}, s{sT0}, 5
        s_sub_u32 s{sREM}, s{sREM}, s{sT0}
        """)
    def q_load(dst, boff):
        e(f"""
        s_add_u32 s{sT0}, s{sBB}, {boff}
        s_lshl_b32 s{sT0}, s{sT0}, 3
        s_add_u32 s{sT0}, s{sT0}, s{sH}
        s_lshl_b32 s{sT0}, s{sT0}, 2
        s_add_u32 s{sT0}, s{sT0}, s{sW}
        s_lshl_b32 s{sT0}, s{sT0}, 13
        """)
        if boff:
            e(f"s_cmp_lt_u32 s{sE}, s{sNT}\ns_cselect_b32 s{sT0}, s{sT0}, {OOB:#x}")
        for ks in range(8):
            e(f"buffer_load_dwordx4 a[{dst+4*ks}:{dst+4*ks+3}], v{vQA}, s[{SQ}:{SQ+3}], s{sT0} offen offset:{32*ks}")
    e("s_nop 1")
    seg_params()
    q_load(0, 0)
    q_load(32, 1)
    e(f"""
    s_waitcnt vmcnt(16)
    v_lshlrev_b32 v{vPG}, 15, v{vPG}
    v_mov_b32 v{vT}, {OOB:#x}
    v_cndmask_b32 v{vPG}, v{vT}, v{vPG}, s[94:95]
    s_mov_b32 s{sLD}, 0
    s_mov_b32 s{sDS}, s{sWB}
    s_mov_b32 s{sRS}, 0
    s_mov_b32 s{sXW}, 0
    s_mov_b32 s{sFL}, 0
    """)
    def next_page():
        return [f"v_readlane_b32 s{sPG}, v{vPG}, s{sLD}",
                f"s_cmp_lt_u32 s{sLD}, 64",
                f"s_cselect_b32 s{sPG}, s{sPG}, {OOB:#x}",
                f"s_add_u32 s{sLD}, s{sLD}, 1"]
    def dma():
        return [f"s_mov_b32 m0, s{sDS}",
                f"s_add_u32 s{sT1}, s{sDS}, 8192",
                f"buffer_load_dwordx4 v{vDK0}, s[{SK}:{SK+3}], s{sPG} offen{nt} lds",
                f"buffer_load_dwordx4 v{vDK1}, s[{SK}:{SK+3}], s{sPG} offen offset:1024{nt} lds",
                f"s_mov_b32 m0, s{sT1}",
                f"s_add_u32 s{sDS}, s{sDS}, 16384",
                f"buffer_load_dwordx4 v{vDV0}, s[{SV}:{SV+3}], s{sPG} offen{nt} lds",
                f"buffer_load_dwordx4 v{vDV1}, s[{SV}:{SV+3}], s{sPG} offen offset:1024{nt} lds",
                f"s_cmp_ge_u32 s{sDS}, {NS*16384}",
                f"s_cselect_b32 s{sT1}, {NS*16384}, 0",
                f"s_sub_u32 s{sDS}, s{sDS}, s{sT1}"]
    stamp(2)
    for t in range(NS - 2):
        for x in next_page(): e(x)
        e("s_nop 2")
        for x in dma(): e(x)
    for x in next_page(): e(x)

    def sync(tag):
        if o["exactwait"]:
            e(f"""
            s_cmp_eq_u32 s{sXW}, 0
            s_cbranch_scc1 L_w0_{tag}
            s_sub_u32 s{sXW}, s{sXW}, 1
            s_waitcnt vmcnt({WN+EXTRA})
            s_branch L_w1_{tag}
            L_w0_{tag}:
            s_waitcnt vmcnt({WN})
            L_w1_{tag}:
            """)
        else:
            e(f"s_waitcnt vmcnt({WN})")
        e("s_barrier")
    def kread(ks):
        return f"ds_read_b128 v[{vK+4*ks}:{vK+4*ks+3}], v{vKA+ks}"
    def vread(kk, db, u):
        r = vV + 16 * kk + 4 * db + 2 * u
        return f"ds_read_b64_tr_b16 v[{r}:{r+1}], v{vVA+db} offset:{4096*kk+2048*u}"
    def qk(ks):
        c = "0" if ks == 0 else f"v[{vS}:{vS+15}]"
        return f"v_mfma_f32_32x32x16_bf16 v[{vS}:{vS+15}], v[{vK+4*ks}:{vK+4*ks+3}], a[{4*ks}:{4*ks+3}], {c}"
    def pv(kk, db):
        a = vV + 16 * kk + 4 * db
        return f"v_mfma_f32_32x32x16_bf16 v[{vO+16*db}:{vO+16*db+15}], v[{a}:{a+3}], v[{vP+4*kk}:{vP+4*kk+3}], v[{vO+16*db}:{vO+16*db+15}]"
    EX = lambda i: f"v_exp_f32 v{vX+i}, v{vX+i}"
    AD = lambda i: f"v_add_f32 v{vL}, v{vL}, v{vX+i}"
    CV = lambda m: f"v_cvt_pk_bf16_f32 v{vP+m}, v{vX+2*m}, v{vX+2*m+1}"
    FM = lambda i: f"v_fma_f32 v{vX+i}, v{vS+i}, s{sSC}, -v{vM}"
    def maxops():
        r = [f"v_max3_f32 v{vT}, v{vS}, v{vS+1}, v{vS+2}"]
        for i in range(3, 15, 2):
            r.append(f"v_max3_f32 v{vT}, v{vT}, v{vS+i}, v{vS+i+1}")
        r.append(f"v_max_f32 v{vT}, v{vT}, v{vS+15}")
        return r
    def slot_delta():
        return [f"s_add_u32 s{sRS}, s{sRS}, 1",
                f"s_cmp_eq_u32 s{sRS}, {NS}",
                f"s_cselect_b32 s{sRS}, 0, s{sRS}"]
    def kadv():
        r = [f"s_cmp_eq_u32 s{sRS}, {NS-1}",
             f"s_cselect_b32 s{sDEL}, {(-(NS-1)*16384) & 0xffffffff:#x}, s96"]
        return r + [f"v_add_u32 v{vKA+i}, s{sDEL}, v{vKA+i}" for i in range(8)]
    def vadv():
        r = [f"s_cmp_eq_u32 s{sRS}, 0",
             f"s_cselect_b32 s{sDEL}, {(-(NS-1)*16384) & 0xffffffff:#x}, s96"]
        return r + [f"v_add_u32 v{vVA+i}, s{sDEL}, v{vVA+i}" for i in range(4)]
    def mask_block():
        for r in range(16):
            tok = (r & 3) + 8 * (r >> 2)
            e(f"""
            v_add_u32 v{vT2}, {tok}, v{vTok}
            v_cmp_gt_u32 vcc, s{sREM}, v{vT2}
            s_nop 1
            v_cndmask_b32 v{vS+r}, v{vNI}, v{vS+r}, vcc
            """)
    def fullmax():
        e(f"""
        v_mov_b32 v{vT2}, v{vT}
        s_nop 1
        v_permlane32_swap_b32 v{vT}, v{vT2}
        v_max_f32 v{vT}, v{vT}, v{vT2}
        v_mul_f32 v{vT}, s{sSC}, v{vT}
        """)

    e("L_seg:")
    sync("f")
    if o["stamp"]:
        e(f"s_cmp_lg_u32 s{sI}, 0\ns_cbranch_scc1 L_nost")
        stamp(3)
        e("L_nost:")
    for ks in range(8): e(kread(ks))
    for x in dma(): e(x)
    for i in range(64): e(f"v_mov_b32 v{vO+i}, 0")
    e(f"v_mov_b32 v{vL}, 0")
    for ks in range(8):
        e(f"s_waitcnt lgkmcnt({7-ks})")
        e(qk(ks))
    for x in kadv() + vadv() + slot_delta() + next_page(): e(x)
    e(f"s_cmp_lg_u32 s{sI}, s{sMK}\ns_cbranch_scc1 L_f_nomask")
    mask_block()
    e("L_f_nomask:")
    for x in maxops(): e(x)
    fullmax()
    e(f"v_mov_b32 v{vM}, v{vT}")
    for i in range(16): e(FM(i))
    e(f"""
    s_add_u32 s{sI}, s{sI}, 1
    s_cmp_ge_u32 s{sI}, s{sE}
    s_cbranch_scc1 L_last
    .p2align 3
    L_loop:
    """)
    sync("l")
    if o["compute"]:
        d = dma()
        for ks in range(8): e(kread(ks))
        for x in d[:4]: e(x)
        e(EX(0)); e(EX(1))
        for x in d[4:]: e(x)
        e(EX(2)); e(EX(3)); e(AD(0)); e(AD(1)); e(CV(0))
        vr = [vread(kk, db, u) for kk in range(2) for db in range(4) for u in range(2)]
        mf, fl = [], []
        for ks in range(8):
            nv = min(2 * ks, 8)
            mf.append(f"s_waitcnt lgkmcnt({7-ks+nv})\n" + qk(ks))
        fl.append([vr[0], vr[1], EX(4), AD(2), EX(5), AD(3), CV(1)])
        fl.append([vr[2], vr[3], EX(6), AD(4), EX(7), AD(5), CV(2)])
        fl.append([vr[4], vr[5], EX(8), AD(6), EX(9), AD(7), CV(3)])
        fl.append([vr[6], vr[7], EX(10), AD(8), EX(11), AD(9), CV(4)])
        fl.append([EX(12), AD(10), EX(13), AD(11), CV(5)])
        fl.append([EX(14), AD(12), EX(15), AD(13), CV(6)])
        fl.append([vr[8], vr[9], vr[10], vr[11], AD(14), AD(15), CV(7)])
        fl.append([vr[12], vr[13], vr[14], vr[15]])
        interleave(e, mf, fl)
        ka, va, mx = kadv(), vadv(), maxops()
        e("s_waitcnt lgkmcnt(14)"); e(pv(0, 0))
        for x in ka[:6]: e(x)
        e("s_waitcnt lgkmcnt(12)"); e(pv(0, 1))
        for x in ka[6:]: e(x)
        e(f"s_cmp_eq_u32 s{sI}, s{sMK}\ns_cbranch_scc1 L_mask\nL_mask_ret:")
        e("s_waitcnt lgkmcnt(10)"); e(pv(0, 2))
        for x in mx[:5]: e(x)
        e("s_waitcnt lgkmcnt(8)"); e(pv(0, 3))
        for x in mx[5:]: e(x)
        e(f"v_fma_f32 v{vT2}, v{vT}, s{sSC}, -v{vM}\nv_cmp_lt_f32 vcc, s{sTHR}, v{vT2}")
        e("s_waitcnt lgkmcnt(6)"); e(pv(1, 0))
        e("s_cbranch_vccnz L_newmax\nL_newmax_ret:")
        for i in range(0, 5): e(FM(i))
        e("s_waitcnt lgkmcnt(4)"); e(pv(1, 1))
        for i in range(5, 10): e(FM(i))
        e("s_waitcnt lgkmcnt(2)"); e(pv(1, 2))
        for i in range(10, 16): e(FM(i))
        e("s_waitcnt lgkmcnt(0)"); e(pv(1, 3))
        for x in va + slot_delta() + next_page(): e(x)
        e(f"s_cmp_lg_u32 s{sFL}, 0\ns_cbranch_scc1 L_rescale\nL_rescale_ret:")
    else:
        for x in dma() + next_page(): e(x)
        e("s_nop 4\nL_mask_ret:\nL_newmax_ret:\nL_rescale_ret:")
    e(f"""
    s_add_u32 s{sI}, s{sI}, 1
    s_cmp_lt_u32 s{sI}, s{sE}
    s_cbranch_scc1 L_loop
    L_last:
    """)
    vr = [vread(kk, db, u) for kk in range(2) for db in range(4) for u in range(2)]
    for x in vr[:8]: e(x)
    for i in range(16): e(EX(i))
    for x in vr[8:]: e(x)
    for i in range(16): e(AD(i))
    for m in range(8): e(CV(m))
    e("s_waitcnt lgkmcnt(0)")
    for kk in range(2):
        for db in range(4): e(pv(kk, db))
    stamp(4)
    e(f"""
    v_mov_b32 v{vT2}, v{vL}
    s_add_u32 s{sT0}, s{sJ}, s{sBB}
    s_mul_i32 s{sT1}, s{sH}, {NSLOT_H}
    v_permlane32_swap_b32 v{vL}, v{vT2}
    s_add_u32 s{sT0}, s{sT0}, s{sT1}
    v_add_f32 v{vML+1}, v{vL}, v{vT2}
    v_mov_b32 v{vML}, v{vM}
    s_lshl_b32 s{sT1}, s{sT0}, 11
    s_lshl_b32 s{sT0}, s{sT0}, 15
    buffer_store_dwordx2 v[{vML}:{vML+1}], v{vWM}, s[{SW}:{SW+3}], s{sT1} offen
    s_add_u32 s{sT1}, s{sT0}, 4096
    s_nop 7
    """)
    for q in range(8):
        for n in range(4):
            e(f"v_cvt_pk_bf16_f32 v{vK+4*q+n}, v{vO+8*q+2*n}, v{vO+8*q+2*n+1}")
        e(f"buffer_store_dwordx4 v[{vK+4*q}:{vK+4*q+3}], v{vWO}, s[{SW}:{SW+3}], s{sT0 if q<4 else sT1} offen offset:{1024*(q&3)}")
    e(f"""
    s_cmp_ge_u32 s{sI}, s{sNT}
    s_cbranch_scc1 L_done
    s_cmp_eq_u32 s{sSEG}, 0
    s_cbranch_scc1 L_qready
    s_waitcnt vmcnt(0)
    L_qready:
    s_mov_b32 s{sSEG}, 1
    """)
    for i in range(32): e(f"v_accvgpr_mov_b32 a{i}, a{32+i}")
    seg_params()
    q_load(32, 1)
    e(f"s_mov_b32 s{sXW}, {NS-2}\ns_branch L_seg")
    e("L_mask:")
    mask_block()
    e("s_branch L_mask_ret\nL_newmax:")
    fullmax()
    e(f"""
    v_max_f32 v{vT}, v{vT}, v{vM}
    v_sub_f32 v{vAL}, v{vM}, v{vT}
    v_exp_f32 v{vAL}, v{vAL}
    v_mov_b32 v{vM}, v{vT}
    s_mov_b32 s{sFL}, 1
    v_mul_f32 v{vL}, v{vL}, v{vAL}
    s_branch L_newmax_ret
    L_rescale:
    s_mov_b32 s{sFL}, 0
    s_nop 7
    """)
    for i in range(64): e(f"v_mul_f32 v{vO+i}, v{vO+i}, v{vAL}")
    e("s_branch L_rescale_ret\nL_done:")
    if o["stamp"]:
        e("s_waitcnt vmcnt(0)")
        stamp(5)
        stamp_store(e, 204, sW, 0)
    e("L_end:\ns_endpgm")
    return e.text(), NS * 16384

def combine_kernel(o):
    e = E()
    sH, sB, sG, sD, sT0, sT1, sJ, sJE, sLO, sHI = 4, 5, 6, 7, 8, 9, 10, 11, 12, 13
    sA, sZ = 14, 15
    CH = 6
    vAcc, vM, vL, vOA, vMA, vT, vW, vAL, vOut = 0, 16, 17, 18, 19, 20, 21, 22, 23
    vD, vML = 24, 24 + 8 * CH
    e(f"""
    .globl combine_kernel
    .p2align 8
    .type combine_kernel,@function
    combine_kernel:
    s_cmp_ge_u32 s2, {0 if o["empty"] else 256}
    s_cbranch_scc1 C_end
    s_load_dwordx16 s[16:31], s[0:1], 0
    """)
    def stamp(i):
        if o["stamp"]:
            e(f"s_memrealtime s[92:93]\ns_waitcnt lgkmcnt(0)\nv_writelane_b32 v84, s92, {i}")
    stamp(0)
    e(f"""
    s_and_b32 s{sH}, s2, 7
    s_bfe_u32 s{sB}, s2, 0x30003
    s_lshr_b32 s{sG}, s2, 6
    v_lshrrev_b32 v{vT}, 6, v0
    v_and_b32 v{vW}, 63, v0
    v_readfirstlane_b32 s{sD}, v{vT}
    s_waitcnt lgkmcnt(0)
    s_load_dwordx8 s[{SCL}:{SCL+7}], s[24:25], 0
    """)
    srd(e, SW, 30, 32 << 20); srd(e, SO, 26, Q_BYTES)
    e(f"""
    s_lshl_b32 s{sT0}, s{sG}, 13
    s_lshl_b32 s{sT1}, s{sD}, 11
    s_add_u32 s{sT0}, s{sT0}, s{sT1}
    v_lshlrev_b32 v{vOA}, 4, v{vW}
    v_add_u32 v{vOA}, s{sT0}, v{vOA}
    s_lshl_b32 s{sT0}, s{sG}, 9
    s_add_u32 s{sT0}, s{sT0}, {ML_OFF}
    v_lshlrev_b32 v{vMA}, 3, v{vW}
    v_add_u32 v{vMA}, s{sT0}, v{vMA}
    s_lshl_b32 s{sT0}, s{sB}, 3
    s_add_u32 s{sT0}, s{sT0}, s{sH}
    s_lshl_b32 s{sT0}, s{sT0}, 2
    s_add_u32 s{sT0}, s{sT0}, s{sG}
    s_lshl_b32 s{sT0}, s{sT0}, 13
    s_lshl_b32 s{sT1}, s{sD}, 6
    s_add_u32 s{sT0}, s{sT0}, s{sT1}
    v_and_b32 v{vT}, 31, v{vW}
    v_lshlrev_b32 v{vOut}, 8, v{vT}
    v_lshrrev_b32 v{vT}, 5, v{vW}
    v_lshl_add_u32 v{vOut}, v{vT}, 4, v{vOut}
    v_add_u32 v{vOut}, s{sT0}, v{vOut}
    v_mov_b32 v{vM}, {NEGINF:#x}
    v_mov_b32 v{vL}, 0
    """)
    for i in range(16): e(f"v_mov_b32 v{vAcc+i}, 0")
    e("s_waitcnt lgkmcnt(0)")
    batch_tables(e)
    e(f"s_mov_b32 s{sA}, s{SS}\ns_mov_b32 s{sZ}, s{SS+1}")
    for b in range(1, 8):
        e(f"s_cmp_eq_u32 s{sB}, {b}\ns_cselect_b32 s{sA}, s{SS+b}, s{sA}\ns_cselect_b32 s{sZ}, s{SS+b+1}, s{sZ}")
    e(f"""
    v_mul_u32_u24 v{vT}, s{SS+8}, v{vW}
    v_add_u32 v{vAL}, s{SS+8}, v{vT}
    v_lshrrev_b32 v{vT}, 5, v{vT}
    v_lshrrev_b32 v{vAL}, 5, v{vAL}
    v_max_u32 v{vT}, s{sA}, v{vT}
    v_min_u32 v{vAL}, s{sZ}, v{vAL}
    v_cmp_lt_u32 vcc, v{vT}, v{vAL}
    s_mul_i32 s{sLO}, s{sH}, {NSLOT_H}
    s_add_u32 s{sLO}, s{sLO}, s{sB}
    s_nop 1
    s_mov_b32 s{sJE}, vcc_lo
    C_chunk:
    """)
    for c in range(CH):
        e(f"""
        s_ff1_i32_b32 s{sJ}, s{sJE}
        s_cmp_lg_u32 s{sJE}, 0
        s_cselect_b32 s{96+c}, 0, {NEGINF:#x}
        s_bitset0_b32 s{sJE}, s{sJ}
        s_add_u32 s{sJ}, s{sJ}, s{sLO}
        s_cmp_eq_u32 s{96+c}, 0
        s_cselect_b32 s{sJ}, s{sJ}, 0x8000
        s_lshl_b32 s{sT0}, s{sJ}, 11
        s_lshl_b32 s{sT1}, s{sJ}, 15
        buffer_load_dwordx2 v[{vML+2*c}:{vML+2*c+1}], v{vMA}, s[{SW}:{SW+3}], s{sT0} offen
        buffer_load_dwordx4 v[{vD+8*c}:{vD+8*c+3}], v{vOA}, s[{SW}:{SW+3}], s{sT1} offen
        buffer_load_dwordx4 v[{vD+8*c+4}:{vD+8*c+7}], v{vOA}, s[{SW}:{SW+3}], s{sT1} offen offset:1024
        """)
    for c in range(CH):
        m, l = vML + 2 * c, vML + 2 * c + 1
        e(f"""
        s_waitcnt vmcnt({3*(CH-1-c)})
        v_add_f32 v{m}, s{96+c}, v{m}
        v_max_f32 v{vT}, v{vM}, v{m}
        v_sub_f32 v{vAL}, v{vM}, v{vT}
        v_sub_f32 v{vW}, v{m}, v{vT}
        v_exp_f32 v{vAL}, v{vAL}
        v_exp_f32 v{vW}, v{vW}
        v_mov_b32 v{vM}, v{vT}
        v_mul_f32 v{vL}, v{vL}, v{vAL}
        v_fmac_f32 v{vL}, v{l}, v{vW}
        """)
        for n in range(8):
            r = vD + 8 * c + n
            e(f"""
            v_lshlrev_b32 v{vT}, 16, v{r}
            v_and_b32 v{r}, 0xffff0000, v{r}
            v_mul_f32 v{vAcc+2*n}, v{vAcc+2*n}, v{vAL}
            v_mul_f32 v{vAcc+2*n+1}, v{vAcc+2*n+1}, v{vAL}
            v_fmac_f32 v{vAcc+2*n}, v{vT}, v{vW}
            v_fmac_f32 v{vAcc+2*n+1}, v{r}, v{vW}
            """)
    e(f"""
    s_cmp_lg_u32 s{sJE}, 0
    s_cbranch_scc1 C_chunk
    v_rcp_f32 v{vL}, v{vL}
    s_nop 0
    """)
    for i in range(16): e(f"v_mul_f32 v{vAcc+i}, v{vAcc+i}, v{vL}")
    for n in range(8): e(f"v_cvt_pk_bf16_f32 v{vD+n}, v{vAcc+2*n}, v{vAcc+2*n+1}")
    e("s_nop 1")
    for p in range(2):
        r = vD + 4 * p
        e(f"v_permlane32_swap_b32 v{r}, v{r+2}\nv_permlane32_swap_b32 v{r+1}, v{r+3}")
    for p in range(2):
        r = vD + 4 * p
        e(f"buffer_store_dwordx4 v[{r}:{r+3}], v{vOut}, s[{SO}:{SO+3}], 0 offen offset:{32*p}")
    if o["stamp"]:
        e("s_waitcnt vmcnt(0)")
        stamp(5)
        stamp_store(e, 84, sD, 32768)
    e("C_end:\ns_endpgm")
    return e.text()

def desc(name, nv, acc):
    return f""".p2align 6
.amdhsa_kernel {name}
  .amdhsa_next_free_vgpr {nv}
  .amdhsa_next_free_sgpr 102
  .amdhsa_accum_offset {acc}
  .amdhsa_group_segment_fixed_size 0
  .amdhsa_kernarg_size 64
  .amdhsa_user_sgpr_count 2
  .amdhsa_user_sgpr_kernarg_segment_ptr 1
  .amdhsa_system_sgpr_workgroup_id_x 1
.end_amdhsa_kernel
"""

def build(**kw):
    o = dict(DEF); o.update(kw)
    k1, lds = main_kernel(o)
    k2 = combine_kernel(o)
    s = f"; @launch kernel={NAME}_kernel grid=(256,1,1) block=(256,1,1) lds={lds}\n"
    if not o["single"]:
        s += "; @launch kernel=combine_kernel grid=(256,1,1) block=(256,1,1) lds=0\n"
    s += '.amdgcn_target "amdgcn-amd-amdhsa--gfx950"\n.text\n' + k1 + k2
    s += '.section .rodata,"a"\n' + desc(NAME + "_kernel", 208 + 64, 208) + desc("combine_kernel", 88, 88)
    return s

if __name__ == "__main__":
    kw = {}
    for a in sys.argv[2:]:
        k, v = a.split("="); kw[k] = int(v)
    open(sys.argv[1], "w").write(build(**kw))
```

```python
import sys, struct, math

NAME = "standalone__paged_block_table_kv_pagedattention__sampling"
DEF = dict(NS=9, nt=1, hmap=0, compute=1, stamp=0, exactwait=1, empty=0, single=0)

def f2u(x):
    return struct.unpack("<I", struct.pack("<f", x))[0]

CSCALE = f2u(128 ** -0.5 * math.log2(math.e))
THR = f2u(8.0)
NEGINF = 0xFF800000
OOB = 0x80000000
KV_BYTES = 4100 * 32768
Q_BYTES = 8 * 32 * 32 * 128 * 2
NSLOT_H = 40
ML_OFF = 8 * NSLOT_H * 32768
WS_USED = ML_OFF + 8 * NSLOT_H * 2048
STAMP_OFF = 16 << 20

class E:
    def __init__(self):
        self.l = []
    def __call__(self, s):
        for x in s.strip("\n").split("\n"):
            x = x.strip()
            if x:
                self.l.append(("" if x.endswith(":") else "    ") + x)
    def text(self):
        return "\n".join(self.l) + "\n"

def srd(e, d, p, nbytes):
    e(f"s_mov_b32 s{d}, s{p}\ns_and_b32 s{d+1}, s{p+1}, 0xffff\ns_mov_b32 s{d+2}, {nbytes:#x}\ns_mov_b32 s{d+3}, 0x20000")

SQ, SK, SV, SW, SB, SO = 36, 40, 44, 48, 52, 64
SCL = 56
SC = 68
SS = 76

def batch_tables(e):
    e(f"s_mov_b32 s{SS}, 0")
    for b in range(8):
        e(f"""
        s_min_i32 s{SC+b}, s{SCL+b}, 0x2000
        s_cmp_lt_i32 s{SCL+b}, 1
        s_cselect_b32 s{SC+b}, 0x2000, s{SC+b}
        s_add_u32 s3, s{SC+b}, 31
        s_lshr_b32 s3, s3, 5
        s_add_u32 s{SS+b+1}, s{SS+b}, s3
        """)

def stamp_store(e, v, sw, off):
    e(f"""
    s_lshl_b32 s3, s2, 2
    s_add_u32 s3, s3, s{sw}
    s_lshl_b32 s3, s3, 5
    s_add_u32 s3, s3, {STAMP_OFF + off}
    v_mbcnt_lo_u32_b32 v8, -1, 0
    v_lshlrev_b32 v8, 2, v8
    s_mov_b64 exec, 0xff
    buffer_store_dword v{v}, v8, s[{SW}:{SW+3}], s3 offen
    """)

def interleave(e, mf, fill):
    for m, f in zip(mf, fill):
        e(m)
        for x in f:
            e(x)

def main_kernel(o):
    NS = o["NS"]; nt = " nt" if o["nt"] else ""
    e = E()
    vO, vS, vX, vK, vV, vP = 0, 64, 80, 96, 128, 160
    vKA, vVA = 168, 176
    vDK0, vDK1, vDV0, vDV1 = 180, 181, 182, 183
    vPG, vB, vC, vST, vZ = 184, 185, 186, 187, 188
    vM, vL, vT, vT2, vAL = 189, 190, 192, 193, 194
    vLane, vQA, vWO, vWM, vTok, vNI = 195, 196, 197, 198, 199, 200
    vML = 202
    sH, sJ, sW, sLO, sNT = 4, 5, 6, 7, 8
    sI, sE, sMK, sREM, sSC = 9, 10, 11, 12, 13
    sLD, sDS, sPG, sDEL, sRS = 14, 15, 32, 33, 34
    sFL, sSEG, sBB, sXW, sWB = 35, 85, 86, 87, 88
    sTHR, sT0, sT1 = 89, 90, 91
    WN = 4 * (NS - 3)
    EXTRA = 17

    e(f"""
    .globl {NAME}_kernel
    .p2align 8
    .type {NAME}_kernel,@function
    {NAME}_kernel:
    s_cmp_ge_u32 s2, {0 if o["empty"] else 256}
    s_cbranch_scc1 L_end
    s_load_dwordx16 s[16:31], s[0:1], 0
    """)
    def stamp(i):
        if o["stamp"]:
            e(f"s_memrealtime s[92:93]\ns_waitcnt lgkmcnt(0)\nv_writelane_b32 v204, s92, {i}")
    def cstamp(i):
        if o["stamp"]:
            e(f"s_memtime s[92:93]\ns_waitcnt lgkmcnt(0)\nv_writelane_b32 v204, s92, {i}")
    stamp(0)
    cstamp(6)
    if o["hmap"] == 0:
        e(f"s_and_b32 s{sH}, s2, 7\ns_lshr_b32 s{sJ}, s2, 3")
    else:
        e(f"s_lshr_b32 s{sH}, s2, 5\ns_and_b32 s{sJ}, s2, 31")
    e(f"""
    v_lshrrev_b32 v{vT}, 6, v0
    v_and_b32 v{vLane}, 63, v0
    v_readfirstlane_b32 s{sW}, v{vT}
    s_waitcnt lgkmcnt(0)
    s_load_dwordx8 s[{SCL}:{SCL+7}], s[24:25], 0
    """)
    srd(e, SQ, 16, Q_BYTES); srd(e, SK, 18, KV_BYTES); srd(e, SV, 20, KV_BYTES)
    srd(e, SB, 22, 8 * 512 * 4); srd(e, SW, 30, 32 << 20)
    e(f"""
    v_and_b32 v{vT}, 31, v{vLane}
    v_lshrrev_b32 v{vT2}, 5, v{vLane}
    v_lshlrev_b32 v{vQA}, 8, v{vT}
    v_lshl_add_u32 v{vQA}, v{vT2}, 4, v{vQA}
    v_lshlrev_b32 v{vTok}, 2, v{vT2}
    v_and_b32 v{vAL}, 15, v{vLane}
    v_xor_b32 v{vAL}, v{vAL}, v{vT2}
    v_lshlrev_b32 v{vAL}, 4, v{vAL}
    v_lshl_add_u32 v{vKA}, v{vT}, 8, v{vAL}
    """)
    for ks in range(1, 8):
        e(f"v_xor_b32 v{vKA+ks}, {ks<<5}, v{vKA}")
    e(f"""
    v_bfe_u32 v{vT}, v{vLane}, 2, 2
    v_lshl_add_u32 v{vAL}, v{vT2}, 2, v{vT}
    v_lshlrev_b32 v{vAL}, 8, v{vAL}
    v_lshl_add_u32 v{vAL}, v{vT}, 6, v{vAL}
    v_bfe_u32 v{vT}, v{vLane}, 4, 1
    v_lshl_add_u32 v{vAL}, v{vT}, 5, v{vAL}
    v_and_b32 v{vT}, 3, v{vLane}
    v_lshl_add_u32 v{vAL}, v{vT}, 3, v{vAL}
    v_add_u32 v{vVA}, {8192 + (NS-1)*16384}, v{vAL}
    """)
    for db in range(1, 4):
        e(f"v_xor_b32 v{vVA+db}, {db<<6}, v{vVA}")
    e(f"""
    s_and_b32 s{sT0}, s{sW}, 1
    s_lshl_b32 s{sT0}, s{sT0}, 3
    s_lshl_b32 s{sT1}, s{sH}, 8
    v_lshrrev_b32 v{vT}, 4, v{vLane}
    v_add_u32 v{vT2}, s{sT0}, v{vT}
    v_and_b32 v{vAL}, 15, v{vLane}
    v_xor_b32 v{vM}, v{vAL}, v{vT2}
    v_lshlrev_b32 v{vM}, 4, v{vM}
    v_lshl_add_u32 v{vM}, v{vT2}, 11, v{vM}
    v_add_u32 v{vDK0}, s{sT1}, v{vM}
    v_xor_b32 v{vDK1}, 64, v{vDK0}
    v_add_u32 v{vDK1}, {8192-1024}, v{vDK1}
    v_lshlrev_b32 v{vT}, 2, v{vT}
    v_xor_b32 v{vM}, v{vAL}, v{vT}
    v_lshlrev_b32 v{vM}, 4, v{vM}
    v_lshl_add_u32 v{vM}, v{vT2}, 11, v{vM}
    v_add_u32 v{vDV0}, s{sT1}, v{vM}
    v_add_u32 v{vDV1}, {8192-1024}, v{vDV0}
    s_lshl_b32 s{sWB}, s{sW}, 11
    s_lshl_b32 s{sT0}, s{sW}, 13
    v_lshlrev_b32 v{vWO}, 4, v{vLane}
    v_add_u32 v{vWO}, s{sT0}, v{vWO}
    s_lshl_b32 s{sT0}, s{sW}, 9
    s_add_u32 s{sT0}, s{sT0}, {ML_OFF}
    v_lshlrev_b32 v{vWM}, 3, v{vLane}
    v_add_u32 v{vWM}, s{sT0}, v{vWM}
    v_mov_b32 v{vNI}, {NEGINF:#x}
    s_mov_b32 s{sTHR}, {THR:#x}
    s_mov_b32 s96, 16384
    s_waitcnt lgkmcnt(0)
    """)
    stamp(1)
    batch_tables(e)
    e(f"""
    s_mul_i32 s{sLO}, s{sJ}, s{SS+8}
    s_add_u32 s{sNT}, s{sLO}, s{SS+8}
    s_lshr_b32 s{sLO}, s{sLO}, 5
    s_lshr_b32 s{sNT}, s{sNT}, 5
    s_sub_u32 s{sNT}, s{sNT}, s{sLO}
    s_cmp_eq_u32 s{sNT}, 0
    s_cbranch_scc1 L_end
    v_add_u32 v{vT}, s{sLO}, v{vLane}
    v_mov_b32 v{vB}, 0
    v_mov_b32 v{vC}, s{SC}
    v_mov_b32 v{vST}, 0
    v_mov_b32 v{vZ}, s{SCL}
    """)
    for b in range(1, 8):
        e(f"""
        v_cmp_le_u32 vcc, s{SS+b}, v{vT}
        v_mov_b32 v{vT2}, s{SC+b}
        v_mov_b32 v{vAL}, s{SS+b}
        v_mov_b32 v{vM}, s{SCL+b}
        v_cndmask_b32 v{vC}, v{vC}, v{vT2}, vcc
        v_cndmask_b32 v{vST}, v{vST}, v{vAL}, vcc
        v_cndmask_b32 v{vZ}, v{vZ}, v{vM}, vcc
        v_addc_co_u32 v{vB}, vcc, 0, v{vB}, vcc
        """)
    e(f"""
    s_lshr_b32 s{sT0}, s{sW}, 1
    v_sub_u32 v{vT}, v{vT}, v{vST}
    v_lshl_add_u32 v{vT}, v{vT}, 1, s{sT0}
    v_lshl_add_u32 v{vT2}, v{vB}, 9, v{vT}
    v_lshlrev_b32 v{vT2}, 2, v{vT2}
    buffer_load_dword v{vPG}, v{vT2}, s[{SB}:{SB+3}], 0 offen
    v_lshlrev_b32 v{vT}, 4, v{vT}
    v_cmp_lt_u32 s[92+2:92+3], v{vT}, v{vC}
    v_cmp_gt_u32 vcc, s{sNT}, v{vLane}
    v_mov_b32 v{vM}, {CSCALE:#x}
    s_and_b64 s[94:95], s[94:95], vcc
    v_cmp_lt_i32 vcc, 0, v{vZ}
    s_mov_b32 s{sI}, 0
    s_mov_b32 s{sSEG}, 0
    v_cndmask_b32 v{vZ}, 0, v{vM}, vcc
    """.replace("s[92+2:92+3]", "s[94:95]"))

    def seg_params():
        e(f"""
        v_readlane_b32 s{sBB}, v{vB}, s{sI}
        v_readlane_b32 s{sREM}, v{vC}, s{sI}
        v_readlane_b32 s{sMK}, v{vST}, s{sI}
        v_readlane_b32 s{sSC}, v{vZ}, s{sI}
        s_add_u32 s{sT0}, s{sREM}, 31
        s_lshr_b32 s{sT0}, s{sT0}, 5
        s_add_u32 s{sMK}, s{sMK}, s{sT0}
        s_sub_u32 s{sMK}, s{sMK}, s{sLO}
        s_min_u32 s{sE}, s{sMK}, s{sNT}
        s_sub_u32 s{sMK}, s{sMK}, 1
        s_sub_u32 s{sT0}, s{sT0}, 1
        s_lshl_b32 s{sT0}, s{sT0}, 5
        s_sub_u32 s{sREM}, s{sREM}, s{sT0}
        """)
    def q_load(dst, boff):
        e(f"""
        s_add_u32 s{sT0}, s{sBB}, {boff}
        s_lshl_b32 s{sT0}, s{sT0}, 3
        s_add_u32 s{sT0}, s{sT0}, s{sH}
        s_lshl_b32 s{sT0}, s{sT0}, 2
        s_add_u32 s{sT0}, s{sT0}, s{sW}
        s_lshl_b32 s{sT0}, s{sT0}, 13
        """)
        if boff:
            e(f"s_cmp_lt_u32 s{sE}, s{sNT}\ns_cselect_b32 s{sT0}, s{sT0}, {OOB:#x}")
        for ks in range(8):
            e(f"buffer_load_dwordx4 a[{dst+4*ks}:{dst+4*ks+3}], v{vQA}, s[{SQ}:{SQ+3}], s{sT0} offen offset:{32*ks}")
    e("s_nop 1")
    seg_params()
    q_load(0, 0)
    q_load(32, 1)
    e(f"""
    s_waitcnt vmcnt(16)
    v_lshlrev_b32 v{vPG}, 15, v{vPG}
    v_mov_b32 v{vT}, {OOB:#x}
    v_cndmask_b32 v{vPG}, v{vT}, v{vPG}, s[94:95]
    s_mov_b32 s{sLD}, 0
    s_mov_b32 s{sDS}, s{sWB}
    s_mov_b32 s{sRS}, 0
    s_mov_b32 s{sXW}, 0
    s_mov_b32 s{sFL}, 0
    """)
    def next_page():
        return [f"v_readlane_b32 s{sPG}, v{vPG}, s{sLD}",
                f"s_cmp_lt_u32 s{sLD}, 64",
                f"s_cselect_b32 s{sPG}, s{sPG}, {OOB:#x}",
                f"s_add_u32 s{sLD}, s{sLD}, 1"]
    def dma():
        return [f"s_mov_b32 m0, s{sDS}",
                f"s_add_u32 s{sT1}, s{sDS}, 8192",
                f"buffer_load_dwordx4 v{vDK0}, s[{SK}:{SK+3}], s{sPG} offen{nt} lds",
                f"buffer_load_dwordx4 v{vDK1}, s[{SK}:{SK+3}], s{sPG} offen offset:1024{nt} lds",
                f"s_mov_b32 m0, s{sT1}",
                f"s_add_u32 s{sDS}, s{sDS}, 16384",
                f"buffer_load_dwordx4 v{vDV0}, s[{SV}:{SV+3}], s{sPG} offen{nt} lds",
                f"buffer_load_dwordx4 v{vDV1}, s[{SV}:{SV+3}], s{sPG} offen offset:1024{nt} lds",
                f"s_cmp_ge_u32 s{sDS}, {NS*16384}",
                f"s_cselect_b32 s{sT1}, {NS*16384}, 0",
                f"s_sub_u32 s{sDS}, s{sDS}, s{sT1}"]
    stamp(2)
    for t in range(NS - 2):
        for x in next_page(): e(x)
        e("s_nop 2")
        for x in dma(): e(x)
    for x in next_page(): e(x)

    def sync(tag):
        if o["exactwait"]:
            e(f"""
            s_cmp_eq_u32 s{sXW}, 0
            s_cbranch_scc1 L_w0_{tag}
            s_sub_u32 s{sXW}, s{sXW}, 1
            s_waitcnt vmcnt({WN+EXTRA})
            s_branch L_w1_{tag}
            L_w0_{tag}:
            s_waitcnt vmcnt({WN})
            L_w1_{tag}:
            """)
        else:
            e(f"s_waitcnt vmcnt({WN})")
        e("s_barrier")
    def kread(ks):
        return f"ds_read_b128 v[{vK+4*ks}:{vK+4*ks+3}], v{vKA+ks}"
    def vread(kk, db, u):
        r = vV + 16 * kk + 4 * db + 2 * u
        return f"ds_read_b64_tr_b16 v[{r}:{r+1}], v{vVA+db} offset:{4096*kk+2048*u}"
    def qk(ks):
        c = "0" if ks == 0 else f"v[{vS}:{vS+15}]"
        return f"v_mfma_f32_32x32x16_bf16 v[{vS}:{vS+15}], v[{vK+4*ks}:{vK+4*ks+3}], a[{4*ks}:{4*ks+3}], {c}"
    def pv(kk, db):
        a = vV + 16 * kk + 4 * db
        return f"v_mfma_f32_32x32x16_bf16 v[{vO+16*db}:{vO+16*db+15}], v[{a}:{a+3}], v[{vP+4*kk}:{vP+4*kk+3}], v[{vO+16*db}:{vO+16*db+15}]"
    EX = lambda i: f"v_exp_f32 v{vX+i}, v{vX+i}"
    AD = lambda i: f"v_add_f32 v{vL}, v{vL}, v{vX+i}"
    CV = lambda m: f"v_cvt_pk_bf16_f32 v{vP+m}, v{vX+2*m}, v{vX+2*m+1}"
    FM = lambda i: f"v_fma_f32 v{vX+i}, v{vS+i}, s{sSC}, -v{vM}"
    def maxops():
        r = [f"v_max3_f32 v{vT}, v{vS}, v{vS+1}, v{vS+2}"]
        for i in range(3, 15, 2):
            r.append(f"v_max3_f32 v{vT}, v{vT}, v{vS+i}, v{vS+i+1}")
        r.append(f"v_max_f32 v{vT}, v{vT}, v{vS+15}")
        return r
    def slot_delta():
        return [f"s_add_u32 s{sRS}, s{sRS}, 1",
                f"s_cmp_eq_u32 s{sRS}, {NS}",
                f"s_cselect_b32 s{sRS}, 0, s{sRS}"]
    def kadv():
        r = [f"s_cmp_eq_u32 s{sRS}, {NS-1}",
             f"s_cselect_b32 s{sDEL}, {(-(NS-1)*16384) & 0xffffffff:#x}, s96"]
        return r + [f"v_add_u32 v{vKA+i}, s{sDEL}, v{vKA+i}" for i in range(8)]
    def vadv():
        r = [f"s_cmp_eq_u32 s{sRS}, 0",
             f"s_cselect_b32 s{sDEL}, {(-(NS-1)*16384) & 0xffffffff:#x}, s96"]
        return r + [f"v_add_u32 v{vVA+i}, s{sDEL}, v{vVA+i}" for i in range(4)]
    def mask_block():
        for r in range(16):
            tok = (r & 3) + 8 * (r >> 2)
            e(f"""
            v_add_u32 v{vT2}, {tok}, v{vTok}
            v_cmp_gt_u32 vcc, s{sREM}, v{vT2}
            s_nop 1
            v_cndmask_b32 v{vS+r}, v{vNI}, v{vS+r}, vcc
            """)
    def fullmax():
        e(f"""
        v_mov_b32 v{vT2}, v{vT}
        s_nop 1
        v_permlane32_swap_b32 v{vT}, v{vT2}
        v_max_f32 v{vT}, v{vT}, v{vT2}
        v_mul_f32 v{vT}, s{sSC}, v{vT}
        """)

    e("L_seg:")
    sync("f")
    if o["stamp"]:
        e(f"s_cmp_lg_u32 s{sI}, 0\ns_cbranch_scc1 L_nost")
        stamp(3)
        e("L_nost:")
    for ks in range(8): e(kread(ks))
    for x in dma(): e(x)
    for i in range(64): e(f"v_mov_b32 v{vO+i}, 0")
    e(f"v_mov_b32 v{vL}, 0")
    for ks in range(8):
        e(f"s_waitcnt lgkmcnt({7-ks})")
        e(qk(ks))
    for x in kadv() + vadv() + slot_delta() + next_page(): e(x)
    e(f"s_cmp_lg_u32 s{sI}, s{sMK}\ns_cbranch_scc1 L_f_nomask")
    mask_block()
    e("L_f_nomask:")
    for x in maxops(): e(x)
    fullmax()
    e(f"v_mov_b32 v{vM}, v{vT}")
    for i in range(16): e(FM(i))
    e(f"""
    s_add_u32 s{sI}, s{sI}, 1
    s_cmp_ge_u32 s{sI}, s{sE}
    s_cbranch_scc1 L_last
    .p2align 3
    L_loop:
    """)
    sync("l")
    if o["compute"]:
        d = dma()
        for ks in range(8): e(kread(ks))
        for x in d[:4]: e(x)
        e(EX(0)); e(EX(1))
        for x in d[4:]: e(x)
        e(EX(2)); e(EX(3)); e(AD(0)); e(AD(1)); e(CV(0))
        vr = [vread(kk, db, u) for kk in range(2) for db in range(4) for u in range(2)]
        mf, fl = [], []
        for ks in range(8):
            nv = min(2 * ks, 8)
            mf.append(f"s_waitcnt lgkmcnt({7-ks+nv})\n" + qk(ks))
        fl.append([vr[0], vr[1], EX(4), AD(2), EX(5), AD(3), CV(1)])
        fl.append([vr[2], vr[3], EX(6), AD(4), EX(7), AD(5), CV(2)])
        fl.append([vr[4], vr[5], EX(8), AD(6), EX(9), AD(7), CV(3)])
        fl.append([vr[6], vr[7], EX(10), AD(8), EX(11), AD(9), CV(4)])
        fl.append([EX(12), AD(10), EX(13), AD(11), CV(5)])
        fl.append([EX(14), AD(12), EX(15), AD(13), CV(6)])
        fl.append([vr[8], vr[9], vr[10], vr[11], AD(14), AD(15), CV(7)])
        fl.append([vr[12], vr[13], vr[14], vr[15]])
        interleave(e, mf, fl)
        ka, va, mx = kadv(), vadv(), maxops()
        e("s_waitcnt lgkmcnt(14)"); e(pv(0, 0))
        for x in ka[:6]: e(x)
        e("s_waitcnt lgkmcnt(12)"); e(pv(0, 1))
        for x in ka[6:]: e(x)
        e(f"s_cmp_eq_u32 s{sI}, s{sMK}\ns_cbranch_scc1 L_mask\nL_mask_ret:")
        e("s_waitcnt lgkmcnt(10)"); e(pv(0, 2))
        for x in mx[:5]: e(x)
        e("s_waitcnt lgkmcnt(8)"); e(pv(0, 3))
        for x in mx[5:]: e(x)
        e(f"v_fma_f32 v{vT2}, v{vT}, s{sSC}, -v{vM}\nv_cmp_lt_f32 vcc, s{sTHR}, v{vT2}")
        e("s_waitcnt lgkmcnt(6)"); e(pv(1, 0))
        e("s_cbranch_vccnz L_newmax\nL_newmax_ret:")
        for i in range(0, 5): e(FM(i))
        e("s_waitcnt lgkmcnt(4)"); e(pv(1, 1))
        for i in range(5, 10): e(FM(i))
        e("s_waitcnt lgkmcnt(2)"); e(pv(1, 2))
        for i in range(10, 16): e(FM(i))
        e("s_waitcnt lgkmcnt(0)"); e(pv(1, 3))
        for x in va + slot_delta() + next_page(): e(x)
        e(f"s_cmp_lg_u32 s{sFL}, 0\ns_cbranch_scc1 L_rescale\nL_rescale_ret:")
    else:
        for x in dma() + next_page(): e(x)
        e("s_nop 4\nL_mask_ret:\nL_newmax_ret:\nL_rescale_ret:")
    e(f"""
    s_add_u32 s{sI}, s{sI}, 1
    s_cmp_lt_u32 s{sI}, s{sE}
    s_cbranch_scc1 L_loop
    L_last:
    """)
    vr = [vread(kk, db, u) for kk in range(2) for db in range(4) for u in range(2)]
    for x in vr[:8]: e(x)
    for i in range(16): e(EX(i))
    for x in vr[8:]: e(x)
    for i in range(16): e(AD(i))
    for m in range(8): e(CV(m))
    e("s_waitcnt lgkmcnt(0)")
    for kk in range(2):
        for db in range(4): e(pv(kk, db))
    stamp(4)
    e(f"""
    v_mov_b32 v{vT2}, v{vL}
    s_add_u32 s{sT0}, s{sJ}, s{sBB}
    s_mul_i32 s{sT1}, s{sH}, {NSLOT_H}
    v_permlane32_swap_b32 v{vL}, v{vT2}
    s_add_u32 s{sT0}, s{sT0}, s{sT1}
    v_add_f32 v{vML+1}, v{vL}, v{vT2}
    v_mov_b32 v{vML}, v{vM}
    s_lshl_b32 s{sT1}, s{sT0}, 11
    s_lshl_b32 s{sT0}, s{sT0}, 15
    buffer_store_dwordx2 v[{vML}:{vML+1}], v{vWM}, s[{SW}:{SW+3}], s{sT1} offen
    s_add_u32 s{sT1}, s{sT0}, 4096
    s_nop 7
    """)
    for q in range(8):
        for n in range(4):
            e(f"v_cvt_pk_bf16_f32 v{vK+4*q+n}, v{vO+8*q+2*n}, v{vO+8*q+2*n+1}")
        e(f"buffer_store_dwordx4 v[{vK+4*q}:{vK+4*q+3}], v{vWO}, s[{SW}:{SW+3}], s{sT0 if q<4 else sT1} offen offset:{1024*(q&3)}")
    e(f"""
    s_cmp_ge_u32 s{sI}, s{sNT}
    s_cbranch_scc1 L_done
    s_cmp_eq_u32 s{sSEG}, 0
    s_cbranch_scc1 L_qready
    s_waitcnt vmcnt(0)
    L_qready:
    s_mov_b32 s{sSEG}, 1
    """)
    for i in range(32): e(f"v_accvgpr_mov_b32 a{i}, a{32+i}")
    seg_params()
    q_load(32, 1)
    e(f"s_mov_b32 s{sXW}, {NS-2}\ns_branch L_seg")
    e("L_mask:")
    mask_block()
    e("s_branch L_mask_ret\nL_newmax:")
    fullmax()
    e(f"""
    v_max_f32 v{vT}, v{vT}, v{vM}
    v_sub_f32 v{vAL}, v{vM}, v{vT}
    v_exp_f32 v{vAL}, v{vAL}
    v_mov_b32 v{vM}, v{vT}
    s_mov_b32 s{sFL}, 1
    v_mul_f32 v{vL}, v{vL}, v{vAL}
    s_branch L_newmax_ret
    L_rescale:
    s_mov_b32 s{sFL}, 0
    s_nop 7
    """)
    for i in range(64): e(f"v_mul_f32 v{vO+i}, v{vO+i}, v{vAL}")
    e("s_branch L_rescale_ret\nL_done:")
    if o["stamp"]:
        e("s_waitcnt vmcnt(0)")
        stamp(5)
        cstamp(7)
        stamp_store(e, 204, sW, 0)
    e("L_end:\ns_endpgm")
    return e.text(), NS * 16384

def combine_kernel(o):
    e = E()
    sH, sB, sG, sD, sT0, sT1, sJ, sJE, sLO, sHI = 4, 5, 6, 7, 8, 9, 10, 11, 12, 13
    sA, sZ = 14, 15
    CH = 6
    vAcc, vM, vL, vOA, vMA, vT, vW, vAL, vOut = 0, 16, 17, 18, 19, 20, 21, 22, 23
    vD, vML = 24, 24 + 8 * CH
    e(f"""
    .globl combine_kernel
    .p2align 8
    .type combine_kernel,@function
    combine_kernel:
    s_cmp_ge_u32 s2, {0 if o["empty"] else 256}
    s_cbranch_scc1 C_end
    s_load_dwordx16 s[16:31], s[0:1], 0
    """)
    def stamp(i):
        if o["stamp"]:
            e(f"s_memrealtime s[92:93]\ns_waitcnt lgkmcnt(0)\nv_writelane_b32 v84, s92, {i}")
    stamp(0)
    e(f"""
    s_and_b32 s{sH}, s2, 7
    s_bfe_u32 s{sB}, s2, 0x30003
    s_lshr_b32 s{sG}, s2, 6
    v_lshrrev_b32 v{vT}, 6, v0
    v_and_b32 v{vW}, 63, v0
    v_readfirstlane_b32 s{sD}, v{vT}
    s_waitcnt lgkmcnt(0)
    s_load_dwordx8 s[{SCL}:{SCL+7}], s[24:25], 0
    """)
    srd(e, SW, 30, 32 << 20); srd(e, SO, 26, Q_BYTES)
    e(f"""
    s_lshl_b32 s{sT0}, s{sG}, 13
    s_lshl_b32 s{sT1}, s{sD}, 11
    s_add_u32 s{sT0}, s{sT0}, s{sT1}
    v_lshlrev_b32 v{vOA}, 4, v{vW}
    v_add_u32 v{vOA}, s{sT0}, v{vOA}
    s_lshl_b32 s{sT0}, s{sG}, 9
    s_add_u32 s{sT0}, s{sT0}, {ML_OFF}
    v_lshlrev_b32 v{vMA}, 3, v{vW}
    v_add_u32 v{vMA}, s{sT0}, v{vMA}
    s_lshl_b32 s{sT0}, s{sB}, 3
    s_add_u32 s{sT0}, s{sT0}, s{sH}
    s_lshl_b32 s{sT0}, s{sT0}, 2
    s_add_u32 s{sT0}, s{sT0}, s{sG}
    s_lshl_b32 s{sT0}, s{sT0}, 13
    s_lshl_b32 s{sT1}, s{sD}, 6
    s_add_u32 s{sT0}, s{sT0}, s{sT1}
    v_and_b32 v{vT}, 31, v{vW}
    v_lshlrev_b32 v{vOut}, 8, v{vT}
    v_lshrrev_b32 v{vT}, 5, v{vW}
    v_lshl_add_u32 v{vOut}, v{vT}, 4, v{vOut}
    v_add_u32 v{vOut}, s{sT0}, v{vOut}
    v_mov_b32 v{vM}, {NEGINF:#x}
    v_mov_b32 v{vL}, 0
    """)
    for i in range(16): e(f"v_mov_b32 v{vAcc+i}, 0")
    e("s_waitcnt lgkmcnt(0)")
    batch_tables(e)
    e(f"s_mov_b32 s{sA}, s{SS}\ns_mov_b32 s{sZ}, s{SS+1}")
    for b in range(1, 8):
        e(f"s_cmp_eq_u32 s{sB}, {b}\ns_cselect_b32 s{sA}, s{SS+b}, s{sA}\ns_cselect_b32 s{sZ}, s{SS+b+1}, s{sZ}")
    e(f"""
    v_mul_u32_u24 v{vT}, s{SS+8}, v{vW}
    v_add_u32 v{vAL}, s{SS+8}, v{vT}
    v_lshrrev_b32 v{vT}, 5, v{vT}
    v_lshrrev_b32 v{vAL}, 5, v{vAL}
    v_max_u32 v{vT}, s{sA}, v{vT}
    v_min_u32 v{vAL}, s{sZ}, v{vAL}
    v_cmp_lt_u32 vcc, v{vT}, v{vAL}
    s_mul_i32 s{sLO}, s{sH}, {NSLOT_H}
    s_add_u32 s{sLO}, s{sLO}, s{sB}
    s_nop 1
    s_mov_b32 s{sJE}, vcc_lo
    C_chunk:
    """)
    for c in range(CH):
        e(f"""
        s_ff1_i32_b32 s{sJ}, s{sJE}
        s_cmp_lg_u32 s{sJE}, 0
        s_cselect_b32 s{96+c}, 0, {NEGINF:#x}
        s_bitset0_b32 s{sJE}, s{sJ}
        s_add_u32 s{sJ}, s{sJ}, s{sLO}
        s_cmp_eq_u32 s{96+c}, 0
        s_cselect_b32 s{sJ}, s{sJ}, 0x8000
        s_lshl_b32 s{sT0}, s{sJ}, 11
        s_lshl_b32 s{sT1}, s{sJ}, 15
        buffer_load_dwordx2 v[{vML+2*c}:{vML+2*c+1}], v{vMA}, s[{SW}:{SW+3}], s{sT0} offen
        buffer_load_dwordx4 v[{vD+8*c}:{vD+8*c+3}], v{vOA}, s[{SW}:{SW+3}], s{sT1} offen
        buffer_load_dwordx4 v[{vD+8*c+4}:{vD+8*c+7}], v{vOA}, s[{SW}:{SW+3}], s{sT1} offen offset:1024
        """)
    for c in range(CH):
        m, l = vML + 2 * c, vML + 2 * c + 1
        e(f"""
        s_waitcnt vmcnt({3*(CH-1-c)})
        v_add_f32 v{m}, s{96+c}, v{m}
        v_max_f32 v{vT}, v{vM}, v{m}
        v_sub_f32 v{vAL}, v{vM}, v{vT}
        v_sub_f32 v{vW}, v{m}, v{vT}
        v_exp_f32 v{vAL}, v{vAL}
        v_exp_f32 v{vW}, v{vW}
        v_mov_b32 v{vM}, v{vT}
        v_mul_f32 v{vL}, v{vL}, v{vAL}
        v_fmac_f32 v{vL}, v{l}, v{vW}
        """)
        for n in range(8):
            r = vD + 8 * c + n
            e(f"""
            v_lshlrev_b32 v{vT}, 16, v{r}
            v_and_b32 v{r}, 0xffff0000, v{r}
            v_mul_f32 v{vAcc+2*n}, v{vAcc+2*n}, v{vAL}
            v_mul_f32 v{vAcc+2*n+1}, v{vAcc+2*n+1}, v{vAL}
            v_fmac_f32 v{vAcc+2*n}, v{vT}, v{vW}
            v_fmac_f32 v{vAcc+2*n+1}, v{r}, v{vW}
            """)
    e(f"""
    s_cmp_lg_u32 s{sJE}, 0
    s_cbranch_scc1 C_chunk
    v_rcp_f32 v{vL}, v{vL}
    s_nop 0
    """)
    for i in range(16): e(f"v_mul_f32 v{vAcc+i}, v{vAcc+i}, v{vL}")
    for n in range(8): e(f"v_cvt_pk_bf16_f32 v{vD+n}, v{vAcc+2*n}, v{vAcc+2*n+1}")
    e("s_nop 1")
    for p in range(2):
        r = vD + 4 * p
        e(f"v_permlane32_swap_b32 v{r}, v{r+2}\nv_permlane32_swap_b32 v{r+1}, v{r+3}")
    for p in range(2):
        r = vD + 4 * p
        e(f"buffer_store_dwordx4 v[{r}:{r+3}], v{vOut}, s[{SO}:{SO+3}], 0 offen offset:{32*p}")
    if o["stamp"]:
        e("s_waitcnt vmcnt(0)")
        stamp(5)
        stamp_store(e, 84, sD, 32768)
    e("C_end:\ns_endpgm")
    return e.text()

def desc(name, nv, acc):
    return f""".p2align 6
.amdhsa_kernel {name}
  .amdhsa_next_free_vgpr {nv}
  .amdhsa_next_free_sgpr 102
  .amdhsa_accum_offset {acc}
  .amdhsa_group_segment_fixed_size 0
  .amdhsa_kernarg_size 64
  .amdhsa_user_sgpr_count 2
  .amdhsa_user_sgpr_kernarg_segment_ptr 1
  .amdhsa_system_sgpr_workgroup_id_x 1
.end_amdhsa_kernel
"""

def build(**kw):
    o = dict(DEF); o.update(kw)
    k1, lds = main_kernel(o)
    k2 = combine_kernel(o)
    s = f"; @launch kernel={NAME}_kernel grid=(256,1,1) block=(256,1,1) lds={lds}\n"
    if not o["single"]:
        s += "; @launch kernel=combine_kernel grid=(256,1,1) block=(256,1,1) lds=0\n"
    s += '.amdgcn_target "amdgcn-amd-amdhsa--gfx950"\n.text\n' + k1 + k2
    s += '.section .rodata,"a"\n' + desc(NAME + "_kernel", 208 + 64, 208) + desc("combine_kernel", 88, 88)
    return s

if __name__ == "__main__":
    kw = {}
    for a in sys.argv[2:]:
        k, v = a.split("="); kw[k] = int(v)
    open(sys.argv[1], "w").write(build(**kw))
```

```python
import sys, struct, math

NAME = "standalone__paged_block_table_kv_pagedattention__sampling"
DEF = dict(NS=9, nt=1, hmap=0, compute=1, stamp=0, exactwait=1, empty=0, single=0)

def f2u(x):
    return struct.unpack("<I", struct.pack("<f", x))[0]

CSCALE = f2u(128 ** -0.5 * math.log2(math.e))
THR = f2u(8.0)
NEGINF = 0xFF800000
OOB = 0x80000000
KV_BYTES = 4100 * 32768
Q_BYTES = 8 * 32 * 32 * 128 * 2
NSLOT_H = 40
ML_OFF = 8 * NSLOT_H * 32768
WS_USED = ML_OFF + 8 * NSLOT_H * 2048
STAMP_OFF = 16 << 20

class E:
    def __init__(self):
        self.l = []
    def __call__(self, s):
        for x in s.strip("\n").split("\n"):
            x = x.strip()
            if x:
                self.l.append(("" if x.endswith(":") else "    ") + x)
    def text(self):
        return "\n".join(self.l) + "\n"

def srd(e, d, p, nbytes):
    e(f"s_mov_b32 s{d}, s{p}\ns_and_b32 s{d+1}, s{p+1}, 0xffff\ns_mov_b32 s{d+2}, {nbytes:#x}\ns_mov_b32 s{d+3}, 0x20000")

SQ, SK, SV, SW, SB, SO = 36, 40, 44, 48, 52, 64
SCL = 56
SC = 68
SS = 76

def batch_tables(e):
    e(f"s_mov_b32 s{SS}, 0")
    for b in range(8):
        e(f"""
        s_min_i32 s{SC+b}, s{SCL+b}, 0x2000
        s_cmp_lt_i32 s{SCL+b}, 1
        s_cselect_b32 s{SC+b}, 0x2000, s{SC+b}
        s_add_u32 s3, s{SC+b}, 31
        s_lshr_b32 s3, s3, 5
        s_add_u32 s{SS+b+1}, s{SS+b}, s3
        """)

def stamp_store(e, v, sw, off):
    e(f"""
    s_lshl_b32 s3, s2, 2
    s_add_u32 s3, s3, s{sw}
    s_lshl_b32 s3, s3, 5
    s_add_u32 s3, s3, {STAMP_OFF + off}
    v_mbcnt_lo_u32_b32 v8, -1, 0
    v_lshlrev_b32 v8, 2, v8
    s_mov_b64 exec, 0xff
    buffer_store_dword v{v}, v8, s[{SW}:{SW+3}], s3 offen
    """)

def interleave(e, mf, fill):
    for m, f in zip(mf, fill):
        e(m)
        for x in f:
            e(x)

def main_kernel(o):
    NS = o["NS"]; nt = " nt" if o["nt"] else ""
    e = E()
    vO, vS, vX, vK, vV, vP = 0, 64, 80, 96, 128, 160
    vKA, vVA = 168, 176
    vDK0, vDK1, vDV0, vDV1 = 180, 181, 182, 183
    vPG, vB, vC, vST, vZ = 184, 185, 186, 187, 188
    vM, vL, vT, vT2, vAL = 189, 190, 192, 193, 194
    vLane, vQA, vWO, vWM, vTok, vNI = 195, 196, 197, 198, 199, 200
    vML = 202
    sH, sJ, sW, sLO, sNT = 4, 5, 6, 7, 8
    sI, sE, sMK, sREM, sSC = 9, 10, 11, 12, 13
    sLD, sDS, sPG, sDEL, sRS = 14, 15, 32, 33, 34
    sFL, sSEG, sBB, sXW, sWB = 35, 85, 86, 87, 88
    sTHR, sT0, sT1 = 89, 90, 91
    WN = 4 * (NS - 3)
    EXTRA = 17

    e(f"""
    .globl {NAME}_kernel
    .p2align 8
    .type {NAME}_kernel,@function
    {NAME}_kernel:
    s_cmp_ge_u32 s2, {0 if o["empty"] else 256}
    s_cbranch_scc1 L_end
    s_load_dwordx16 s[16:31], s[0:1], 0
    """)
    def stamp(i):
        if o["stamp"]:
            e(f"s_memrealtime s[92:93]\ns_waitcnt lgkmcnt(0)\nv_writelane_b32 v204, s92, {i}")
    def cstamp(i):
        if o["stamp"]:
            e(f"s_memtime s[92:93]\ns_waitcnt lgkmcnt(0)\nv_writelane_b32 v204, s92, {i}")
    stamp(0)
    cstamp(6)
    if o["hmap"] == 0:
        e(f"s_and_b32 s{sH}, s2, 7\ns_lshr_b32 s{sJ}, s2, 3")
    else:
        e(f"s_lshr_b32 s{sH}, s2, 5\ns_and_b32 s{sJ}, s2, 31")
    e(f"""
    v_lshrrev_b32 v{vT}, 6, v0
    v_and_b32 v{vLane}, 63, v0
    v_readfirstlane_b32 s{sW}, v{vT}
    s_waitcnt lgkmcnt(0)
    s_load_dwordx8 s[{SCL}:{SCL+7}], s[24:25], 0
    """)
    srd(e, SQ, 16, Q_BYTES); srd(e, SK, 18, KV_BYTES); srd(e, SV, 20, KV_BYTES)
    srd(e, SB, 22, 8 * 512 * 4); srd(e, SW, 30, 32 << 20)
    e(f"""
    v_and_b32 v{vT}, 31, v{vLane}
    v_lshrrev_b32 v{vT2}, 5, v{vLane}
    v_lshlrev_b32 v{vQA}, 8, v{vT}
    v_lshl_add_u32 v{vQA}, v{vT2}, 4, v{vQA}
    v_lshlrev_b32 v{vTok}, 2, v{vT2}
    v_and_b32 v{vAL}, 15, v{vLane}
    v_xor_b32 v{vAL}, v{vAL}, v{vT2}
    v_lshlrev_b32 v{vAL}, 4, v{vAL}
    v_lshl_add_u32 v{vKA}, v{vT}, 8, v{vAL}
    """)
    for ks in range(1, 8):
        e(f"v_xor_b32 v{vKA+ks}, {ks<<5}, v{vKA}")
    e(f"""
    v_bfe_u32 v{vT}, v{vLane}, 2, 2
    v_lshl_add_u32 v{vAL}, v{vT2}, 2, v{vT}
    v_lshlrev_b32 v{vAL}, 8, v{vAL}
    v_lshl_add_u32 v{vAL}, v{vT}, 6, v{vAL}
    v_bfe_u32 v{vT}, v{vLane}, 4, 1
    v_lshl_add_u32 v{vAL}, v{vT}, 5, v{vAL}
    v_and_b32 v{vT}, 3, v{vLane}
    v_lshl_add_u32 v{vAL}, v{vT}, 3, v{vAL}
    v_add_u32 v{vVA}, {8192 + (NS-1)*16384}, v{vAL}
    """)
    for db in range(1, 4):
        e(f"v_xor_b32 v{vVA+db}, {db<<6}, v{vVA}")
    e(f"""
    s_and_b32 s{sT0}, s{sW}, 1
    s_lshl_b32 s{sT0}, s{sT0}, 3
    s_lshl_b32 s{sT1}, s{sH}, 8
    v_lshrrev_b32 v{vT}, 4, v{vLane}
    v_add_u32 v{vT2}, s{sT0}, v{vT}
    v_and_b32 v{vAL}, 15, v{vLane}
    v_xor_b32 v{vM}, v{vAL}, v{vT2}
    v_lshlrev_b32 v{vM}, 4, v{vM}
    v_lshl_add_u32 v{vM}, v{vT2}, 11, v{vM}
    v_add_u32 v{vDK0}, s{sT1}, v{vM}
    v_xor_b32 v{vDK1}, 64, v{vDK0}
    v_add_u32 v{vDK1}, {8192-1024}, v{vDK1}
    v_lshlrev_b32 v{vT}, 2, v{vT}
    v_xor_b32 v{vM}, v{vAL}, v{vT}
    v_lshlrev_b32 v{vM}, 4, v{vM}
    v_lshl_add_u32 v{vM}, v{vT2}, 11, v{vM}
    v_add_u32 v{vDV0}, s{sT1}, v{vM}
    v_add_u32 v{vDV1}, {8192-1024}, v{vDV0}
    s_lshl_b32 s{sWB}, s{sW}, 11
    s_lshl_b32 s{sT0}, s{sW}, 13
    v_lshlrev_b32 v{vWO}, 4, v{vLane}
    v_add_u32 v{vWO}, s{sT0}, v{vWO}
    s_lshl_b32 s{sT0}, s{sW}, 9
    s_add_u32 s{sT0}, s{sT0}, {ML_OFF}
    v_lshlrev_b32 v{vWM}, 3, v{vLane}
    v_add_u32 v{vWM}, s{sT0}, v{vWM}
    v_mov_b32 v{vNI}, {NEGINF:#x}
    s_mov_b32 s{sTHR}, {THR:#x}
    s_mov_b32 s96, 16384
    s_waitcnt lgkmcnt(0)
    """)
    stamp(1)
    batch_tables(e)
    e(f"""
    s_mul_i32 s{sLO}, s{sJ}, s{SS+8}
    s_add_u32 s{sNT}, s{sLO}, s{SS+8}
    s_lshr_b32 s{sLO}, s{sLO}, 5
    s_lshr_b32 s{sNT}, s{sNT}, 5
    s_sub_u32 s{sNT}, s{sNT}, s{sLO}
    s_cmp_eq_u32 s{sNT}, 0
    s_cbranch_scc1 L_end
    v_add_u32 v{vT}, s{sLO}, v{vLane}
    v_mov_b32 v{vB}, 0
    v_mov_b32 v{vC}, s{SC}
    v_mov_b32 v{vST}, 0
    v_mov_b32 v{vZ}, s{SCL}
    """)
    for b in range(1, 8):
        e(f"""
        v_cmp_le_u32 vcc, s{SS+b}, v{vT}
        v_mov_b32 v{vT2}, s{SC+b}
        v_mov_b32 v{vAL}, s{SS+b}
        v_mov_b32 v{vM}, s{SCL+b}
        v_cndmask_b32 v{vC}, v{vC}, v{vT2}, vcc
        v_cndmask_b32 v{vST}, v{vST}, v{vAL}, vcc
        v_cndmask_b32 v{vZ}, v{vZ}, v{vM}, vcc
        v_addc_co_u32 v{vB}, vcc, 0, v{vB}, vcc
        """)
    e(f"""
    s_lshr_b32 s{sT0}, s{sW}, 1
    v_sub_u32 v{vT}, v{vT}, v{vST}
    v_lshl_add_u32 v{vT}, v{vT}, 1, s{sT0}
    v_lshl_add_u32 v{vT2}, v{vB}, 9, v{vT}
    v_lshlrev_b32 v{vT2}, 2, v{vT2}
    buffer_load_dword v{vPG}, v{vT2}, s[{SB}:{SB+3}], 0 offen
    v_lshlrev_b32 v{vT}, 4, v{vT}
    v_cmp_lt_u32 s[92+2:92+3], v{vT}, v{vC}
    v_cmp_gt_u32 vcc, s{sNT}, v{vLane}
    v_mov_b32 v{vM}, {CSCALE:#x}
    s_and_b64 s[94:95], s[94:95], vcc
    v_cmp_lt_i32 vcc, 0, v{vZ}
    s_mov_b32 s{sI}, 0
    s_mov_b32 s{sSEG}, 0
    v_cndmask_b32 v{vZ}, 0, v{vM}, vcc
    """.replace("s[92+2:92+3]", "s[94:95]"))

    def seg_params():
        e(f"""
        v_readlane_b32 s{sBB}, v{vB}, s{sI}
        v_readlane_b32 s{sREM}, v{vC}, s{sI}
        v_readlane_b32 s{sMK}, v{vST}, s{sI}
        v_readlane_b32 s{sSC}, v{vZ}, s{sI}
        s_add_u32 s{sT0}, s{sREM}, 31
        s_lshr_b32 s{sT0}, s{sT0}, 5
        s_add_u32 s{sMK}, s{sMK}, s{sT0}
        s_sub_u32 s{sMK}, s{sMK}, s{sLO}
        s_min_u32 s{sE}, s{sMK}, s{sNT}
        s_sub_u32 s{sMK}, s{sMK}, 1
        s_sub_u32 s{sT0}, s{sT0}, 1
        s_lshl_b32 s{sT0}, s{sT0}, 5
        s_sub_u32 s{sREM}, s{sREM}, s{sT0}
        """)
    def q_load(dst, boff):
        e(f"""
        s_add_u32 s{sT0}, s{sBB}, {boff}
        s_lshl_b32 s{sT0}, s{sT0}, 3
        s_add_u32 s{sT0}, s{sT0}, s{sH}
        s_lshl_b32 s{sT0}, s{sT0}, 2
        s_add_u32 s{sT0}, s{sT0}, s{sW}
        s_lshl_b32 s{sT0}, s{sT0}, 13
        """)
        if boff:
            e(f"s_cmp_lt_u32 s{sE}, s{sNT}\ns_cselect_b32 s{sT0}, s{sT0}, {OOB:#x}")
        for ks in range(8):
            e(f"buffer_load_dwordx4 a[{dst+4*ks}:{dst+4*ks+3}], v{vQA}, s[{SQ}:{SQ+3}], s{sT0} offen offset:{32*ks}")
    e("s_nop 1")
    seg_params()
    q_load(0, 0)
    q_load(32, 1)
    e(f"""
    s_waitcnt vmcnt(16)
    v_lshlrev_b32 v{vPG}, 15, v{vPG}
    v_mov_b32 v{vT}, {OOB:#x}
    v_cndmask_b32 v{vPG}, v{vT}, v{vPG}, s[94:95]
    s_mov_b32 s{sLD}, 0
    s_mov_b32 s{sDS}, s{sWB}
    s_mov_b32 s{sRS}, 0
    s_mov_b32 s{sXW}, 0
    s_mov_b32 s{sFL}, 0
    """)
    def next_page():
        return [f"v_readlane_b32 s{sPG}, v{vPG}, s{sLD}",
                f"s_cmp_lt_u32 s{sLD}, 64",
                f"s_cselect_b32 s{sPG}, s{sPG}, {OOB:#x}",
                f"s_add_u32 s{sLD}, s{sLD}, 1"]
    def dma():
        return [f"s_mov_b32 m0, s{sDS}",
                f"s_add_u32 s{sT1}, s{sDS}, 8192",
                f"buffer_load_dwordx4 v{vDK0}, s[{SK}:{SK+3}], s{sPG} offen{nt} lds",
                f"buffer_load_dwordx4 v{vDK1}, s[{SK}:{SK+3}], s{sPG} offen offset:1024{nt} lds",
                f"s_mov_b32 m0, s{sT1}",
                f"s_add_u32 s{sDS}, s{sDS}, 16384",
                f"buffer_load_dwordx4 v{vDV0}, s[{SV}:{SV+3}], s{sPG} offen{nt} lds",
                f"buffer_load_dwordx4 v{vDV1}, s[{SV}:{SV+3}], s{sPG} offen offset:1024{nt} lds",
                f"s_cmp_ge_u32 s{sDS}, {NS*16384}",
                f"s_cselect_b32 s{sT1}, {NS*16384}, 0",
                f"s_sub_u32 s{sDS}, s{sDS}, s{sT1}"]
    stamp(2)
    for t in range(NS - 2):
        for x in next_page(): e(x)
        e("s_nop 2")
        for x in dma(): e(x)
    for x in next_page(): e(x)

    def sync(tag):
        if o["exactwait"]:
            e(f"""
            s_cmp_eq_u32 s{sXW}, 0
            s_cbranch_scc1 L_w0_{tag}
            s_sub_u32 s{sXW}, s{sXW}, 1
            s_waitcnt vmcnt({WN+EXTRA})
            s_branch L_w1_{tag}
            L_w0_{tag}:
            s_waitcnt vmcnt({WN})
            L_w1_{tag}:
            """)
        else:
            e(f"s_waitcnt vmcnt({WN})")
        e("s_barrier")
    def kread(ks):
        return f"ds_read_b128 v[{vK+4*ks}:{vK+4*ks+3}], v{vKA+ks}"
    def vread(kk, db, u):
        r = vV + 16 * kk + 4 * db + 2 * u
        return f"ds_read_b64_tr_b16 v[{r}:{r+1}], v{vVA+db} offset:{4096*kk+2048*u}"
    def qk(ks):
        c = "0" if ks == 0 else f"v[{vS}:{vS+15}]"
        return f"v_mfma_f32_32x32x16_bf16 v[{vS}:{vS+15}], v[{vK+4*ks}:{vK+4*ks+3}], a[{4*ks}:{4*ks+3}], {c}"
    def pv(kk, db):
        a = vV + 16 * kk + 4 * db
        return f"v_mfma_f32_32x32x16_bf16 v[{vO+16*db}:{vO+16*db+15}], v[{a}:{a+3}], v[{vP+4*kk}:{vP+4*kk+3}], v[{vO+16*db}:{vO+16*db+15}]"
    EX = lambda i: f"v_exp_f32 v{vX+i}, v{vX+i}"
    AD = lambda i: f"v_add_f32 v{vL}, v{vL}, v{vX+i}"
    CV = lambda m: f"v_cvt_pk_bf16_f32 v{vP+m}, v{vX+2*m}, v{vX+2*m+1}"
    FM = lambda i: f"v_fma_f32 v{vX+i}, v{vS+i}, s{sSC}, -v{vM}"
    def maxops():
        r = [f"v_max3_f32 v{vT}, v{vS}, v{vS+1}, v{vS+2}"]
        for i in range(3, 15, 2):
            r.append(f"v_max3_f32 v{vT}, v{vT}, v{vS+i}, v{vS+i+1}")
        r.append(f"v_max_f32 v{vT}, v{vT}, v{vS+15}")
        return r
    def slot_delta():
        return [f"s_add_u32 s{sRS}, s{sRS}, 1",
                f"s_cmp_eq_u32 s{sRS}, {NS}",
                f"s_cselect_b32 s{sRS}, 0, s{sRS}"]
    def kadv():
        r = [f"s_cmp_eq_u32 s{sRS}, {NS-1}",
             f"s_cselect_b32 s{sDEL}, {(-(NS-1)*16384) & 0xffffffff:#x}, s96"]
        return r + [f"v_add_u32 v{vKA+i}, s{sDEL}, v{vKA+i}" for i in range(8)]
    def vadv():
        r = [f"s_cmp_eq_u32 s{sRS}, 0",
             f"s_cselect_b32 s{sDEL}, {(-(NS-1)*16384) & 0xffffffff:#x}, s96"]
        return r + [f"v_add_u32 v{vVA+i}, s{sDEL}, v{vVA+i}" for i in range(4)]
    def mask_block():
        for r in range(16):
            tok = (r & 3) + 8 * (r >> 2)
            e(f"""
            v_add_u32 v{vT2}, {tok}, v{vTok}
            v_cmp_gt_u32 vcc, s{sREM}, v{vT2}
            s_nop 1
            v_cndmask_b32 v{vS+r}, v{vNI}, v{vS+r}, vcc
            """)
    def fullmax():
        e(f"""
        v_mov_b32 v{vT2}, v{vT}
        s_nop 1
        v_permlane32_swap_b32 v{vT}, v{vT2}
        v_max_f32 v{vT}, v{vT}, v{vT2}
        v_mul_f32 v{vT}, s{sSC}, v{vT}
        """)

    e("L_seg:")
    sync("f")
    if o["stamp"]:
        e(f"s_cmp_lg_u32 s{sI}, 0\ns_cbranch_scc1 L_nost")
        stamp(3)
        e("L_nost:")
    for ks in range(8): e(kread(ks))
    for x in dma(): e(x)
    for i in range(64): e(f"v_mov_b32 v{vO+i}, 0")
    e(f"v_mov_b32 v{vL}, 0")
    for ks in range(8):
        e(f"s_waitcnt lgkmcnt({7-ks})")
        e(qk(ks))
    for x in kadv() + vadv() + slot_delta() + next_page(): e(x)
    e(f"s_cmp_lg_u32 s{sI}, s{sMK}\ns_cbranch_scc1 L_f_nomask")
    mask_block()
    e("L_f_nomask:")
    for x in maxops(): e(x)
    fullmax()
    e(f"v_mov_b32 v{vM}, v{vT}")
    for i in range(16): e(FM(i))
    e(f"""
    s_add_u32 s{sI}, s{sI}, 1
    s_cmp_ge_u32 s{sI}, s{sE}
    s_cbranch_scc1 L_last
    .p2align 3
    L_loop:
    """)
    sync("l")
    if o["stamp"] == 2:
        e(f"s_memrealtime s[92:93]\ns_memtime s[94:95]\ns_mov_b32 m0, s{sI}\ns_waitcnt lgkmcnt(0)\nv_writelane_b32 v205, s92, m0\nv_writelane_b32 v206, s94, m0")
    if o["compute"]:
        d = dma()
        for ks in range(8): e(kread(ks))
        for x in d[:4]: e(x)
        e(EX(0)); e(EX(1))
        for x in d[4:]: e(x)
        e(EX(2)); e(EX(3)); e(AD(0)); e(AD(1)); e(CV(0))
        vr = [vread(kk, db, u) for kk in range(2) for db in range(4) for u in range(2)]
        mf, fl = [], []
        for ks in range(8):
            nv = min(2 * ks, 8)
            mf.append(f"s_waitcnt lgkmcnt({7-ks+nv})\n" + qk(ks))
        fl.append([vr[0], vr[1], EX(4), AD(2), EX(5), AD(3), CV(1)])
        fl.append([vr[2], vr[3], EX(6), AD(4), EX(7), AD(5), CV(2)])
        fl.append([vr[4], vr[5], EX(8), AD(6), EX(9), AD(7), CV(3)])
        fl.append([vr[6], vr[7], EX(10), AD(8), EX(11), AD(9), CV(4)])
        fl.append([EX(12), AD(10), EX(13), AD(11), CV(5)])
        fl.append([EX(14), AD(12), EX(15), AD(13), CV(6)])
        fl.append([vr[8], vr[9], vr[10], vr[11], AD(14), AD(15), CV(7)])
        fl.append([vr[12], vr[13], vr[14], vr[15]])
        interleave(e, mf, fl)
        ka, va, mx = kadv(), vadv(), maxops()
        e("s_waitcnt lgkmcnt(14)"); e(pv(0, 0))
        for x in ka[:6]: e(x)
        e("s_waitcnt lgkmcnt(12)"); e(pv(0, 1))
        for x in ka[6:]: e(x)
        e(f"s_cmp_eq_u32 s{sI}, s{sMK}\ns_cbranch_scc1 L_mask\nL_mask_ret:")
        e("s_waitcnt lgkmcnt(10)"); e(pv(0, 2))
        for x in mx[:5]: e(x)
        e("s_waitcnt lgkmcnt(8)"); e(pv(0, 3))
        for x in mx[5:]: e(x)
        e(f"v_fma_f32 v{vT2}, v{vT}, s{sSC}, -v{vM}\nv_cmp_lt_f32 vcc, s{sTHR}, v{vT2}")
        e("s_waitcnt lgkmcnt(6)"); e(pv(1, 0))
        e("s_cbranch_vccnz L_newmax\nL_newmax_ret:")
        for i in range(0, 5): e(FM(i))
        e("s_waitcnt lgkmcnt(4)"); e(pv(1, 1))
        for i in range(5, 10): e(FM(i))
        e("s_waitcnt lgkmcnt(2)"); e(pv(1, 2))
        for i in range(10, 16): e(FM(i))
        e("s_waitcnt lgkmcnt(0)"); e(pv(1, 3))
        for x in va + slot_delta() + next_page(): e(x)
        e(f"s_cmp_lg_u32 s{sFL}, 0\ns_cbranch_scc1 L_rescale\nL_rescale_ret:")
    else:
        for x in dma() + next_page(): e(x)
        e("s_nop 4\nL_mask_ret:\nL_newmax_ret:\nL_rescale_ret:")
    e(f"""
    s_add_u32 s{sI}, s{sI}, 1
    s_cmp_lt_u32 s{sI}, s{sE}
    s_cbranch_scc1 L_loop
    L_last:
    """)
    vr = [vread(kk, db, u) for kk in range(2) for db in range(4) for u in range(2)]
    for x in vr[:8]: e(x)
    for i in range(16): e(EX(i))
    for x in vr[8:]: e(x)
    for i in range(16): e(AD(i))
    for m in range(8): e(CV(m))
    e("s_waitcnt lgkmcnt(0)")
    for kk in range(2):
        for db in range(4): e(pv(kk, db))
    stamp(4)
    e(f"""
    v_mov_b32 v{vT2}, v{vL}
    s_add_u32 s{sT0}, s{sJ}, s{sBB}
    s_mul_i32 s{sT1}, s{sH}, {NSLOT_H}
    v_permlane32_swap_b32 v{vL}, v{vT2}
    s_add_u32 s{sT0}, s{sT0}, s{sT1}
    v_add_f32 v{vML+1}, v{vL}, v{vT2}
    v_mov_b32 v{vML}, v{vM}
    s_lshl_b32 s{sT1}, s{sT0}, 11
    s_lshl_b32 s{sT0}, s{sT0}, 15
    buffer_store_dwordx2 v[{vML}:{vML+1}], v{vWM}, s[{SW}:{SW+3}], s{sT1} offen
    s_add_u32 s{sT1}, s{sT0}, 4096
    s_nop 7
    """)
    for q in range(8):
        for n in range(4):
            e(f"v_cvt_pk_bf16_f32 v{vK+4*q+n}, v{vO+8*q+2*n}, v{vO+8*q+2*n+1}")
        e(f"buffer_store_dwordx4 v[{vK+4*q}:{vK+4*q+3}], v{vWO}, s[{SW}:{SW+3}], s{sT0 if q<4 else sT1} offen offset:{1024*(q&3)}")
    e(f"""
    s_cmp_ge_u32 s{sI}, s{sNT}
    s_cbranch_scc1 L_done
    s_cmp_eq_u32 s{sSEG}, 0
    s_cbranch_scc1 L_qready
    s_waitcnt vmcnt(0)
    L_qready:
    s_mov_b32 s{sSEG}, 1
    """)
    for i in range(32): e(f"v_accvgpr_mov_b32 a{i}, a{32+i}")
    seg_params()
    q_load(32, 1)
    e(f"s_mov_b32 s{sXW}, {NS-2}\ns_branch L_seg")
    e("L_mask:")
    mask_block()
    e("s_branch L_mask_ret\nL_newmax:")
    fullmax()
    e(f"""
    v_max_f32 v{vT}, v{vT}, v{vM}
    v_sub_f32 v{vAL}, v{vM}, v{vT}
    v_exp_f32 v{vAL}, v{vAL}
    v_mov_b32 v{vM}, v{vT}
    s_mov_b32 s{sFL}, 1
    v_mul_f32 v{vL}, v{vL}, v{vAL}
    s_branch L_newmax_ret
    L_rescale:
    s_mov_b32 s{sFL}, 0
    s_nop 7
    """)
    for i in range(64): e(f"v_mul_f32 v{vO+i}, v{vO+i}, v{vAL}")
    e("s_branch L_rescale_ret\nL_done:")
    if o["stamp"]:
        e("s_waitcnt vmcnt(0)")
        stamp(5)
        cstamp(7)
        stamp_store(e, 204, sW, 0)
        if o["stamp"] == 2:
            e(f"""
            s_mov_b64 exec, -1
            s_lshl_b32 s3, s2, 2
            s_add_u32 s3, s3, s{sW}
            s_lshl_b32 s3, s3, 9
            s_add_u32 s3, s3, {STAMP_OFF + (1 << 20)}
            v_lshlrev_b32 v8, 2, v{vLane}
            buffer_store_dword v205, v8, s[{SW}:{SW+3}], s3 offen
            buffer_store_dword v206, v8, s[{SW}:{SW+3}], s3 offen offset:256
            """)
    e("L_end:\ns_endpgm")
    return e.text(), NS * 16384

def combine_kernel(o):
    e = E()
    sH, sB, sG, sD, sT0, sT1, sJ, sJE, sLO, sHI = 4, 5, 6, 7, 8, 9, 10, 11, 12, 13
    sA, sZ = 14, 15
    CH = 6
    vAcc, vM, vL, vOA, vMA, vT, vW, vAL, vOut = 0, 16, 17, 18, 19, 20, 21, 22, 23
    vD, vML = 24, 24 + 8 * CH
    e(f"""
    .globl combine_kernel
    .p2align 8
    .type combine_kernel,@function
    combine_kernel:
    s_cmp_ge_u32 s2, {0 if o["empty"] else 256}
    s_cbranch_scc1 C_end
    s_load_dwordx16 s[16:31], s[0:1], 0
    """)
    def stamp(i):
        if o["stamp"]:
            e(f"s_memrealtime s[92:93]\ns_waitcnt lgkmcnt(0)\nv_writelane_b32 v84, s92, {i}")
    stamp(0)
    e(f"""
    s_and_b32 s{sH}, s2, 7
    s_bfe_u32 s{sB}, s2, 0x30003
    s_lshr_b32 s{sG}, s2, 6
    v_lshrrev_b32 v{vT}, 6, v0
    v_and_b32 v{vW}, 63, v0
    v_readfirstlane_b32 s{sD}, v{vT}
    s_waitcnt lgkmcnt(0)
    s_load_dwordx8 s[{SCL}:{SCL+7}], s[24:25], 0
    """)
    srd(e, SW, 30, 32 << 20); srd(e, SO, 26, Q_BYTES)
    e(f"""
    s_lshl_b32 s{sT0}, s{sG}, 13
    s_lshl_b32 s{sT1}, s{sD}, 11
    s_add_u32 s{sT0}, s{sT0}, s{sT1}
    v_lshlrev_b32 v{vOA}, 4, v{vW}
    v_add_u32 v{vOA}, s{sT0}, v{vOA}
    s_lshl_b32 s{sT0}, s{sG}, 9
    s_add_u32 s{sT0}, s{sT0}, {ML_OFF}
    v_lshlrev_b32 v{vMA}, 3, v{vW}
    v_add_u32 v{vMA}, s{sT0}, v{vMA}
    s_lshl_b32 s{sT0}, s{sB}, 3
    s_add_u32 s{sT0}, s{sT0}, s{sH}
    s_lshl_b32 s{sT0}, s{sT0}, 2
    s_add_u32 s{sT0}, s{sT0}, s{sG}
    s_lshl_b32 s{sT0}, s{sT0}, 13
    s_lshl_b32 s{sT1}, s{sD}, 6
    s_add_u32 s{sT0}, s{sT0}, s{sT1}
    v_and_b32 v{vT}, 31, v{vW}
    v_lshlrev_b32 v{vOut}, 8, v{vT}
    v_lshrrev_b32 v{vT}, 5, v{vW}
    v_lshl_add_u32 v{vOut}, v{vT}, 4, v{vOut}
    v_add_u32 v{vOut}, s{sT0}, v{vOut}
    v_mov_b32 v{vM}, {NEGINF:#x}
    v_mov_b32 v{vL}, 0
    """)
    for i in range(16): e(f"v_mov_b32 v{vAcc+i}, 0")
    e("s_waitcnt lgkmcnt(0)")
    batch_tables(e)
    e(f"s_mov_b32 s{sA}, s{SS}\ns_mov_b32 s{sZ}, s{SS+1}")
    for b in range(1, 8):
        e(f"s_cmp_eq_u32 s{sB}, {b}\ns_cselect_b32 s{sA}, s{SS+b}, s{sA}\ns_cselect_b32 s{sZ}, s{SS+b+1}, s{sZ}")
    P = o.get("pad", 0)
    e(f"""
    s_add_u32 s{sT0}, s{SS+8}, {7*P}
    v_mul_u32_u24 v{vT}, s{sT0}, v{vW}
    v_add_u32 v{vAL}, s{sT0}, v{vT}
    v_lshrrev_b32 v{vT}, 5, v{vT}
    v_lshrrev_b32 v{vAL}, 5, v{vAL}
    """)
    if P:
        for b in range(1, 8):
            for r in (vT, vAL):
                e(f"v_subrev_u32 v{vD}, s{SS+b}, v{r}\nv_med3_i32 v{vD}, v{vD}, 0, {P}\nv_sub_u32 v{r}, v{r}, v{vD}")
    e(f"""
    v_max_u32 v{vT}, s{sA}, v{vT}
    v_min_u32 v{vAL}, s{sZ}, v{vAL}
    v_cmp_lt_u32 vcc, v{vT}, v{vAL}
    s_mul_i32 s{sLO}, s{sH}, {NSLOT_H}
    s_add_u32 s{sLO}, s{sLO}, s{sB}
    s_nop 1
    s_mov_b32 s{sJE}, vcc_lo
    C_chunk:
    """)
    for c in range(CH):
        e(f"""
        s_ff1_i32_b32 s{sJ}, s{sJE}
        s_cmp_lg_u32 s{sJE}, 0
        s_cselect_b32 s{96+c}, 0, {NEGINF:#x}
        s_bitset0_b32 s{sJE}, s{sJ}
        s_add_u32 s{sJ}, s{sJ}, s{sLO}
        s_cmp_eq_u32 s{96+c}, 0
        s_cselect_b32 s{sJ}, s{sJ}, 0x8000
        s_lshl_b32 s{sT0}, s{sJ}, 11
        s_lshl_b32 s{sT1}, s{sJ}, 15
        buffer_load_dwordx2 v[{vML+2*c}:{vML+2*c+1}], v{vMA}, s[{SW}:{SW+3}], s{sT0} offen
        buffer_load_dwordx4 v[{vD+8*c}:{vD+8*c+3}], v{vOA}, s[{SW}:{SW+3}], s{sT1} offen
        buffer_load_dwordx4 v[{vD+8*c+4}:{vD+8*c+7}], v{vOA}, s[{SW}:{SW+3}], s{sT1} offen offset:1024
        """)
    for c in range(CH):
        m, l = vML + 2 * c, vML + 2 * c + 1
        e(f"""
        s_waitcnt vmcnt({3*(CH-1-c)})
        v_add_f32 v{m}, s{96+c}, v{m}
        v_max_f32 v{vT}, v{vM}, v{m}
        v_sub_f32 v{vAL}, v{vM}, v{vT}
        v_sub_f32 v{vW}, v{m}, v{vT}
        v_exp_f32 v{vAL}, v{vAL}
        v_exp_f32 v{vW}, v{vW}
        v_mov_b32 v{vM}, v{vT}
        v_mul_f32 v{vL}, v{vL}, v{vAL}
        v_fmac_f32 v{vL}, v{l}, v{vW}
        """)
        for n in range(8):
            r = vD + 8 * c + n
            e(f"""
            v_lshlrev_b32 v{vT}, 16, v{r}
            v_and_b32 v{r}, 0xffff0000, v{r}
            v_mul_f32 v{vAcc+2*n}, v{vAcc+2*n}, v{vAL}
            v_mul_f32 v{vAcc+2*n+1}, v{vAcc+2*n+1}, v{vAL}
            v_fmac_f32 v{vAcc+2*n}, v{vT}, v{vW}
            v_fmac_f32 v{vAcc+2*n+1}, v{r}, v{vW}
            """)
    e(f"""
    s_cmp_lg_u32 s{sJE}, 0
    s_cbranch_scc1 C_chunk
    v_rcp_f32 v{vL}, v{vL}
    s_nop 0
    """)
    for i in range(16): e(f"v_mul_f32 v{vAcc+i}, v{vAcc+i}, v{vL}")
    for n in range(8): e(f"v_cvt_pk_bf16_f32 v{vD+n}, v{vAcc+2*n}, v{vAcc+2*n+1}")
    e("s_nop 1")
    for p in range(2):
        r = vD + 4 * p
        e(f"v_permlane32_swap_b32 v{r}, v{r+2}\nv_permlane32_swap_b32 v{r+1}, v{r+3}")
    for p in range(2):
        r = vD + 4 * p
        e(f"buffer_store_dwordx4 v[{r}:{r+3}], v{vOut}, s[{SO}:{SO+3}], 0 offen offset:{32*p}")
    if o["stamp"]:
        e("s_waitcnt vmcnt(0)")
        stamp(5)
        stamp_store(e, 84, sD, 32768)
    e("C_end:\ns_endpgm")
    return e.text()

def desc(name, nv, acc):
    return f""".p2align 6
.amdhsa_kernel {name}
  .amdhsa_next_free_vgpr {nv}
  .amdhsa_next_free_sgpr 102
  .amdhsa_accum_offset {acc}
  .amdhsa_group_segment_fixed_size 0
  .amdhsa_kernarg_size 64
  .amdhsa_user_sgpr_count 2
  .amdhsa_user_sgpr_kernarg_segment_ptr 1
  .amdhsa_system_sgpr_workgroup_id_x 1
.end_amdhsa_kernel
"""

def build(**kw):
    o = dict(DEF); o.update(kw)
    k1, lds = main_kernel(o)
    k2 = combine_kernel(o)
    s = f"; @launch kernel={NAME}_kernel grid=(256,1,1) block=(256,1,1) lds={lds}\n"
    if not o["single"]:
        s += "; @launch kernel=combine_kernel grid=(256,1,1) block=(256,1,1) lds=0\n"
    s += '.amdgcn_target "amdgcn-amd-amdhsa--gfx950"\n.text\n' + k1 + k2
    s += '.section .rodata,"a"\n' + desc(NAME + "_kernel", 208 + 64, 208) + desc("combine_kernel", 88, 88)
    return s

if __name__ == "__main__":
    kw = {}
    for a in sys.argv[2:]:
        k, v = a.split("="); kw[k] = int(v)
    open(sys.argv[1], "w").write(build(**kw))
```

```python
import sys, struct, math

NAME = "standalone__paged_block_table_kv_pagedattention__sampling"
DEF = dict(NS=9, nt=1, hmap=0, compute=1, stamp=0, exactwait=1, empty=0, single=0)

def f2u(x):
    return struct.unpack("<I", struct.pack("<f", x))[0]

CSCALE = f2u(128 ** -0.5 * math.log2(math.e))
THR = f2u(8.0)
NEGINF = 0xFF800000
OOB = 0x80000000
KV_BYTES = 4100 * 32768
Q_BYTES = 8 * 32 * 32 * 128 * 2
NSLOT_H = 44
ML_OFF = 8 * NSLOT_H * 32768
WS_USED = ML_OFF + 8 * NSLOT_H * 2048
STAMP_OFF = 16 << 20

class E:
    def __init__(self):
        self.l = []
    def __call__(self, s):
        for x in s.strip("\n").split("\n"):
            x = x.strip()
            if x:
                self.l.append(("" if x.endswith(":") else "    ") + x)
    def text(self):
        return "\n".join(self.l) + "\n"

def srd(e, d, p, nbytes):
    e(f"s_mov_b32 s{d}, s{p}\ns_and_b32 s{d+1}, s{p+1}, 0xffff\ns_mov_b32 s{d+2}, {nbytes:#x}\ns_mov_b32 s{d+3}, 0x20000")

SQ, SK, SV, SW, SB, SO = 36, 40, 44, 48, 52, 64
SCL = 56
SC = 68
SS = 76

def batch_tables(e):
    e(f"s_mov_b32 s{SS}, 0")
    for b in range(8):
        e(f"""
        s_min_i32 s{SC+b}, s{SCL+b}, 0x2000
        s_cmp_lt_i32 s{SCL+b}, 1
        s_cselect_b32 s{SC+b}, 0x2000, s{SC+b}
        s_add_u32 s3, s{SC+b}, 31
        s_lshr_b32 s3, s3, 5
        s_add_u32 s{SS+b+1}, s{SS+b}, s3
        """)

def counts(o):
    c = str(o.get("cnt") or "32" * 8)
    r = [int(c[2*i:2*i+2]) for i in range(8)]
    assert sum(r) == 256
    return r

def magic_of_class(e, o, sC, sM):
    cn = counts(o)
    e(f"s_mov_b32 s{sM}, {-(-(1 << 17) // cn[0])}")
    for c in range(1, 8):
        if cn[c] != cn[0]:
            e(f"s_cmp_eq_u32 s{sC}, {c}\ns_cselect_b32 s{sM}, {-(-(1 << 17) // cn[c])}, s{sM}")

def stamp_store(e, v, sw, off):
    e(f"""
    s_lshl_b32 s3, s2, 2
    s_add_u32 s3, s3, s{sw}
    s_lshl_b32 s3, s3, 5
    s_add_u32 s3, s3, {STAMP_OFF + off}
    v_mbcnt_lo_u32_b32 v8, -1, 0
    v_lshlrev_b32 v8, 2, v8
    s_mov_b64 exec, 0xff
    buffer_store_dword v{v}, v8, s[{SW}:{SW+3}], s3 offen
    """)

def interleave(e, mf, fill):
    for m, f in zip(mf, fill):
        e(m)
        for x in f:
            e(x)

def main_kernel(o):
    NS = o["NS"]; nt = " nt" if o["nt"] else ""
    e = E()
    vO, vS, vX, vK, vV, vP = 0, 64, 80, 96, 128, 160
    vKA, vVA = 168, 176
    vDK0, vDK1, vDV0, vDV1 = 180, 181, 182, 183
    vPG, vB, vC, vST, vZ = 184, 185, 186, 187, 188
    vM, vL, vT, vT2, vAL = 189, 190, 192, 193, 194
    vLane, vQA, vWO, vWM, vTok, vNI = 195, 196, 197, 198, 199, 200
    vML = 202
    sH, sJ, sW, sLO, sNT = 4, 5, 6, 7, 8
    sI, sE, sMK, sREM, sSC = 9, 10, 11, 12, 13
    sLD, sDS, sPG, sDEL, sRS = 14, 15, 32, 33, 34
    sFL, sSEG, sBB, sXW, sWB = 35, 85, 86, 87, 88
    sTHR, sT0, sT1 = 89, 90, 91
    WN = 4 * (NS - 3)
    EXTRA = 17

    e(f"""
    .globl {NAME}_kernel
    .p2align 8
    .type {NAME}_kernel,@function
    {NAME}_kernel:
    s_cmp_ge_u32 s2, {0 if o["empty"] else 256}
    s_cbranch_scc1 L_end
    s_load_dwordx16 s[16:31], s[0:1], 0
    """)
    def stamp(i):
        if o["stamp"]:
            e(f"s_memrealtime s[92:93]\ns_waitcnt lgkmcnt(0)\nv_writelane_b32 v204, s92, {i}")
    def cstamp(i):
        if o["stamp"]:
            e(f"s_memtime s[92:93]\ns_waitcnt lgkmcnt(0)\nv_writelane_b32 v204, s92, {i}")
    stamp(0)
    cstamp(6)
    if o["hmap"] == 0:
        e(f"s_and_b32 s{sH}, s2, 7\ns_lshr_b32 s{sJ}, s2, 3")
    else:
        e(f"s_lshr_b32 s{sH}, s2, 5\ns_and_b32 s{sJ}, s2, 31")
    e(f"""
    v_lshrrev_b32 v{vT}, 6, v0
    v_and_b32 v{vLane}, 63, v0
    v_readfirstlane_b32 s{sW}, v{vT}
    s_waitcnt lgkmcnt(0)
    s_load_dwordx8 s[{SCL}:{SCL+7}], s[24:25], 0
    """)
    srd(e, SQ, 16, Q_BYTES); srd(e, SK, 18, KV_BYTES); srd(e, SV, 20, KV_BYTES)
    srd(e, SB, 22, 8 * 512 * 4); srd(e, SW, 30, 32 << 20)
    e(f"""
    v_and_b32 v{vT}, 31, v{vLane}
    v_lshrrev_b32 v{vT2}, 5, v{vLane}
    v_lshlrev_b32 v{vQA}, 8, v{vT}
    v_lshl_add_u32 v{vQA}, v{vT2}, 4, v{vQA}
    v_lshlrev_b32 v{vTok}, 2, v{vT2}
    v_and_b32 v{vAL}, 15, v{vLane}
    v_xor_b32 v{vAL}, v{vAL}, v{vT2}
    v_lshlrev_b32 v{vAL}, 4, v{vAL}
    v_lshl_add_u32 v{vKA}, v{vT}, 8, v{vAL}
    """)
    for ks in range(1, 8):
        e(f"v_xor_b32 v{vKA+ks}, {ks<<5}, v{vKA}")
    e(f"""
    v_bfe_u32 v{vT}, v{vLane}, 2, 2
    v_lshl_add_u32 v{vAL}, v{vT2}, 2, v{vT}
    v_lshlrev_b32 v{vAL}, 8, v{vAL}
    v_lshl_add_u32 v{vAL}, v{vT}, 6, v{vAL}
    v_bfe_u32 v{vT}, v{vLane}, 4, 1
    v_lshl_add_u32 v{vAL}, v{vT}, 5, v{vAL}
    v_and_b32 v{vT}, 3, v{vLane}
    v_lshl_add_u32 v{vAL}, v{vT}, 3, v{vAL}
    v_add_u32 v{vVA}, {8192 + (NS-1)*16384}, v{vAL}
    """)
    for db in range(1, 4):
        e(f"v_xor_b32 v{vVA+db}, {db<<6}, v{vVA}")
    e(f"""
    s_and_b32 s{sT0}, s{sW}, 1
    s_lshl_b32 s{sT0}, s{sT0}, 3
    s_lshl_b32 s{sT1}, s{sH}, 8
    v_lshrrev_b32 v{vT}, 4, v{vLane}
    v_add_u32 v{vT2}, s{sT0}, v{vT}
    v_and_b32 v{vAL}, 15, v{vLane}
    v_xor_b32 v{vM}, v{vAL}, v{vT2}
    v_lshlrev_b32 v{vM}, 4, v{vM}
    v_lshl_add_u32 v{vM}, v{vT2}, 11, v{vM}
    v_add_u32 v{vDK0}, s{sT1}, v{vM}
    v_xor_b32 v{vDK1}, 64, v{vDK0}
    v_add_u32 v{vDK1}, {8192-1024}, v{vDK1}
    v_lshlrev_b32 v{vT}, 2, v{vT}
    v_xor_b32 v{vM}, v{vAL}, v{vT}
    v_lshlrev_b32 v{vM}, 4, v{vM}
    v_lshl_add_u32 v{vM}, v{vT2}, 11, v{vM}
    v_add_u32 v{vDV0}, s{sT1}, v{vM}
    v_add_u32 v{vDV1}, {8192-1024}, v{vDV0}
    s_lshl_b32 s{sWB}, s{sW}, 11
    s_lshl_b32 s{sT0}, s{sW}, 13
    v_lshlrev_b32 v{vWO}, 4, v{vLane}
    v_add_u32 v{vWO}, s{sT0}, v{vWO}
    s_lshl_b32 s{sT0}, s{sW}, 9
    s_add_u32 s{sT0}, s{sT0}, {ML_OFF}
    v_lshlrev_b32 v{vWM}, 3, v{vLane}
    v_add_u32 v{vWM}, s{sT0}, v{vWM}
    v_mov_b32 v{vNI}, {NEGINF:#x}
    s_mov_b32 s{sTHR}, {THR:#x}
    s_mov_b32 s96, 16384
    s_waitcnt lgkmcnt(0)
    """)
    stamp(1)
    batch_tables(e)
    e(f"""
    s_mul_i32 s{sLO}, s{sJ}, s{SS+8}
    s_add_u32 s{sNT}, s{sLO}, s{SS+8}
    s_lshr_b32 s{sLO}, s{sLO}, 5
    s_lshr_b32 s{sNT}, s{sNT}, 5
    s_sub_u32 s{sNT}, s{sNT}, s{sLO}
    s_cmp_eq_u32 s{sNT}, 0
    s_cbranch_scc1 L_end
    v_add_u32 v{vT}, s{sLO}, v{vLane}
    v_mov_b32 v{vB}, 0
    v_mov_b32 v{vC}, s{SC}
    v_mov_b32 v{vST}, 0
    v_mov_b32 v{vZ}, s{SCL}
    """)
    for b in range(1, 8):
        e(f"""
        v_cmp_le_u32 vcc, s{SS+b}, v{vT}
        v_mov_b32 v{vT2}, s{SC+b}
        v_mov_b32 v{vAL}, s{SS+b}
        v_mov_b32 v{vM}, s{SCL+b}
        v_cndmask_b32 v{vC}, v{vC}, v{vT2}, vcc
        v_cndmask_b32 v{vST}, v{vST}, v{vAL}, vcc
        v_cndmask_b32 v{vZ}, v{vZ}, v{vM}, vcc
        v_addc_co_u32 v{vB}, vcc, 0, v{vB}, vcc
        """)
    e(f"""
    s_lshr_b32 s{sT0}, s{sW}, 1
    v_sub_u32 v{vT}, v{vT}, v{vST}
    v_lshl_add_u32 v{vT}, v{vT}, 1, s{sT0}
    v_lshl_add_u32 v{vT2}, v{vB}, 9, v{vT}
    v_lshlrev_b32 v{vT2}, 2, v{vT2}
    buffer_load_dword v{vPG}, v{vT2}, s[{SB}:{SB+3}], 0 offen
    v_lshlrev_b32 v{vT}, 4, v{vT}
    v_cmp_lt_u32 s[92+2:92+3], v{vT}, v{vC}
    v_cmp_gt_u32 vcc, s{sNT}, v{vLane}
    v_mov_b32 v{vM}, {CSCALE:#x}
    s_and_b64 s[94:95], s[94:95], vcc
    v_cmp_lt_i32 vcc, 0, v{vZ}
    s_mov_b32 s{sI}, 0
    s_mov_b32 s{sSEG}, 0
    v_cndmask_b32 v{vZ}, 0, v{vM}, vcc
    """.replace("s[92+2:92+3]", "s[94:95]"))

    def seg_params():
        e(f"""
        v_readlane_b32 s{sBB}, v{vB}, s{sI}
        v_readlane_b32 s{sREM}, v{vC}, s{sI}
        v_readlane_b32 s{sMK}, v{vST}, s{sI}
        v_readlane_b32 s{sSC}, v{vZ}, s{sI}
        s_add_u32 s{sT0}, s{sREM}, 31
        s_lshr_b32 s{sT0}, s{sT0}, 5
        s_add_u32 s{sMK}, s{sMK}, s{sT0}
        s_sub_u32 s{sMK}, s{sMK}, s{sLO}
        s_min_u32 s{sE}, s{sMK}, s{sNT}
        s_sub_u32 s{sMK}, s{sMK}, 1
        s_sub_u32 s{sT0}, s{sT0}, 1
        s_lshl_b32 s{sT0}, s{sT0}, 5
        s_sub_u32 s{sREM}, s{sREM}, s{sT0}
        """)
    def q_load(dst, boff):
        e(f"""
        s_add_u32 s{sT0}, s{sBB}, {boff}
        s_lshl_b32 s{sT0}, s{sT0}, 3
        s_add_u32 s{sT0}, s{sT0}, s{sH}
        s_lshl_b32 s{sT0}, s{sT0}, 2
        s_add_u32 s{sT0}, s{sT0}, s{sW}
        s_lshl_b32 s{sT0}, s{sT0}, 13
        """)
        if boff:
            e(f"s_cmp_lt_u32 s{sE}, s{sNT}\ns_cselect_b32 s{sT0}, s{sT0}, {OOB:#x}")
        for ks in range(8):
            e(f"buffer_load_dwordx4 a[{dst+4*ks}:{dst+4*ks+3}], v{vQA}, s[{SQ}:{SQ+3}], s{sT0} offen offset:{32*ks}")
    e("s_nop 1")
    seg_params()
    q_load(0, 0)
    q_load(32, 1)
    e(f"""
    s_waitcnt vmcnt(16)
    v_lshlrev_b32 v{vPG}, 15, v{vPG}
    v_mov_b32 v{vT}, {OOB:#x}
    v_cndmask_b32 v{vPG}, v{vT}, v{vPG}, s[94:95]
    s_mov_b32 s{sLD}, 0
    s_mov_b32 s{sDS}, s{sWB}
    s_mov_b32 s{sRS}, 0
    s_mov_b32 s{sXW}, 0
    s_mov_b32 s{sFL}, 0
    """)
    def next_page():
        return [f"v_readlane_b32 s{sPG}, v{vPG}, s{sLD}",
                f"s_cmp_lt_u32 s{sLD}, 64",
                f"s_cselect_b32 s{sPG}, s{sPG}, {OOB:#x}",
                f"s_add_u32 s{sLD}, s{sLD}, 1"]
    def dma():
        return [f"s_mov_b32 m0, s{sDS}",
                f"s_add_u32 s{sT1}, s{sDS}, 8192",
                f"buffer_load_dwordx4 v{vDK0}, s[{SK}:{SK+3}], s{sPG} offen{nt} lds",
                f"buffer_load_dwordx4 v{vDK1}, s[{SK}:{SK+3}], s{sPG} offen offset:1024{nt} lds",
                f"s_mov_b32 m0, s{sT1}",
                f"s_add_u32 s{sDS}, s{sDS}, 16384",
                f"buffer_load_dwordx4 v{vDV0}, s[{SV}:{SV+3}], s{sPG} offen{nt} lds",
                f"buffer_load_dwordx4 v{vDV1}, s[{SV}:{SV+3}], s{sPG} offen offset:1024{nt} lds",
                f"s_cmp_ge_u32 s{sDS}, {NS*16384}",
                f"s_cselect_b32 s{sT1}, {NS*16384}, 0",
                f"s_sub_u32 s{sDS}, s{sDS}, s{sT1}"]
    stamp(2)
    for t in range(NS - 2):
        for x in next_page(): e(x)
        e("s_nop 2")
        for x in dma(): e(x)
    for x in next_page(): e(x)

    def sync(tag):
        if o["exactwait"]:
            e(f"""
            s_cmp_eq_u32 s{sXW}, 0
            s_cbranch_scc1 L_w0_{tag}
            s_sub_u32 s{sXW}, s{sXW}, 1
            s_waitcnt vmcnt({WN+EXTRA})
            s_branch L_w1_{tag}
            L_w0_{tag}:
            s_waitcnt vmcnt({WN})
            L_w1_{tag}:
            """)
        else:
            e(f"s_waitcnt vmcnt({WN})")
        e("s_barrier")
    def kread(ks):
        return f"ds_read_b128 v[{vK+4*ks}:{vK+4*ks+3}], v{vKA+ks}"
    def vread(kk, db, u):
        r = vV + 16 * kk + 4 * db + 2 * u
        return f"ds_read_b64_tr_b16 v[{r}:{r+1}], v{vVA+db} offset:{4096*kk+2048*u}"
    def qk(ks):
        c = "0" if ks == 0 else f"v[{vS}:{vS+15}]"
        return f"v_mfma_f32_32x32x16_bf16 v[{vS}:{vS+15}], v[{vK+4*ks}:{vK+4*ks+3}], a[{4*ks}:{4*ks+3}], {c}"
    def pv(kk, db):
        a = vV + 16 * kk + 4 * db
        return f"v_mfma_f32_32x32x16_bf16 v[{vO+16*db}:{vO+16*db+15}], v[{a}:{a+3}], v[{vP+4*kk}:{vP+4*kk+3}], v[{vO+16*db}:{vO+16*db+15}]"
    EX = lambda i: f"v_exp_f32 v{vX+i}, v{vX+i}"
    AD = lambda i: f"v_add_f32 v{vL}, v{vL}, v{vX+i}"
    CV = lambda m: f"v_cvt_pk_bf16_f32 v{vP+m}, v{vX+2*m}, v{vX+2*m+1}"
    FM = lambda i: f"v_fma_f32 v{vX+i}, v{vS+i}, s{sSC}, -v{vM}"
    def maxops():
        r = [f"v_max3_f32 v{vT}, v{vS}, v{vS+1}, v{vS+2}"]
        for i in range(3, 15, 2):
            r.append(f"v_max3_f32 v{vT}, v{vT}, v{vS+i}, v{vS+i+1}")
        r.append(f"v_max_f32 v{vT}, v{vT}, v{vS+15}")
        return r
    def slot_delta():
        return [f"s_add_u32 s{sRS}, s{sRS}, 1",
                f"s_cmp_eq_u32 s{sRS}, {NS}",
                f"s_cselect_b32 s{sRS}, 0, s{sRS}"]
    def kadv():
        r = [f"s_cmp_eq_u32 s{sRS}, {NS-1}",
             f"s_cselect_b32 s{sDEL}, {(-(NS-1)*16384) & 0xffffffff:#x}, s96"]
        return r + [f"v_add_u32 v{vKA+i}, s{sDEL}, v{vKA+i}" for i in range(8)]
    def vadv():
        r = [f"s_cmp_eq_u32 s{sRS}, 0",
             f"s_cselect_b32 s{sDEL}, {(-(NS-1)*16384) & 0xffffffff:#x}, s96"]
        return r + [f"v_add_u32 v{vVA+i}, s{sDEL}, v{vVA+i}" for i in range(4)]
    def mask_block():
        for r in range(16):
            tok = (r & 3) + 8 * (r >> 2)
            e(f"""
            v_add_u32 v{vT2}, {tok}, v{vTok}
            v_cmp_gt_u32 vcc, s{sREM}, v{vT2}
            s_nop 1
            v_cndmask_b32 v{vS+r}, v{vNI}, v{vS+r}, vcc
            """)
    def fullmax():
        e(f"""
        v_mov_b32 v{vT2}, v{vT}
        s_nop 1
        v_permlane32_swap_b32 v{vT}, v{vT2}
        v_max_f32 v{vT}, v{vT}, v{vT2}
        v_mul_f32 v{vT}, s{sSC}, v{vT}
        """)

    e("L_seg:")
    sync("f")
    if o["stamp"]:
        e(f"s_cmp_lg_u32 s{sI}, 0\ns_cbranch_scc1 L_nost")
        stamp(3)
        e("L_nost:")
    for ks in range(8): e(kread(ks))
    for x in dma(): e(x)
    for i in range(64): e(f"v_mov_b32 v{vO+i}, 0")
    e(f"v_mov_b32 v{vL}, 0")
    for ks in range(8):
        e(f"s_waitcnt lgkmcnt({7-ks})")
        e(qk(ks))
    for x in kadv() + vadv() + slot_delta() + next_page(): e(x)
    e(f"s_cmp_lg_u32 s{sI}, s{sMK}\ns_cbranch_scc1 L_f_nomask")
    mask_block()
    e("L_f_nomask:")
    for x in maxops(): e(x)
    fullmax()
    e(f"v_mov_b32 v{vM}, v{vT}")
    for i in range(16): e(FM(i))
    e(f"""
    s_add_u32 s{sI}, s{sI}, 1
    s_cmp_ge_u32 s{sI}, s{sE}
    s_cbranch_scc1 L_last
    .p2align 3
    L_loop:
    """)
    sync("l")
    if o["stamp"] == 2:
        e(f"s_memrealtime s[92:93]\ns_memtime s[94:95]\ns_mov_b32 m0, s{sI}\ns_waitcnt lgkmcnt(0)\nv_writelane_b32 v205, s92, m0\nv_writelane_b32 v206, s94, m0")
    if o["compute"]:
        d = dma()
        for ks in range(8): e(kread(ks))
        for x in d[:4]: e(x)
        e(EX(0)); e(EX(1))
        for x in d[4:]: e(x)
        e(EX(2)); e(EX(3)); e(AD(0)); e(AD(1)); e(CV(0))
        vr = [vread(kk, db, u) for kk in range(2) for db in range(4) for u in range(2)]
        mf, fl = [], []
        for ks in range(8):
            nv = min(2 * ks, 8)
            mf.append(f"s_waitcnt lgkmcnt({7-ks+nv})\n" + qk(ks))
        fl.append([vr[0], vr[1], EX(4), AD(2), EX(5), AD(3), CV(1)])
        fl.append([vr[2], vr[3], EX(6), AD(4), EX(7), AD(5), CV(2)])
        fl.append([vr[4], vr[5], EX(8), AD(6), EX(9), AD(7), CV(3)])
        fl.append([vr[6], vr[7], EX(10), AD(8), EX(11), AD(9), CV(4)])
        fl.append([EX(12), AD(10), EX(13), AD(11), CV(5)])
        fl.append([EX(14), AD(12), EX(15), AD(13), CV(6)])
        fl.append([vr[8], vr[9], vr[10], vr[11], AD(14), AD(15), CV(7)])
        fl.append([vr[12], vr[13], vr[14], vr[15]])
        interleave(e, mf, fl)
        ka, va, mx = kadv(), vadv(), maxops()
        e("s_waitcnt lgkmcnt(14)"); e(pv(0, 0))
        for x in ka[:6]: e(x)
        e("s_waitcnt lgkmcnt(12)"); e(pv(0, 1))
        for x in ka[6:]: e(x)
        e(f"s_cmp_eq_u32 s{sI}, s{sMK}\ns_cbranch_scc1 L_mask\nL_mask_ret:")
        e("s_waitcnt lgkmcnt(10)"); e(pv(0, 2))
        for x in mx[:5]: e(x)
        e("s_waitcnt lgkmcnt(8)"); e(pv(0, 3))
        for x in mx[5:]: e(x)
        e(f"v_fma_f32 v{vT2}, v{vT}, s{sSC}, -v{vM}\nv_cmp_lt_f32 vcc, s{sTHR}, v{vT2}")
        e("s_waitcnt lgkmcnt(6)"); e(pv(1, 0))
        e("s_cbranch_vccnz L_newmax\nL_newmax_ret:")
        for i in range(0, 5): e(FM(i))
        e("s_waitcnt lgkmcnt(4)"); e(pv(1, 1))
        for i in range(5, 10): e(FM(i))
        e("s_waitcnt lgkmcnt(2)"); e(pv(1, 2))
        for i in range(10, 16): e(FM(i))
        e("s_waitcnt lgkmcnt(0)"); e(pv(1, 3))
        for x in va + slot_delta() + next_page(): e(x)
        e(f"s_cmp_lg_u32 s{sFL}, 0\ns_cbranch_scc1 L_rescale\nL_rescale_ret:")
    else:
        for x in dma() + next_page(): e(x)
        e("s_nop 4\nL_mask_ret:\nL_newmax_ret:\nL_rescale_ret:")
    e(f"""
    s_add_u32 s{sI}, s{sI}, 1
    s_cmp_lt_u32 s{sI}, s{sE}
    s_cbranch_scc1 L_loop
    L_last:
    """)
    vr = [vread(kk, db, u) for kk in range(2) for db in range(4) for u in range(2)]
    for x in vr[:8]: e(x)
    for i in range(16): e(EX(i))
    for x in vr[8:]: e(x)
    for i in range(16): e(AD(i))
    for m in range(8): e(CV(m))
    e("s_waitcnt lgkmcnt(0)")
    for kk in range(2):
        for db in range(4): e(pv(kk, db))
    stamp(4)
    e(f"""
    v_mov_b32 v{vT2}, v{vL}
    s_add_u32 s{sT0}, s{sJ}, s{sBB}
    s_mul_i32 s{sT1}, s{sH}, {NSLOT_H}
    v_permlane32_swap_b32 v{vL}, v{vT2}
    s_add_u32 s{sT0}, s{sT0}, s{sT1}
    v_add_f32 v{vML+1}, v{vL}, v{vT2}
    v_mov_b32 v{vML}, v{vM}
    s_lshl_b32 s{sT1}, s{sT0}, 11
    s_lshl_b32 s{sT0}, s{sT0}, 15
    buffer_store_dwordx2 v[{vML}:{vML+1}], v{vWM}, s[{SW}:{SW+3}], s{sT1} offen
    s_add_u32 s{sT1}, s{sT0}, 4096
    s_nop 7
    """)
    for q in range(8):
        for n in range(4):
            e(f"v_cvt_pk_bf16_f32 v{vK+4*q+n}, v{vO+8*q+2*n}, v{vO+8*q+2*n+1}")
        e(f"buffer_store_dwordx4 v[{vK+4*q}:{vK+4*q+3}], v{vWO}, s[{SW}:{SW+3}], s{sT0 if q<4 else sT1} offen offset:{1024*(q&3)}")
    e(f"""
    s_cmp_ge_u32 s{sI}, s{sNT}
    s_cbranch_scc1 L_done
    s_cmp_eq_u32 s{sSEG}, 0
    s_cbranch_scc1 L_qready
    s_waitcnt vmcnt(0)
    L_qready:
    s_mov_b32 s{sSEG}, 1
    """)
    for i in range(32): e(f"v_accvgpr_mov_b32 a{i}, a{32+i}")
    seg_params()
    q_load(32, 1)
    e(f"s_mov_b32 s{sXW}, {NS-2}\ns_branch L_seg")
    e("L_mask:")
    mask_block()
    e("s_branch L_mask_ret\nL_newmax:")
    fullmax()
    e(f"""
    v_max_f32 v{vT}, v{vT}, v{vM}
    v_sub_f32 v{vAL}, v{vM}, v{vT}
    v_exp_f32 v{vAL}, v{vAL}
    v_mov_b32 v{vM}, v{vT}
    s_mov_b32 s{sFL}, 1
    v_mul_f32 v{vL}, v{vL}, v{vAL}
    s_branch L_newmax_ret
    L_rescale:
    s_mov_b32 s{sFL}, 0
    s_nop 7
    """)
    for i in range(64): e(f"v_mul_f32 v{vO+i}, v{vO+i}, v{vAL}")
    e("s_branch L_rescale_ret\nL_done:")
    if o["stamp"]:
        e("s_waitcnt vmcnt(0)")
        stamp(5)
        cstamp(7)
        stamp_store(e, 204, sW, 0)
        if o["stamp"] == 2:
            e(f"""
            s_mov_b64 exec, -1
            s_lshl_b32 s3, s2, 2
            s_add_u32 s3, s3, s{sW}
            s_lshl_b32 s3, s3, 9
            s_add_u32 s3, s3, {STAMP_OFF + (1 << 20)}
            v_lshlrev_b32 v8, 2, v{vLane}
            buffer_store_dword v205, v8, s[{SW}:{SW+3}], s3 offen
            buffer_store_dword v206, v8, s[{SW}:{SW+3}], s3 offen offset:256
            """)
    e("L_end:\ns_endpgm")
    return e.text(), NS * 16384

def combine_kernel(o):
    e = E()
    sH, sB, sG, sD, sT0, sT1, sJ, sJE, sLO = 4, 5, 6, 7, 8, 9, 10, 12, 11
    sA, sZ = 14, 15
    CH = o.get('CH', 6)
    vAcc, vM, vL, vOA, vMA, vT, vW, vAL, vOut = 0, 16, 17, 18, 19, 20, 21, 22, 23
    vD, vML = 24, 24 + 8 * CH
    e(f"""
    .globl combine_kernel
    .p2align 8
    .type combine_kernel,@function
    combine_kernel:
    s_cmp_ge_u32 s2, {0 if o["empty"] else 256}
    s_cbranch_scc1 C_end
    s_load_dwordx16 s[16:31], s[0:1], 0
    """)
    def stamp(i):
        if o["stamp"]:
            e(f"s_memrealtime s[92:93]\ns_waitcnt lgkmcnt(0)\nv_writelane_b32 v103, s92, {i}")
    stamp(0)
    e(f"""
    s_and_b32 s{sH}, s2, 7
    s_bfe_u32 s{sB}, s2, 0x30003
    s_lshr_b32 s{sG}, s2, 6
    v_lshrrev_b32 v{vT}, 6, v0
    v_and_b32 v{vW}, 63, v0
    v_readfirstlane_b32 s{sD}, v{vT}
    s_waitcnt lgkmcnt(0)
    s_load_dwordx8 s[{SCL}:{SCL+7}], s[24:25], 0
    """)
    srd(e, SW, 30, 32 << 20); srd(e, SO, 26, Q_BYTES)
    l16 = o.get("lay", 32) == 16
    if l16:
        ma = f"""s_lshr_b32 s{sJ}, s{sD}, 1
        s_lshl_b32 s{sJ}, s{sJ}, 7
        s_add_u32 s{sT0}, s{sT0}, s{sJ}
        v_and_b32 v{vT}, 15, v{vW}
        v_lshlrev_b32 v{vMA}, 3, v{vT}"""
        oa = f"""s_lshr_b32 s{sT1}, s{sD}, 1
        s_lshl_b32 s{sT1}, s{sT1}, 12
        s_add_u32 s{sT0}, s{sT0}, s{sT1}
        s_and_b32 s{sT1}, s{sD}, 1
        s_lshl_b32 s{sT1}, s{sT1}, 7
        s_add_u32 s{sT0}, s{sT0}, s{sT1}
        v_and_b32 v{vT}, 15, v{vW}
        v_lshlrev_b32 v{vOut}, 8, v{vT}
        v_bfe_u32 v{vT}, v{vW}, 4, 1
        v_lshl_add_u32 v{vOut}, v{vT}, 5, v{vOut}
        v_lshrrev_b32 v{vT}, 5, v{vW}
        v_lshl_add_u32 v{vOut}, v{vT}, 4, v{vOut}"""
    else:
        ma = f"v_lshlrev_b32 v{vMA}, 3, v{vW}"
        oa = f"""s_lshl_b32 s{sT1}, s{sD}, 6
        s_add_u32 s{sT0}, s{sT0}, s{sT1}
        v_and_b32 v{vT}, 31, v{vW}
        v_lshlrev_b32 v{vOut}, 8, v{vT}
        v_lshrrev_b32 v{vT}, 5, v{vW}
        v_lshl_add_u32 v{vOut}, v{vT}, 4, v{vOut}"""
    e(f"""
    s_lshl_b32 s{sT0}, s{sG}, 13
    s_lshl_b32 s{sT1}, s{sD}, 11
    s_add_u32 s{sT0}, s{sT0}, s{sT1}
    v_lshlrev_b32 v{vOA}, 4, v{vW}
    v_add_u32 v{vOA}, s{sT0}, v{vOA}
    s_lshl_b32 s{sT0}, s{sG}, 9
    s_add_u32 s{sT0}, s{sT0}, {ML_OFF}
    {ma}
    v_add_u32 v{vMA}, s{sT0}, v{vMA}
    s_lshl_b32 s{sT0}, s{sB}, 3
    s_add_u32 s{sT0}, s{sT0}, s{sH}
    s_lshl_b32 s{sT0}, s{sT0}, 2
    s_add_u32 s{sT0}, s{sT0}, s{sG}
    s_lshl_b32 s{sT0}, s{sT0}, 13
    {oa}
    v_add_u32 v{vOut}, s{sT0}, v{vOut}
    v_mov_b32 v{vM}, {NEGINF:#x}
    v_mov_b32 v{vL}, 0
    """)
    for i in range(16): e(f"v_mov_b32 v{vAcc+i}, 0")
    e("s_waitcnt lgkmcnt(0)")
    batch_tables(e)
    e(f"s_mov_b32 s{sA}, s{SS}\ns_mov_b32 s{sZ}, s{SS+1}")
    for b in range(1, 8):
        e(f"s_cmp_eq_u32 s{sB}, {b}\ns_cselect_b32 s{sA}, s{SS+b}, s{sA}\ns_cselect_b32 s{sZ}, s{SS+b+1}, s{sZ}")
    P = o.get("pad", 0)
    e(f"""
    s_lshr_b32 s{sT0}, s18, 8
    s_add_u32 s{sT0}, s{sT0}, s{sH}
    s_and_b32 s{sT0}, s{sT0}, 7
    """)
    magic_of_class(e, o, sT0, sT1)
    e(f"""
    s_add_u32 s{sT0}, s{SS+8}, {7*P}
    s_mul_i32 s{sT0}, s{sT0}, s{sT1}
    v_mul_lo_u32 v{vT}, s{sT0}, v{vW}
    v_add_u32 v{vAL}, s{sT0}, v{vT}
    v_lshrrev_b32 v{vT}, 17, v{vT}
    v_lshrrev_b32 v{vAL}, 17, v{vAL}
    """)
    if P:
        for b in range(1, 8):
            for r in (vT, vAL):
                e(f"v_subrev_u32 v{vD}, s{SS+b}, v{r}\nv_med3_i32 v{vD}, v{vD}, 0, {P}\nv_sub_u32 v{r}, v{r}, v{vD}")
    e(f"""
    v_max_u32 v{vT}, s{sA}, v{vT}
    v_min_u32 v{vAL}, s{sZ}, v{vAL}
    v_cmp_lt_u32 vcc, v{vT}, v{vAL}
    s_mul_i32 s{sLO}, s{sH}, {NSLOT_H}
    s_add_u32 s{sLO}, s{sLO}, s{sB}
    s_nop 1
    s_mov_b64 s[{sJE}:{sJE+1}], vcc
    C_chunk:
    """)
    for c in range(CH):
        e(f"""
        s_ff1_i32_b64 s{sJ}, s[{sJE}:{sJE+1}]
        s_cmp_lg_u64 s[{sJE}:{sJE+1}], 0
        s_cselect_b32 s{85+c}, 0, {NEGINF:#x}
        s_bitset0_b64 s[{sJE}:{sJE+1}], s{sJ}
        s_add_u32 s{sJ}, s{sJ}, s{sLO}
        s_cmp_eq_u32 s{85+c}, 0
        s_cselect_b32 s{sJ}, s{sJ}, 0x8000
        s_lshl_b32 s{sT0}, s{sJ}, 11
        s_lshl_b32 s{sT1}, s{sJ}, 15
        buffer_load_dwordx2 v[{vML+2*c}:{vML+2*c+1}], v{vMA}, s[{SW}:{SW+3}], s{sT0} offen
        buffer_load_dwordx4 v[{vD+8*c}:{vD+8*c+3}], v{vOA}, s[{SW}:{SW+3}], s{sT1} offen
        buffer_load_dwordx4 v[{vD+8*c+4}:{vD+8*c+7}], v{vOA}, s[{SW}:{SW+3}], s{sT1} offen offset:1024
        """)
    for c in range(CH):
        m, l = vML + 2 * c, vML + 2 * c + 1
        e(f"""
        s_waitcnt vmcnt({3*(CH-1-c)})
        v_add_f32 v{m}, s{85+c}, v{m}
        v_max_f32 v{vT}, v{vM}, v{m}
        v_sub_f32 v{vAL}, v{vM}, v{vT}
        v_sub_f32 v{vW}, v{m}, v{vT}
        v_exp_f32 v{vAL}, v{vAL}
        v_exp_f32 v{vW}, v{vW}
        v_mov_b32 v{vM}, v{vT}
        v_mul_f32 v{vL}, v{vL}, v{vAL}
        v_fmac_f32 v{vL}, v{l}, v{vW}
        """)
        for n in range(8):
            r = vD + 8 * c + n
            e(f"""
            v_lshlrev_b32 v{vT}, 16, v{r}
            v_and_b32 v{r}, 0xffff0000, v{r}
            v_mul_f32 v{vAcc+2*n}, v{vAcc+2*n}, v{vAL}
            v_mul_f32 v{vAcc+2*n+1}, v{vAcc+2*n+1}, v{vAL}
            v_fmac_f32 v{vAcc+2*n}, v{vT}, v{vW}
            v_fmac_f32 v{vAcc+2*n+1}, v{r}, v{vW}
            """)
    e(f"""
    s_cmp_lg_u64 s[{sJE}:{sJE+1}], 0
    s_cbranch_scc1 C_chunk
    v_rcp_f32 v{vL}, v{vL}
    s_nop 0
    """)
    for i in range(16): e(f"v_mul_f32 v{vAcc+i}, v{vAcc+i}, v{vL}")
    for n in range(8): e(f"v_cvt_pk_bf16_f32 v{vD+n}, v{vAcc+2*n}, v{vAcc+2*n+1}")
    e("s_nop 1")
    for p in range(2):
        r = vD + 4 * p
        sw = "v_permlane16_swap_b32" if l16 else "v_permlane32_swap_b32"
        e(f"{sw} v{r}, v{r+2}\n{sw} v{r+1}, v{r+3}")
    for p in range(2):
        r = vD + 4 * p
        e(f"buffer_store_dwordx4 v[{r}:{r+3}], v{vOut}, s[{SO}:{SO+3}], 0 offen offset:{(64 if l16 else 32)*p}")
    if o["stamp"]:
        e("s_waitcnt vmcnt(0)")
        stamp(5)
        stamp_store(e, 103, sD, 32768)
    e("C_end:\ns_endpgm")
    return e.text()

def desc(name, nv, acc):
    return f""".p2align 6
.amdhsa_kernel {name}
  .amdhsa_next_free_vgpr {nv}
  .amdhsa_next_free_sgpr 102
  .amdhsa_accum_offset {acc}
  .amdhsa_group_segment_fixed_size 0
  .amdhsa_kernarg_size 64
  .amdhsa_user_sgpr_count 2
  .amdhsa_user_sgpr_kernarg_segment_ptr 1
  .amdhsa_system_sgpr_workgroup_id_x 1
.end_amdhsa_kernel
"""

def build(**kw):
    o = dict(DEF); o.update(kw)
    k1, lds = main_kernel(o)
    k2 = combine_kernel(o)
    s = f"; @launch kernel={NAME}_kernel grid=(256,1,1) block=(256,1,1) lds={lds}\n"
    if not o["single"]:
        s += "; @launch kernel=combine_kernel grid=(256,1,1) block=(256,1,1) lds=0\n"
    s += '.amdgcn_target "amdgcn-amd-amdhsa--gfx950"\n.text\n' + k1 + k2
    s += '.section .rodata,"a"\n' + desc(NAME + "_kernel", 208 + 64, 208) + desc("combine_kernel", 104, 104)
    return s

if __name__ == "__main__":
    kw = {}
    for a in sys.argv[2:]:
        k, v = a.split("="); kw[k] = int(v)
    open(sys.argv[1], "w").write(build(**kw))
```

```python
import sys
from gen import *
import gen

DEF2 = dict(NS=4, nt=1, hmap=0, compute=1, stamp=0, pad=0, prio=1, empty=0, single=0, warm=0, cm=7, lay=16, D=0, cnt=0, fuse=1, tk=3)
GUARD = f2u(1024.0)
FLAG_OFF = 14 << 20
FS = 6
POLL = 0x8000

def wg_range(e, o, sJ, sLO, sNT, t0, t1):
    P = o["pad"]
    e(f"""
    s_add_u32 s{t0}, s{SS+8}, {7*P}
    s_mul_i32 s{t0}, s{t0}, s35
    s_mul_i32 s{sLO}, s{sJ}, s{t0}
    s_add_u32 s{sNT}, s{sLO}, s{t0}
    s_lshr_b32 s{sLO}, s{sLO}, 17
    s_lshr_b32 s{sNT}, s{sNT}, 17
    """)
    if P:
        for b in range(1, 8):
            for r in (sLO, sNT):
                e(f"""
                s_sub_i32 s{t0}, s{r}, s{SS+b}
                s_max_i32 s{t0}, s{t0}, 0
                s_min_i32 s{t0}, s{t0}, {P}
                s_sub_u32 s{r}, s{r}, s{t0}
                """)
    e(f"s_sub_u32 s{sNT}, s{sNT}, s{sLO}")

def main_kernel2(o):
    NS = o["NS"]; nt = ["", " nt", " sc0", " sc1", " sc0 sc1", " sc0 nt", " sc1 nt", " sc0 sc1 nt"][o["nt"]]
    e = E()
    vO, vS, vNM, vQ, vQn, vK, vV, vP, vE, vKA, vVA = 0, (64, 80), 96, 104, 136, 168, 184, 216, 224, 228, 232
    vL, vLS, vT, vT2, vA, vLane, vU, vU2, vST = 240, 244, 248, 249, 250, 251, 252, 253, 255
    sH, sJ, sW, sLO, sNT = 4, 5, 6, 7, 8
    sI, sE, sMK, sREM, sSC = 9, 10, 11, 12, 13
    sBB, sG, sT0, sT1, sSEG = 14, 15, 32, 33, 34
    VR = NS * 8192
    FU = o["fuse"]
    SD = SK
    sMS, sNF, sTI, sPD, sCA, sKK, sTM, sSL = 86, 88, 89, 90, 91, 85, 96, 97
    vTK = 254
    sc = " sc1" if FU else ""
    def stamp(i, clk=False):
        if o["stamp"]:
            e(f"{'s_memtime' if clk else 's_memrealtime'} s[92:93]\ns_waitcnt lgkmcnt(0)\nv_writelane_b32 v{vST}, s92, {i}")
    e(f"""
    .globl {NAME}_kernel
    .p2align 8
    .type {NAME}_kernel,@function
    {NAME}_kernel:
    s_cmp_ge_u32 s2, {0 if o["empty"] else 256}
    s_cbranch_scc1 L_end
    s_load_dwordx16 s[16:31], s[0:1], 0
    """)
    stamp(0); stamp(6, True)
    cn = counts(o); base = min(cn)
    ex = [(c, k) for k in range(max(cn) - base) for c in range(8) if cn[c] - base > k]
    e(f"s_and_b32 s{sH}, s2, 7\ns_lshr_b32 s{sJ}, s2, 3")
    if ex:
        assert len(ex) <= 16
        tb = sum((c | (k << 3)) << (8 * i) for i, (c, k) in enumerate(ex))
        e(f"""
        s_mov_b32 s8, {tb & 0xffffffff:#x}
        s_mov_b32 s9, {(tb >> 32) & 0xffffffff:#x}
        s_mov_b32 s10, {(tb >> 64) & 0xffffffff:#x}
        s_mov_b32 s11, {(tb >> 96) & 0xffffffff:#x}
        s_sub_u32 s3, s2, {8*base}
        s_bitcmp1_b32 s3, 3
        s_cselect_b64 s[8:9], s[10:11], s[8:9]
        s_lshl_b32 s3, s3, 3
        s_lshr_b64 s[8:9], s[8:9], s3
        s_bfe_u32 s9, s8, 0x50003
        s_add_u32 s9, s9, {base}
        s_and_b32 s8, s8, 7
        s_cmp_ge_u32 s2, {8*base}
        s_cselect_b32 s{sH}, s8, s{sH}
        s_cselect_b32 s{sJ}, s9, s{sJ}
        """)
    magic_of_class(e, o, sH, 35)
    e(f"""
    v_lshrrev_b32 v{vT}, 6, v0
    v_and_b32 v{vLane}, 63, v0
    v_readfirstlane_b32 s{sW}, v{vT}
    s_waitcnt lgkmcnt(0)
    s_lshr_b32 s3, s18, 8
    s_sub_u32 s{sH}, s{sH}, s3
    s_and_b32 s{sH}, s{sH}, 7
    s_load_dwordx8 s[{SCL}:{SCL+7}], s[24:25], 0
    s_cmp_ge_u32 s{sW}, 4
    s_cbranch_scc1 L_loader
    """)
    srd(e, SQ, 16, Q_BYTES); srd(e, SW, 30, 32 << 20)
    if FU:
        srd(e, SD, 28, 256); srd(e, SO, 26, Q_BYTES)
        e(f"""
        s_lshl_b32 s{sCA}, s{sH}, 5
        s_mul_i32 s{sSL}, s{sH}, {NSLOT_H}
        v_mov_b32 v{vTK}, 0
        s_or_b32 s3, s{sJ}, s{sW}
        s_cbranch_scc1 L_noclr
        s_lshl_b32 s3, s{sSL}, {FS+2}
        s_add_u32 s3, s3, {FLAG_OFF}
        v_lshlrev_b32 v1, {FS}, v{vLane}
        v_add_u32 v2, {64 << FS}, v1
        v_add_u32 v3, {(4*NSLOT_H - 64) << FS}, v1
        buffer_store_dword v{vTK}, v1, s[{SW}:{SW+3}], s3 offen sc1
        buffer_store_dword v{vTK}, v2, s[{SW}:{SW+3}], s3 offen sc1
        buffer_store_dword v{vTK}, v3, s[{SW}:{SW+3}], s3 offen sc1
        v_mov_b32 v4, 1
        s_mov_b64 exec, 1
        s_waitcnt vmcnt(0)
        buffer_store_dword v4, off, s[{SD}:{SD+3}], s{sCA} sc1
        s_mov_b64 exec, -1
        L_noclr:
        """)
    e(f"""
    v_and_b32 v{vT}, 15, v{vLane}
    v_lshrrev_b32 v{vT2}, 4, v{vLane}
    v_xor_b32 v{vA}, v{vT}, v{vT2}
    v_lshlrev_b32 v{vA}, 4, v{vA}
    v_lshl_add_u32 v{vKA}, v{vT}, 8, v{vA}
    """)
    for k4 in range(1, 4):
        e(f"v_xor_b32 v{vKA+k4}, {k4<<6}, v{vKA}")
    e(f"""
    v_lshrrev_b32 v{vT}, 2, v{vLane}
    v_lshrrev_b32 v{vT2}, 5, v{vLane}
    v_lshlrev_b32 v{vT2}, 2, v{vT2}
    v_xor_b32 v{vT2}, v{vT2}, v{vT}
    v_and_b32 v{vT2}, 7, v{vT2}
    v_lshlrev_b32 v{vA}, 8, v{vT}
    v_lshl_add_u32 v{vA}, v{vT2}, 5, v{vA}
    v_and_b32 v{vT}, 3, v{vLane}
    v_lshl_add_u32 v{vA}, v{vT}, 3, v{vA}
    v_add_u32 v{vVA}, {VR}, v{vA}
    """)
    for db in range(1, 8):
        e(f"v_xor_b32 v{vVA+db}, {db<<5}, v{vVA}")
    e(f"s_mov_b32 s{sG}, {GUARD:#x}\ns_waitcnt lgkmcnt(0)")
    stamp(1)
    batch_tables(e)
    wg_range(e, o, sJ, sLO, sNT, sT0, sT1)
    e(f"""
    s_cmp_eq_u32 s{sNT}, 0
    s_cbranch_scc1 L_end
    s_mov_b32 s{sBB}, 0
    """)
    for b in range(1, 8):
        e(f"s_cmp_le_u32 s{SS+b}, s{sLO}\ns_cselect_b32 s{sBB}, {b}, s{sBB}")
    def seg_params():
        e(f"""
        s_mov_b32 m0, s{sBB}
        s_nop 0
        s_movrels_b32 s{sREM}, s{SC}
        s_movrels_b32 s{sMK}, s{SS+1}
        s_movrels_b32 s{sSC}, s{SCL}
        s_sub_u32 s{sMK}, s{sMK}, s{sLO}
        s_min_u32 s{sE}, s{sMK}, s{sNT}
        s_sub_u32 s{sMK}, s{sMK}, 1
        s_sub_u32 s{sREM}, s{sREM}, 1
        s_and_b32 s{sREM}, s{sREM}, 31
        s_add_u32 s{sREM}, s{sREM}, 1
        s_cmp_gt_i32 s{sSC}, 0
        s_cselect_b32 s{sSC}, {CSCALE:#x}, 0
        """)
    def q_load(boff):
        e(f"""
        s_add_u32 s{sT0}, s{sBB}, {boff}
        s_lshl_b32 s{sT0}, s{sT0}, 3
        s_add_u32 s{sT0}, s{sT0}, s{sH}
        s_lshl_b32 s{sT0}, s{sT0}, 2
        s_add_u32 s{sT0}, s{sT0}, s{sW}
        s_lshl_b32 s{sT0}, s{sT0}, 13
        v_and_b32 v{vT}, 15, v{vLane}
        v_lshrrev_b32 v{vT2}, 4, v{vLane}
        v_lshlrev_b32 v{vT}, 8, v{vT}
        v_lshl_add_u32 v{vT}, v{vT2}, 4, v{vT}
        v_add_u32 v{vT2}, 4096, v{vT}
        """)
        if boff:
            e(f"s_cmp_lt_u32 s{sE}, s{sNT}\ns_cselect_b32 s{sT0}, s{sT0}, {OOB:#x}")
        for ks in range(8):
            e(f"buffer_load_dwordx4 v[{vQn+4*ks}:{vQn+4*ks+3}], v{vT2 if ks >= 4 else vT}, s[{SQ}:{SQ+3}], s{sT0} offen offset:{64*(ks&3)}")
    def q_scale():
        for i in range(32):
            a, b = vE + 2 * (i & 1), vE + 2 * (i & 1) + 1
            e(f"""
            v_lshlrev_b32 v{a}, 16, v{vQn+i}
            v_and_b32 v{b}, 0xffff0000, v{vQn+i}
            v_mul_f32 v{a}, s{sSC}, v{a}
            v_mul_f32 v{b}, s{sSC}, v{b}
            v_cvt_pk_bf16_f32 v{vQ+i}, v{a}, v{b}
            """)
    seg_params()
    q_load(0)
    if FU:
        P = o["pad"]
        e(f"""
        s_add_u32 s{sT0}, s{sLO}, s{sNT}
        s_mov_b32 s{sMS}, 0
        s_mov_b32 s{sMS+1}, s{SS+1}
        """)
        for b in range(1, 8):
            e(f"s_cmp_lt_u32 s{SS+b}, s{sT0}\ns_cselect_b32 s{sMS}, s{SS+b}, s{sMS}\ns_cselect_b32 s{sMS+1}, s{SS+b+1}, s{sMS+1}")
        e(f"""
        s_add_u32 s{sT0}, s{SS+8}, {7*P}
        s_mul_i32 s{sT0}, s{sT0}, s35
        v_mul_lo_u32 v1, s{sT0}, v{vLane}
        v_add_u32 v2, s{sT0}, v1
        v_lshrrev_b32 v1, 17, v1
        v_lshrrev_b32 v2, 17, v2
        """)
        for b in range(1, 8) if P else ():
            for r in (1, 2):
                e(f"v_subrev_u32 v3, s{SS+b}, v{r}\nv_med3_i32 v3, v3, 0, {P}\nv_sub_u32 v{r}, v{r}, v3")
        e(f"""
        v_max_u32 v1, s{sMS}, v1
        v_min_u32 v2, s{sMS+1}, v2
        v_cmp_lt_u32 vcc, v1, v2
        s_and_b32 s{sTI}, s{sJ}, 15
        s_add_u32 s{sTI}, s{sTI}, {o["tk"]}
        s_mov_b32 s{sPD}, -1
        s_mov_b64 s[{sMS}:{sMS+1}], vcc
        s_ff1_i32_b64 s{sNF}, s[{sMS}:{sMS+1}]
        s_bitset0_b64 s[{sMS}:{sMS+1}], s{sJ}
        """)
    def ticket():
        e(f"buffer_load_dword v{vTK}, off, s[{SD}:{SD+3}], s{sCA} sc1\ns_mov_b32 s{sTI}, 0x7fffffff")
    def go(tag):
        e(f"""
        s_mov_b32 s{sTM}, {POLL:#x}
        L_go{tag}:
        v_readfirstlane_b32 s3, v{vTK}
        s_cmp_lg_u32 s3, 0
        s_cbranch_scc1 L_go{tag}_ok
        buffer_load_dword v{vTK}, off, s[{SD}:{SD+3}], s{sCA} sc1
        s_sub_u32 s{sTM}, s{sTM}, 1
        s_waitcnt vmcnt(0)
        s_cbranch_scc0 L_go{tag}
        L_go{tag}_ok:
        """)
    def signal(sA):
        e(f"""
        v_mov_b32 v{vA}, 1
        s_mov_b64 exec, 1
        buffer_store_dword v{vA}, off, s[{SW}:{SW+3}], s{sA} sc1
        s_mov_b64 exec, -1
        """)
    e(f"s_mov_b32 s{sI}, 0\ns_mov_b32 s{sSEG}, 0\ns_waitcnt vmcnt(0)")
    q_scale()
    q_load(1)
    stamp(2)
    e("s_barrier")
    stamp(3)
    e("s_branch L_first")

    def kread(j, slot, base=vKA):
        r = vK + 4 * (j & 3)
        return f"ds_read_b128 v[{r}:{r+3}], v{base+(j&3)} offset:{slot*8192+4096*(j>>2)}"
    def vread(db, u, slot, base=vVA):
        r = vV + 4 * db + 2 * u
        return f"ds_read_b64_tr_b16 v[{r}:{r+1}], v{base+db} offset:{slot*8192+4096*u}"
    R4 = lambda r: f"v[{r}:{r+3}]"
    R2 = lambda r: f"v[{r}:{r+1}]"
    SI = lambda S, qb, i: S + 8 * (i >> 2) + 4 * qb + (i & 3)
    def qk(j, qb, S, zero=False):
        d = S + 8 * (j >> 2) + 4 * qb
        c = R4(d) if j & 3 else ("0" if zero else R4(vNM + 4 * qb))
        return f"v_mfma_f32_16x16x32_bf16 {R4(d)}, {R4(vK+4*(j&3))}, {R4(vQ+16*qb+4*(j&3))}, {c}"
    def pv(db, qb):
        d = vO + 8 * db + 4 * qb
        return f"v_mfma_f32_16x16x32_bf16 {R4(d)}, {R4(vV+4*db)}, {R4(vP+4*qb)}, {R4(d)}"
    def soft(S, qb):
        EX = lambda i: f"v_exp_f32 v{vE+(i&3)}, v{SI(S, qb, i)}"
        CV = lambda m: f"v_cvt_pk_bf16_f32 v{vP+4*qb+m}, v{vE+((2*m)&3)}, v{vE+((2*m+1)&3)}"
        LS = R2(vLS + 2 * qb)
        return [EX(0), EX(1), EX(2), EX(3), CV(0), f"v_pk_add_f32 {LS}, {R2(vE)}, {R2(vE+2)}", CV(1),
                EX(4), EX(5), EX(6), f"v_pk_add_f32 {LS}, {LS}, {R2(vE)}", EX(7), CV(2),
                f"v_pk_add_f32 {LS}, {LS}, {R2(vE+2)}", CV(3)]
    def guard():
        return [f"v_max3_f32 v{vT}, v{vLS}, v{vLS+1}, v{vLS+2}", f"v_max_f32 v{vT}, v{vT}, v{vLS+3}", f"v_cmp_lt_f32 vcc, s{sG}, v{vT}"]
    def lacc():
        return [f"v_pk_add_f32 {R2(vL+2*q)}, {R2(vL+2*q)}, {R2(vLS+2*q)}" for q in range(2)]
    def mask_block(S):
        e(f"s_nop 7\nv_lshrrev_b32 v{vA}, 4, v{vLane}\nv_lshlrev_b32 v{vA}, 2, v{vA}\nv_mov_b32 v{vT}, {NEGINF:#x}")
        for i in range(8):
            e(f"""
            v_add_u32 v{vT2}, {(i & 3) + 16 * (i >> 2)}, v{vA}
            v_cmp_gt_u32 vcc, s{sREM}, v{vT2}
            s_nop 1
            v_cndmask_b32 v{SI(S, 0, i)}, v{vT}, v{SI(S, 0, i)}, vcc
            v_cndmask_b32 v{SI(S, 1, i)}, v{vT}, v{SI(S, 1, i)}, vcc
            """)
    def xlane(op, regs):
        tm = (vT2, vU2)
        for sw in ("v_permlane16_swap_b32", "v_permlane32_swap_b32"):
            for r, t in zip(regs, tm): e(f"v_mov_b32 v{t}, v{r}")
            e("s_nop 1")
            for r, t in zip(regs, tm): e(f"{sw} v{r}, v{t}")
            e("s_nop 1")
            for r, t in zip(regs, tm): e(f"{op} v{r}, v{r}, v{t}")
    MX = (vT, vU)
    def rowmax(S):
        for q in range(2):
            x = lambda i: SI(S, q, i)
            e(f"""
            v_max3_f32 v{MX[q]}, v{x(0)}, v{x(1)}, v{x(2)}
            v_max3_f32 v{MX[q]}, v{MX[q]}, v{x(3)}, v{x(4)}
            v_max3_f32 v{MX[q]}, v{MX[q]}, v{x(5)}, v{x(6)}
            v_max_f32 v{MX[q]}, v{MX[q]}, v{x(7)}
            """)
        xlane("v_max_f32", MX)
    def slow(So, Sn):
        e("s_nop 7")
        rowmax(So)
        AL = (vT2, vU2)
        for q in range(2): e(f"v_max_f32 v{MX[q]}, 0, v{MX[q]}\nv_exp_f32 v{AL[q]}, -v{MX[q]}")
        for q in range(2):
            for i in range(8): e(f"v_sub_f32 v{SI(So, q, i)}, v{SI(So, q, i)}, v{MX[q]}")
            for i in range(4): e(f"v_sub_f32 v{vNM+4*q+i}, v{vNM+4*q+i}, v{MX[q]}")
            if Sn is not None:
                for i in range(8): e(f"v_sub_f32 v{SI(Sn, q, i)}, v{SI(Sn, q, i)}, v{MX[q]}")
            for db in range(8):
                for i in range(4): e(f"v_mul_f32 v{vO+8*db+4*q+i}, v{vO+8*db+4*q+i}, v{AL[q]}")
            for i in range(2): e(f"v_mul_f32 v{vL+2*q+i}, v{vL+2*q+i}, v{AL[q]}")
        for q in range(2):
            for x in soft(So, q): e(x)
        e("s_nop 1")

    class Lds:
        def __init__(self): self.q = []
        def rd(self, tag, ins): e(ins); self.q.append(tag)
        def need(self, tag):
            idx = [i for i, t in enumerate(self.q) if t == tag]
            if idx:
                n = len(self.q) - 1 - idx[-1]
                assert n <= 15
                e(f"s_waitcnt lgkmcnt({n})"); self.q = self.q[idx[-1] + 1:]

    e(".p2align 6")
    mark = len(e.l)
    for p in range(NS):
        Sn, So = vS[p & 1], vS[(p + 1) & 1]
        ks_, vs_ = p, (p - 1) % NS
        e(f"L_ph{p}:\ns_barrier")
        e(f"s_cmp_ge_u32 s{sI}, s{sE}\ns_cbranch_scc1 L_bnd{p}")
        if o["compute"]:
            L = Lds()
            sb, sa = soft(So, 1), soft(Sn, 0)
            fill = [[] for _ in range(32)]
            for j in range(4): fill[2 * j + 1].append(("K", j + 4))
            for n in range(16): fill[3 + n].append(("V", n))
            rest = sb[5:] + guard()
            for n, x in enumerate(rest): fill[n + 1].append(x)
            fill[16] += [lacc()[0], f"s_cmp_eq_u32 s{sI}, s{sMK}"]
            fill[17] += [lacc()[1], f"s_cbranch_scc1 L_mask{p}\nL_mask{p}_ret:"]
            for n, x in zip((18, 19, 20, 21), sa[:4]): fill[n].append(x)
            fill[22].append(sa[5])
            fill[24] += [sa[4], sa[6]]
            for n, x in zip((24, 25, 26, 27, 27, 28, 29, 30), sa[7:]): fill[n].append(x)
            if FU: fill[25] += [f"s_cmp_ge_i32 s{sI}, s{sTI}", f"s_cbranch_scc1 L_tick{p}\nL_tick{p}_ret:"]
            fill[30].append(f"s_add_u32 s{sI}, s{sI}, 1")
            for j in range(4): L.rd(("K", j), kread(j, ks_))
            for x in sb[:5]: e(x)
            for sl in range(32):
                if sl < 16:
                    if not sl & 1: L.need(("K", sl >> 1))
                    e(qk(sl >> 1, sl & 1, Sn))
                else:
                    if sl == 16: e(f"s_cbranch_vccnz L_slow{p}\nL_slow{p}_ret:")
                    if sl < 24: L.need(("V", 2 * (sl - 16) + 1))
                    e(pv((sl - 16) & 7, (sl - 16) >> 3))
                for x in fill[sl]:
                    if isinstance(x, tuple):
                        L.rd(x, kread(x[1], ks_) if x[0] == "K" else vread(x[1] >> 1, x[1] & 1, vs_))
                    else: e(x)
        else:
            e(f"s_add_u32 s{sI}, s{sI}, 1\nL_slow{p}_ret:\nL_mask{p}_ret:")
        if p == NS - 1:
            e("s_branch L_ph0")
    drop = [x for b, xs in ((1, ["ds_read"]), (2, ["v_mfma"]), (4, ["v_exp", "v_pk_add", "v_cvt_pk"])) if not o["cm"] & b for x in xs]
    e.l[mark:] = [x for x in e.l[mark:] if not any(x.strip().startswith(d) for d in drop)]
    for p in range(NS):
        Sn, So = vS[p & 1], vS[(p + 1) & 1]
        e(f"L_slow{p}:"); slow(So, Sn); e(f"s_branch L_slow{p}_ret")
        e(f"L_mask{p}:"); mask_block(Sn); e(f"s_branch L_mask{p}_ret")
        if FU and o["compute"]: e(f"L_tick{p}:"); ticket(); e(f"s_branch L_tick{p}_ret")
        e(f"L_bnd{p}:")
        vr = [vread(db, u, (p - 1) % NS) for db in range(8) for u in range(2)]
        for x in vr[:12]: e(x)
        if So != vS[0]:
            for i in range(16): e(f"v_mov_b32 v{vS[0]+i}, v{So+i}")
        e("s_waitcnt lgkmcnt(8)")
        for x in vr[12:]: e(x)
        e("s_branch L_last")
    e("L_last:")
    for x in soft(vS[0], 1) + guard(): e(x)
    e("s_nop 1\ns_cbranch_vccz L_last_ok")
    slow(vS[0], None)
    e("L_last_ok:")
    for x in lacc(): e(x)
    e("s_waitcnt lgkmcnt(0)")
    for qb in range(2):
        for db in range(8): e(pv(db, qb))
    stamp(4)
    e(f"v_add_f32 v{vT}, v{vL}, v{vL+1}\nv_add_f32 v{vU}, v{vL+2}, v{vL+3}")
    xlane("v_add_f32", MX)
    if FU:
        e(f"""
        s_add_u32 s{sPD}, s{sSL}, s{sJ}
        s_add_u32 s{sPD}, s{sPD}, s{sBB}
        s_lshl_b32 s{sPD}, s{sPD}, 2
        s_add_u32 s{sPD}, s{sPD}, s{sW}
        s_lshl_b32 s{sPD}, s{sPD}, {FS}
        s_add_u32 s{sPD}, s{sPD}, {FLAG_OFF}
        s_waitcnt vmcnt(0)
        s_cmp_lt_u32 s{sI}, s{sNT}
        s_cbranch_scc0 L_fin
        s_mov_b32 m0, s{sBB}
        s_nop 0
        s_movrels_b32 s{sT0}, s{SS}
        s_cmp_lt_u32 s{sT0}, s{sLO}
        s_cbranch_scc1 L_part
        s_mov_b32 s{sPD}, -1
        s_branch L_out
        L_fin:
        s_cmp_eq_u32 s{sJ}, s{sNF}
        s_cbranch_scc1 L_merge
        L_part:
        """)
    e(f"""
    v_and_b32 v{vA}, 16, v{vLane}
    v_cmp_eq_u32 vcc, 0, v{vA}
    s_add_u32 s{sT0}, s{sJ}, s{sBB}
    s_mul_i32 s{sT1}, s{sH}, {NSLOT_H}
    s_add_u32 s{sT0}, s{sT0}, s{sT1}
    v_cndmask_b32 v{vT2}, v{vU}, v{vT}, vcc
    v_cndmask_b32 v{vT}, v{vNM+4}, v{vNM}, vcc
    s_lshl_b32 s{sT0}, s{sT0}, 2
    s_add_u32 s{sT0}, s{sT0}, s{sW}
    v_sub_f32 v{vT}, 0, v{vT}
    s_lshl_b32 s{sT1}, s{sT0}, 9
    s_add_u32 s{sT1}, s{sT1}, {ML_OFF}
    v_lshlrev_b32 v{vA}, 3, v{vLane}
    s_lshl_b32 s{sT0}, s{sT0}, 13
    buffer_store_dwordx2 v[{vT}:{vT+1}], v{vA}, s[{SW}:{SW+3}], s{sT1} offen{sc}
    s_add_u32 s{sT1}, s{sT0}, 4096
    v_lshlrev_b32 v{vU}, 4, v{vLane}
    """)
    for c in range(8):
        q, pp = c >> 2, c & 3
        for n in range(4):
            r = vO + 8 * (2 * pp + (n >> 1)) + 4 * q + 2 * (n & 1)
            e(f"v_cvt_pk_bf16_f32 v{vV+4*c+n}, v{r}, v{r+1}")
        e(f"buffer_store_dwordx4 v[{vV+4*c}:{vV+4*c+3}], v{vU}, s[{SW}:{SW+3}], s{sT0 if c<4 else sT1} offen offset:{1024*(c&3)}{sc}")
    e(f"""
    s_cmp_ge_u32 s{sI}, s{sNT}
    s_cbranch_scc1 {"L_pdone" if FU else "L_done"}
    L_next:
    s_add_u32 s{sBB}, s{sBB}, 1
    {"" if FU else "s_waitcnt vmcnt(9)"}
    """)
    seg_params()
    q_scale()
    q_load(1)
    e(f"""
    L_first:
    s_mov_b32 s{sT0}, s{sI}
    """)
    if NS & (NS - 1):
        e(f"s_mul_i32 s{sT1}, s{sI}, {(65536 + NS - 1) // NS}\ns_lshr_b32 s{sT1}, s{sT1}, 16\ns_mul_i32 s{sT1}, s{sT1}, {NS}\ns_sub_u32 s{sT0}, s{sI}, s{sT1}")
    else:
        e(f"s_and_b32 s{sT0}, s{sI}, {NS-1}")
    e(f"s_lshl_b32 s{sT1}, s{sT0}, 13")
    for k4 in range(4): e(f"v_add_u32 v{vS[1]+k4}, s{sT1}, v{vKA+k4}")
    for j in range(4): e(kread(j, 0, vS[1]))
    for i in range(64): e(f"v_mov_b32 v{vO+i}, 0")
    for i in range(4): e(f"v_mov_b32 v{vL+i}, 0")
    for j in range(8):
        e(f"s_waitcnt lgkmcnt({min(3, 7-j)})"); e(qk(j, 0, vS[0], True)); e(qk(j, 1, vS[0], True))
        if j < 4: e(kread(j + 4, 0, vS[1]))
    e(f"s_nop 7\ns_cmp_lg_u32 s{sI}, s{sMK}\ns_cbranch_scc1 L_f_nomask")
    mask_block(vS[0])
    e("L_f_nomask:")
    rowmax(vS[0])
    for q in range(2):
        for i in range(8): e(f"v_sub_f32 v{SI(vS[0], q, i)}, v{SI(vS[0], q, i)}, v{MX[q]}")
        for i in range(4): e(f"v_sub_f32 v{vNM+4*q+i}, 0, v{MX[q]}")
    for x in soft(vS[0], 0): e(x)
    if FU:
        e(f"s_cmp_lt_i32 s{sPD}, 0\ns_cbranch_scc1 L_f_nosig\ns_waitcnt vmcnt(8)")
        go("a"); signal(sPD)
        e(f"s_mov_b32 s{sPD}, -1\nL_f_nosig:")
    e(f"s_bitcmp0_b32 s{sT0}, 0\ns_cbranch_scc1 L_f_even")
    for i in range(8, 16): e(f"v_mov_b32 v{vS[1]+i}, v{vS[0]+i}")
    for i in range(8): e(f"v_mov_b32 v{vS[1]+i}, v{vS[0]+i}")
    e(f"L_f_even:\ns_add_u32 s{sI}, s{sI}, 1")
    for p in range(NS - 1):
        e(f"s_cmp_eq_u32 s{sT0}, {p}\ns_cbranch_scc1 L_ph{p+1}")
    e("s_branch L_ph0")
    if FU:
        BUF, vML, vM, vAL, vA2 = (64, 104, 136, 184), 168, 216, 218, 222
        LL = (vT, vU)
        e("L_pdone:\ns_waitcnt vmcnt(0)")
        go("b"); signal(sPD)
        e(f"""
        s_branch L_done
        L_merge:
        s_bcnt1_i32_b64 s{sKK}, s[{sMS}:{sMS+1}]
        s_cmp_eq_u32 s{sKK}, 0
        s_cbranch_scc1 L_out
        """)
        go("c")
        e(f"""
        s_add_u32 s{sSL}, s{sSL}, s{sBB}
        s_lshl_b32 s{sT1}, s{sSL}, 2
        s_add_u32 s{sT1}, s{sT1}, s{sW}
        s_lshl_b32 s{sT1}, s{sT1}, {FS}
        s_add_u32 s{sT1}, s{sT1}, {FLAG_OFF}
        v_lshlrev_b32 v{vE}, {FS+2}, v{vLane}
        s_mov_b64 exec, s[{sMS}:{sMS+1}]
        buffer_load_dword v{vE+1}, v{vE}, s[{SW}:{SW+3}], s{sT1} offen sc1
        s_mov_b64 exec, -1
        v_sub_f32 v{vM}, 0, v{vNM}
        v_sub_f32 v{vM+1}, 0, v{vNM+4}
        v_and_b32 v{vA}, 15, v{vLane}
        v_lshlrev_b32 v{vA}, 3, v{vA}
        v_add_u32 v{vA}, {ML_OFF}, v{vA}
        v_lshlrev_b32 v{vA2}, 4, v{vLane}
        v_add_u32 v{vA2+1}, 4096, v{vA2}
        s_mov_b64 exec, s[{sMS}:{sMS+1}]
        L_poll:
        s_waitcnt vmcnt(0)
        v_cmp_ne_u32 vcc, 1, v{vE+1}
        s_sub_u32 s{sTM}, s{sTM}, 1
        s_cbranch_scc1 L_ready
        s_cbranch_vccz L_ready
        buffer_load_dword v{vE+1}, v{vE}, s[{SW}:{SW+3}], s{sT1} offen sc1
        s_branch L_poll
        L_ready:
        s_mov_b64 exec, -1
        L_round:
        """)
        for c in range(4):
            e(f"""
            s_ff1_i32_b64 s{sT0}, s[{sMS}:{sMS+1}]
            s_bitset0_b64 s[{sMS}:{sMS+1}], s{sT0}
            s_add_u32 s{sT0}, s{sT0}, s{sSL}
            s_lshl_b32 s{sT0}, s{sT0}, 2
            s_add_u32 s{sT0}, s{sT0}, s{sW}
            s_lshl_b32 s{sT1}, s{sT0}, 9
            s_lshl_b32 s{98+c}, s{sT0}, 13
            s_cmp_gt_i32 s{sKK}, {c}
            s_cselect_b32 s{sT1}, s{sT1}, {OOB:#x}
            s_cselect_b32 s{98+c}, s{98+c}, {OOB:#x}
            buffer_load_dwordx2 {R2(vML+4*c)}, v{vA}, s[{SW}:{SW+3}], s{sT1} offen sc1
            buffer_load_dwordx2 {R2(vML+4*c+2)}, v{vA}, s[{SW}:{SW+3}], s{sT1} offen offset:128 sc1
            """)
        for c in range(4):
            for k in range(8):
                e(f"buffer_load_dwordx4 {R4(BUF[c]+4*k)}, v{vA2+(k>>2)}, s[{SW}:{SW+3}], s{98+c} offen offset:{1024*(k&3)} sc1")
        e("s_waitcnt vmcnt(32)")
        for c in range(1, 4):
            e(f"s_cmp_gt_i32 s{sKK}, {c}\ns_cselect_b32 s3, 0, {NEGINF:#x}\nv_add_f32 v{vML+4*c}, s3, v{vML+4*c}\nv_add_f32 v{vML+4*c+2}, s3, v{vML+4*c+2}")
        for q in range(2):
            e(f"v_max3_f32 v{vE+q}, v{vM+q}, v{vML+2*q}, v{vML+4+2*q}\nv_max3_f32 v{vE+q}, v{vE+q}, v{vML+8+2*q}, v{vML+12+2*q}")
        for q in range(2):
            e(f"v_sub_f32 v{vAL+2*q}, v{vM+q}, v{vE+q}\nv_mov_b32 v{vM+q}, v{vE+q}")
            for c in range(4): e(f"v_sub_f32 v{vML+4*c+2*q}, v{vML+4*c+2*q}, v{vE+q}")
        for q in range(2):
            e(f"v_exp_f32 v{vAL+2*q}, v{vAL+2*q}")
            for c in range(4): e(f"v_exp_f32 v{vML+4*c+2*q}, v{vML+4*c+2*q}")
        e("s_nop 0")
        for q in range(2):
            e(f"v_mul_f32 v{LL[q]}, v{LL[q]}, v{vAL+2*q}")
            for c in range(4): e(f"v_fmac_f32 v{LL[q]}, v{vML+4*c+2*q+1}, v{vML+4*c+2*q}")
        def oscale(w):
            for db in range(8):
                for q in range(2):
                    for h2 in range(2):
                        r = vO + 8 * db + 4 * q + 2 * h2
                        e(f"v_pk_mul_f32 {R2(r)}, {R2(r)}, {R2(w+2*q)} op_sel_hi:[1,0]")
        oscale(vAL)
        for c in range(4):
            if c: e(f"s_cmp_gt_i32 s{sKK}, {c}\ns_cbranch_scc0 L_out")
            for k in range(8):
                q, pp = k >> 2, k & 3
                if not k & 1: e(f"s_waitcnt vmcnt({32-8*c-k-2})")
                for n in range(4):
                    r = vO + 8 * (2 * pp + (n >> 1)) + 4 * q + 2 * (n & 1)
                    x, t = BUF[c] + 4 * k + n, vE + 2 * (n & 1)
                    e(f"v_lshlrev_b32 v{t}, 16, v{x}\nv_and_b32 v{t+1}, 0xffff0000, v{x}\nv_pk_fma_f32 {R2(r)}, {R2(t)}, {R2(vML+4*c+2*q)}, {R2(r)} op_sel_hi:[1,0,1]")
        e(f"""
        s_sub_i32 s{sKK}, s{sKK}, 4
        s_cmp_gt_i32 s{sKK}, 0
        s_cbranch_scc1 L_round
        L_out:
        v_rcp_f32 v{vAL}, v{vT}
        v_rcp_f32 v{vAL+2}, v{vU}
        s_lshl_b32 s{sT0}, s{sBB}, 3
        s_add_u32 s{sT0}, s{sT0}, s{sH}
        s_lshl_b32 s{sT0}, s{sT0}, 2
        s_add_u32 s{sT0}, s{sT0}, s{sW}
        s_lshl_b32 s{sT0}, s{sT0}, 13
        s_add_u32 s{sT1}, s{sT0}, 4096
        v_and_b32 v{vA}, 15, v{vLane}
        v_lshlrev_b32 v{vA}, 8, v{vA}
        v_bfe_u32 v{vT2}, v{vLane}, 4, 1
        v_lshl_add_u32 v{vA}, v{vT2}, 5, v{vA}
        v_lshrrev_b32 v{vT2}, 5, v{vLane}
        v_lshl_add_u32 v{vA}, v{vT2}, 4, v{vA}
        s_waitcnt vmcnt(0)
        """)
        oscale(vAL)
        for c in range(8):
            q, pp = c >> 2, c & 3
            for n in range(4):
                r = vO + 8 * (2 * pp + (n >> 1)) + 4 * q + 2 * (n & 1)
                e(f"v_cvt_pk_bf16_f32 v{vV+4*c+n}, v{r}, v{r+1}")
            if c:
                d = vV + 4 * (c - 1)
                e(f"v_permlane16_swap_b32 v{d}, v{d+2}\nv_permlane16_swap_b32 v{d+1}, v{d+3}")
            if c > 1:
                e(f"buffer_store_dwordx4 {R4(vV+4*(c-2))}, v{vA}, s[{SO}:{SO+3}], s{sT0 if c-2<4 else sT1} offen offset:{64*((c-2)&3)}")
        e(f"s_nop 1\nv_permlane16_swap_b32 v{vV+28}, v{vV+30}\nv_permlane16_swap_b32 v{vV+29}, v{vV+31}")
        for c in (6, 7):
            e(f"buffer_store_dwordx4 {R4(vV+4*c)}, v{vA}, s[{SO}:{SO+3}], s{sT1} offen offset:{64*(c&3)}")
        e(f"s_cmp_lt_u32 s{sI}, s{sNT}\ns_cbranch_scc1 L_next")
    e("L_done:")
    if o["stamp"]:
        e("s_waitcnt vmcnt(0)")
        stamp(5); stamp(7, True)
        if o["stamp"] == 4:
            srd(e, SD, 28, 256)
            e(f"""
            s_nop 4
            v_readlane_b32 s94, v{vST}, 0
            v_readlane_b32 s95, v{vST}, 5
            v_readlane_b32 s96, v{vST}, 4
            v_readlane_b32 s97, v{vST}, 3
            v_readlane_b32 s98, v{vST}, 6
            v_readlane_b32 s99, v{vST}, 7
            s_cmp_lg_u32 s{sW}, 0
            s_cbranch_scc1 L_end
            s_sub_u32 s95, s95, s94
            s_sub_u32 s96, s96, s94
            s_sub_u32 s97, s97, s94
            s_sub_u32 s98, s99, s98
            v_mov_b32 v1, s95
            v_mov_b32 v2, s96
            v_mov_b32 v3, s97
            v_mov_b32 v4, s98
            s_mov_b64 exec, 1
            buffer_atomic_umax v1, off, s[{SD}:{SD+3}], 0 offset:4 sc1
            buffer_atomic_add v1, off, s[{SD}:{SD+3}], 0 offset:8 sc1
            buffer_atomic_umax v2, off, s[{SD}:{SD+3}], 0 offset:12 sc1
            buffer_atomic_add v2, off, s[{SD}:{SD+3}], 0 offset:16 sc1
            buffer_atomic_add v3, off, s[{SD}:{SD+3}], 0 offset:20 sc1
            buffer_atomic_add v4, off, s[{SD}:{SD+3}], 0 offset:24 sc1
            s_endpgm
            """)
        stamp_store(e, vST, sW, 0)
        if o["stamp"] == 2:
            e(f"""
            s_mov_b64 exec, -1
            s_lshl_b32 s3, s2, 2
            s_add_u32 s3, s3, s{sW}
            s_lshl_b32 s3, s3, 9
            s_add_u32 s3, s3, {STAMP_OFF + (1 << 20)}
            v_lshlrev_b32 v8, 2, v{vLane}
            buffer_store_dword v254, v8, s[{SW}:{SW+3}], s3 offen
            """)
    e("L_end:\ns_endpgm")

    vDK0, vDK1, vDV0, vDV1, vPG, vB, vC, vSt, vM = 1, 2, 3, 4, 5, 6, 7, 8, 9
    sLD, sKD, sVD, sPK, sPV = 9, 10, 11, 12, 13
    e("L_loader:")
    if o["prio"]: e("s_setprio 1")
    srd(e, SK, 18, KV_BYTES); srd(e, SV, 20, KV_BYTES); srd(e, SB, 22, 8 * 512 * 4)
    e(f"""
    s_and_b32 s{sT0}, s{sW}, 1
    s_lshl_b32 s{sT0}, s{sT0}, 3
    s_lshl_b32 s{sT1}, s{sH}, 8
    v_lshrrev_b32 v{vT}, 4, v{vLane}
    v_add_u32 v{vT2}, s{sT0}, v{vT}
    v_and_b32 v{vA}, 15, v{vLane}
    v_xor_b32 v{vM}, v{vA}, v{vT2}
    v_lshlrev_b32 v{vM}, 4, v{vM}
    v_lshl_add_u32 v{vM}, v{vT2}, 11, v{vM}
    v_add_u32 v{vDK0}, s{sT1}, v{vM}
    v_xor_b32 v{vDK1}, 64, v{vDK0}
    v_add_u32 v{vDK1}, {8192-1024}, v{vDK1}
    v_lshlrev_b32 v{vT}, 1, v{vT}
    v_xor_b32 v{vT}, s{sT0}, v{vT}
    v_xor_b32 v{vM}, v{vA}, v{vT}
    v_lshlrev_b32 v{vM}, 4, v{vM}
    v_lshl_add_u32 v{vM}, v{vT2}, 11, v{vM}
    v_add_u32 v{vDV0}, s{sT1}, v{vM}
    v_xor_b32 v{vDV1}, 128, v{vDV0}
    v_add_u32 v{vDV1}, {8192-1024}, v{vDV1}
    s_and_b32 s{sW}, s{sW}, 3
    s_lshl_b32 s{sKD}, s{sW}, 11
    s_add_u32 s{sVD}, s{sKD}, {VR + (NS-1)*8192}
    s_waitcnt lgkmcnt(0)
    """)
    batch_tables(e)
    wg_range(e, o, sJ, sLO, sNT, sT0, sT1)
    e(f"""
    s_cmp_eq_u32 s{sNT}, 0
    s_cbranch_scc1 L_end
    s_lshr_b32 s{sT0}, s{sW}, 1
    s_mov_b32 s{sLD}, 0
    s_mov_b32 s{sPK}, {OOB:#x}
    """)
    def plist(vD, off, sm):
        e(f"""
        v_add_u32 v{vM}, {off}, v{vLane}
        v_add_u32 v{vT}, s{sLO}, v{vM}
        v_mov_b32 v{vB}, 0
        v_mov_b32 v{vC}, s{SC}
        v_mov_b32 v{vSt}, 0
        """)
        for b in range(1, 8):
            e(f"""
            v_cmp_le_u32 vcc, s{SS+b}, v{vT}
            v_mov_b32 v{vT2}, s{SC+b}
            v_mov_b32 v{vA}, s{SS+b}
            v_cndmask_b32 v{vC}, v{vC}, v{vT2}, vcc
            v_cndmask_b32 v{vSt}, v{vSt}, v{vA}, vcc
            v_addc_co_u32 v{vB}, vcc, 0, v{vB}, vcc
            """)
        e(f"""
        v_sub_u32 v{vT}, v{vT}, v{vSt}
        v_lshl_add_u32 v{vT}, v{vT}, 1, s{sT0}
        v_lshl_add_u32 v{vT2}, v{vB}, 9, v{vT}
        v_lshlrev_b32 v{vT2}, 2, v{vT2}
        buffer_load_dword v{vD}, v{vT2}, s[{SB}:{SB+3}], 0 offen
        v_lshlrev_b32 v{vT}, 4, v{vT}
        v_cmp_lt_u32 s[{sm}:{sm+1}], v{vT}, v{vC}
        v_cmp_gt_u32 vcc, s{sNT}, v{vM}
        s_nop 1
        s_and_b64 s[{sm}:{sm+1}], s[{sm}:{sm+1}], vcc
        """)
    vPG2 = 10
    plist(vPG, 0, 94); plist(vPG2, 64, 96)
    e(f"""
    v_mov_b32 v{vT}, {OOB:#x}
    s_waitcnt vmcnt(0)
    v_lshlrev_b32 v{vPG}, 15, v{vPG}
    v_lshlrev_b32 v{vPG2}, 15, v{vPG2}
    v_cndmask_b32 v{vPG}, v{vT}, v{vPG}, s[94:95]
    v_cndmask_b32 v{vPG2}, v{vT}, v{vPG2}, s[96:97]
    """)
    def fetch(first=False):
        e(f"""
        s_mov_b32 s{sPV}, s{sPK}
        v_readlane_b32 s{sPK}, v{vPG}, s{sLD}
        v_readlane_b32 s3, v{vPG2}, s{sLD}
        s_cmp_lt_u32 s{sLD}, 64
        s_cselect_b32 s{sPK}, s{sPK}, s3
        s_add_u32 s{sLD}, s{sLD}, 1
        """)
    def issue(first=False):
        e(f"""
        s_mov_b32 m0, s{sKD}
        s_add_u32 s{sKD}, s{sKD}, 8192
        buffer_load_dwordx4 v{vDK0}, s[{SK}:{SK+3}], s{sPK} offen{nt} lds
        buffer_load_dwordx4 v{vDK1}, s[{SK}:{SK+3}], s{sPK} offen offset:1024{nt} lds
        s_mov_b32 m0, s{sVD}
        s_add_u32 s{sVD}, s{sVD}, 8192
        """)
        if not first:
            e(f"""
            buffer_load_dwordx4 v{vDV0}, s[{SV}:{SV+3}], s{sPV} offen{nt} lds
            buffer_load_dwordx4 v{vDV1}, s[{SV}:{SV+3}], s{sPV} offen offset:1024{nt} lds
            """)
        e(f"""
        s_cmp_ge_u32 s{sKD}, {VR}
        s_cselect_b32 s{sT0}, {VR}, 0
        s_sub_u32 s{sKD}, s{sKD}, s{sT0}
        s_cmp_ge_u32 s{sVD}, {2*VR}
        s_cselect_b32 s{sT0}, {VR}, 0
        s_sub_u32 s{sVD}, s{sVD}, s{sT0}
        """)
    DS = [int(c) for c in str(o["D"])] if o["D"] else [NS - 1] * 8
    tab = sum(d << (4 * i) for i, d in enumerate(DS))
    sD = 14
    e(f"""
    s_lshr_b32 s{sT0}, s18, 8
    s_add_u32 s{sT0}, s{sT0}, s{sH}
    s_and_b32 s{sT0}, s{sT0}, 7
    s_lshl_b32 s{sT0}, s{sT0}, 2
    s_lshr_b32 s{sD}, {tab:#x}, s{sT0}
    s_and_b32 s{sD}, s{sD}, 15
    s_add_u32 s{sNT}, s{sNT}, s{sD}
    s_add_u32 s{sNT}, s{sNT}, 1
    """)
    for t in range(max(DS)):
        fetch(); e("s_nop 1"); issue(t == 0)
        if t + 1 in DS and t + 1 != max(DS): e(f"s_cmp_eq_u32 s{sD}, {t+1}\ns_cbranch_scc1 L_pre{t+1}")
    for D in sorted(set(DS), reverse=True):
        e(f"L_pre{D}:")
        fetch()
        e(f"L_ld{D}:\ns_waitcnt vmcnt({4*(D-1)})\ns_barrier")
        issue()
        if o["stamp"] == 3:
            e(f"s_memrealtime s[92:93]\ns_memtime s[94:95]\ns_sub_u32 s{sT0}, s{sLD}, {D+1}\ns_mov_b32 m0, s{sT0}\ns_waitcnt lgkmcnt(0)\nv_writelane_b32 v20, s92, m0\nv_writelane_b32 v21, s94, m0")
        fetch()
        e(f"s_cmp_le_u32 s{sLD}, s{sNT}\ns_cbranch_scc1 L_ld{D}\ns_branch L_ldone")
    e("L_ldone:")
    if o["stamp"] == 3:
        srd(e, SW, 30, 32 << 20)
        e(f"""
        s_lshl_b32 s3, s2, 2
        s_add_u32 s3, s3, s{sW}
        s_lshl_b32 s3, s3, 9
        s_add_u32 s3, s3, {STAMP_OFF + (1 << 20)}
        v_lshlrev_b32 v8, 2, v{vLane}
        buffer_store_dword v20, v8, s[{SW}:{SW+3}], s3 offen
        buffer_store_dword v21, v8, s[{SW}:{SW+3}], s3 offen offset:256
        """)
    e("s_endpgm")
    return e.text(), NS * 16384

def build2(**kw):
    o = dict(DEF2); o.update(kw)
    k1, lds = main_kernel2(o)
    hdr = '.amdgcn_target "amdgcn-amd-amdhsa--gfx950"\n.text\n'
    if o["fuse"]:
        return f"; @launch grid=(256,1,1) block=(512,1,1) lds={lds}\n" + hdr + k1 + '.section .rodata,"a"\n' + desc(NAME + "_kernel", 256, 256)
    s = f"; @launch kernel={NAME}_kernel grid=(256,1,1) block=(512,1,1) lds={lds}\n"
    s += "; @launch kernel=combine_kernel grid=(256,1,1) block=(256,1,1) lds=0\n"
    return s + hdr + k1 + combine_kernel(o) + '.section .rodata,"a"\n' + desc(NAME + "_kernel", 256, 256) + desc("combine_kernel", 104, 104)

if __name__ == "__main__":
    kw = {}
    for a in sys.argv[2:]:
        k, v = a.split("="); kw[k] = int(v)
    open(sys.argv[1], "w").write(build2(**kw))
```

```python
import sys
from gen import *
import gen

DEF2 = dict(NS=4, nt=1, hmap=0, compute=1, stamp=0, pad=0, prio=1, empty=0, single=0, warm=0, cm=7, lay=16, D=0, cnt=0, fuse=1, tk=3, ss=1, nopoll=0, rot=1)
GUARD = f2u(1024.0)
FLAG_OFF = 14 << 20
FS = 6
POLL = 0x100000

def wg_range(e, o, sJ, sLO, sNT, t0, t1):
    P = o["pad"]
    e(f"""
    s_add_u32 s{t0}, s{SS+8}, {7*P}
    s_mul_i32 s{t0}, s{t0}, s35
    s_mul_i32 s{sLO}, s{sJ}, s{t0}
    s_add_u32 s{sNT}, s{sLO}, s{t0}
    s_lshr_b32 s{sLO}, s{sLO}, 17
    s_lshr_b32 s{sNT}, s{sNT}, 17
    """)
    if P:
        for b in range(1, 8):
            for r in (sLO, sNT):
                e(f"""
                s_sub_i32 s{t0}, s{r}, s{SS+b}
                s_max_i32 s{t0}, s{t0}, 0
                s_min_i32 s{t0}, s{t0}, {P}
                s_sub_u32 s{r}, s{r}, s{t0}
                """)
    e(f"s_sub_u32 s{sNT}, s{sNT}, s{sLO}")

def main_kernel2(o):
    NS = o["NS"]; nt = ["", " nt", " sc0", " sc1", " sc0 sc1", " sc0 nt", " sc1 nt", " sc0 sc1 nt"][o["nt"]]
    e = E()
    vO, vS, vNM, vQ, vQn, vK, vV, vP, vE, vKA, vVA = 0, (64, 80), 96, 104, 136, 168, 184, 216, 224, 228, 232
    vL, vLS, vT, vT2, vA, vLane, vU, vU2, vST = 240, 244, 248, 249, 250, 251, 252, 253, 255
    sH, sJ, sW, sLO, sNT = 4, 5, 6, 7, 8
    sI, sE, sMK, sREM, sSC = 9, 10, 11, 12, 13
    sBB, sG, sT0, sT1, sSEG = 14, 15, 32, 33, 34
    VR = NS * 8192
    FU = o["fuse"]
    SD = SK
    sMS, sNF, sTI, sPD, sCA, sKK, sTM, sSL = 86, 88, 89, 90, 91, 85, 96, 97
    vTK = 254
    sc = ["", " sc1", " sc1 nt", " sc0 sc1", " nt"][o["ss"]] if FU else ""
    def stamp(i, clk=False):
        if o["stamp"]:
            e(f"{'s_memtime' if clk else 's_memrealtime'} s[92:93]\ns_waitcnt lgkmcnt(0)\nv_writelane_b32 v{vST}, s92, {i}")
    e(f"""
    .globl {NAME}_kernel
    .p2align 8
    .type {NAME}_kernel,@function
    {NAME}_kernel:
    s_cmp_ge_u32 s2, {0 if o["empty"] else 256}
    s_cbranch_scc1 L_end
    s_load_dwordx16 s[16:31], s[0:1], 0
    """)
    stamp(0); stamp(6, True)
    cn = counts(o); base = min(cn)
    ex = [(c, k) for k in range(max(cn) - base) for c in range(8) if cn[c] - base > k]
    e(f"s_and_b32 s{sH}, s2, 7\ns_lshr_b32 s{sJ}, s2, 3")
    if ex:
        assert len(ex) <= 16
        tb = sum((c | (k << 3)) << (8 * i) for i, (c, k) in enumerate(ex))
        e(f"""
        s_mov_b32 s8, {tb & 0xffffffff:#x}
        s_mov_b32 s9, {(tb >> 32) & 0xffffffff:#x}
        s_mov_b32 s10, {(tb >> 64) & 0xffffffff:#x}
        s_mov_b32 s11, {(tb >> 96) & 0xffffffff:#x}
        s_sub_u32 s3, s2, {8*base}
        s_bitcmp1_b32 s3, 3
        s_cselect_b64 s[8:9], s[10:11], s[8:9]
        s_lshl_b32 s3, s3, 3
        s_lshr_b64 s[8:9], s[8:9], s3
        s_bfe_u32 s9, s8, 0x50003
        s_add_u32 s9, s9, {base}
        s_and_b32 s8, s8, 7
        s_cmp_ge_u32 s2, {8*base}
        s_cselect_b32 s{sH}, s8, s{sH}
        s_cselect_b32 s{sJ}, s9, s{sJ}
        """)
    magic_of_class(e, o, sH, 35)
    e(f"""
    v_lshrrev_b32 v{vT}, 6, v0
    v_and_b32 v{vLane}, 63, v0
    v_readfirstlane_b32 s{sW}, v{vT}
    s_waitcnt lgkmcnt(0)
    s_lshr_b32 s3, s18, 8
    s_sub_u32 s{sH}, s{sH}, s3
    s_and_b32 s{sH}, s{sH}, 7
    s_load_dwordx8 s[{SCL}:{SCL+7}], s[24:25], 0
    s_cmp_ge_u32 s{sW}, 4
    s_cbranch_scc1 L_loader
    """)
    srd(e, SQ, 16, Q_BYTES); srd(e, SW, 30, 32 << 20)
    if FU:
        srd(e, SD, 28, 256); srd(e, SO, 26, Q_BYTES)
        e(f"""
        s_lshl_b32 s{sCA}, s{sH}, 5
        s_mul_i32 s{sSL}, s{sH}, {NSLOT_H}
        v_mov_b32 v{vTK}, 0
        s_or_b32 s3, s{sJ}, s{sW}
        s_cbranch_scc1 L_noclr
        s_lshl_b32 s3, s{sSL}, {FS+2}
        s_add_u32 s3, s3, {FLAG_OFF}
        v_lshlrev_b32 v1, {FS}, v{vLane}
        v_add_u32 v2, {64 << FS}, v1
        v_add_u32 v3, {(4*NSLOT_H - 64) << FS}, v1
        buffer_store_dword v{vTK}, v1, s[{SW}:{SW+3}], s3 offen sc1
        buffer_store_dword v{vTK}, v2, s[{SW}:{SW+3}], s3 offen sc1
        buffer_store_dword v{vTK}, v3, s[{SW}:{SW+3}], s3 offen sc1
        v_mov_b32 v4, 1
        s_mov_b64 exec, 1
        s_waitcnt vmcnt(0)
        buffer_store_dword v4, off, s[{SD}:{SD+3}], s{sCA} sc1
        s_mov_b64 exec, -1
        L_noclr:
        """)
    e(f"""
    v_and_b32 v{vT}, 15, v{vLane}
    v_lshrrev_b32 v{vT2}, 4, v{vLane}
    v_xor_b32 v{vA}, v{vT}, v{vT2}
    v_lshlrev_b32 v{vA}, 4, v{vA}
    v_lshl_add_u32 v{vKA}, v{vT}, 8, v{vA}
    """)
    for k4 in range(1, 4):
        e(f"v_xor_b32 v{vKA+k4}, {k4<<6}, v{vKA}")
    e(f"""
    v_lshrrev_b32 v{vT}, 2, v{vLane}
    v_lshrrev_b32 v{vT2}, 5, v{vLane}
    v_lshlrev_b32 v{vT2}, 2, v{vT2}
    v_xor_b32 v{vT2}, v{vT2}, v{vT}
    v_and_b32 v{vT2}, 7, v{vT2}
    v_lshlrev_b32 v{vA}, 8, v{vT}
    v_lshl_add_u32 v{vA}, v{vT2}, 5, v{vA}
    v_and_b32 v{vT}, 3, v{vLane}
    v_lshl_add_u32 v{vA}, v{vT}, 3, v{vA}
    v_add_u32 v{vVA}, {VR}, v{vA}
    """)
    for db in range(1, 8):
        e(f"v_xor_b32 v{vVA+db}, {db<<5}, v{vVA}")
    e(f"s_mov_b32 s{sG}, {GUARD:#x}\ns_waitcnt lgkmcnt(0)")
    stamp(1)
    batch_tables(e)
    wg_range(e, o, sJ, sLO, sNT, sT0, sT1)
    e(f"""
    s_cmp_eq_u32 s{sNT}, 0
    s_cbranch_scc1 L_end
    s_mov_b32 s{sBB}, 0
    """)
    for b in range(1, 8):
        e(f"s_cmp_le_u32 s{SS+b}, s{sLO}\ns_cselect_b32 s{sBB}, {b}, s{sBB}")
    def seg_params():
        e(f"""
        s_mov_b32 m0, s{sBB}
        s_nop 0
        s_movrels_b32 s{sREM}, s{SC}
        s_movrels_b32 s{sMK}, s{SS+1}
        s_movrels_b32 s{sSC}, s{SCL}
        s_sub_u32 s{sMK}, s{sMK}, s{sLO}
        s_min_u32 s{sE}, s{sMK}, s{sNT}
        s_sub_u32 s{sMK}, s{sMK}, 1
        s_sub_u32 s{sREM}, s{sREM}, 1
        s_and_b32 s{sREM}, s{sREM}, 31
        s_add_u32 s{sREM}, s{sREM}, 1
        s_cmp_gt_i32 s{sSC}, 0
        s_cselect_b32 s{sSC}, {CSCALE:#x}, 0
        """)
    def q_load(boff):
        e(f"""
        s_add_u32 s{sT0}, s{sBB}, {boff}
        s_lshl_b32 s{sT0}, s{sT0}, 3
        s_add_u32 s{sT0}, s{sT0}, s{sH}
        s_lshl_b32 s{sT0}, s{sT0}, 2
        s_add_u32 s{sT0}, s{sT0}, s{sW}
        s_lshl_b32 s{sT0}, s{sT0}, 13
        v_and_b32 v{vT}, 15, v{vLane}
        v_lshrrev_b32 v{vT2}, 4, v{vLane}
        v_lshlrev_b32 v{vT}, 8, v{vT}
        v_lshl_add_u32 v{vT}, v{vT2}, 4, v{vT}
        v_add_u32 v{vT2}, 4096, v{vT}
        """)
        if boff:
            e(f"s_cmp_lt_u32 s{sE}, s{sNT}\ns_cselect_b32 s{sT0}, s{sT0}, {OOB:#x}")
        for ks in range(8):
            e(f"buffer_load_dwordx4 v[{vQn+4*ks}:{vQn+4*ks+3}], v{vT2 if ks >= 4 else vT}, s[{SQ}:{SQ+3}], s{sT0} offen offset:{64*(ks&3)}")
    def q_scale():
        for i in range(32):
            a, b = vE + 2 * (i & 1), vE + 2 * (i & 1) + 1
            e(f"""
            v_lshlrev_b32 v{a}, 16, v{vQn+i}
            v_and_b32 v{b}, 0xffff0000, v{vQn+i}
            v_mul_f32 v{a}, s{sSC}, v{a}
            v_mul_f32 v{b}, s{sSC}, v{b}
            v_cvt_pk_bf16_f32 v{vQ+i}, v{a}, v{b}
            """)
    seg_params()
    q_load(0)
    if FU:
        P = o["pad"]
        e(f"""
        s_add_u32 s{sT0}, s{sLO}, s{sNT}
        s_mov_b32 s{sMS}, 0
        s_mov_b32 s{sMS+1}, s{SS+1}
        """)
        for b in range(1, 8):
            e(f"s_cmp_lt_u32 s{SS+b}, s{sT0}\ns_cselect_b32 s{sMS}, s{SS+b}, s{sMS}\ns_cselect_b32 s{sMS+1}, s{SS+b+1}, s{sMS+1}")
        e(f"""
        s_add_u32 s{sT0}, s{SS+8}, {7*P}
        s_mul_i32 s{sT0}, s{sT0}, s35
        v_mul_lo_u32 v1, s{sT0}, v{vLane}
        v_add_u32 v2, s{sT0}, v1
        v_lshrrev_b32 v1, 17, v1
        v_lshrrev_b32 v2, 17, v2
        """)
        for b in range(1, 8) if P else ():
            for r in (1, 2):
                e(f"v_subrev_u32 v3, s{SS+b}, v{r}\nv_med3_i32 v3, v3, 0, {P}\nv_sub_u32 v{r}, v{r}, v3")
        e(f"""
        v_cmp_ge_u32 s[94:95], s{sMS+1}, v2
        v_max_u32 v1, s{sMS}, v1
        v_min_u32 v2, s{sMS+1}, v2
        v_cmp_lt_u32 vcc, v1, v2
        s_and_b32 s{sTI}, s{sJ}, 15
        s_add_u32 s{sTI}, s{sTI}, {o["tk"]}
        s_mov_b32 s{sPD}, -1
        s_mov_b64 s[{sMS}:{sMS+1}], vcc
        s_and_b64 s[94:95], s[94:95], vcc
        s_bcnt1_i32_b64 s{sT0}, s[94:95]
        s_bfm_b64 s[98:99], s{sJ}, 0
        s_and_b64 s[94:95], s[94:95], s[98:99]
        s_bcnt1_i32_b64 s{sT1}, s[94:95]
        s_mov_b32 s{sNF}, {"s%d" % sW if o["rot"] else 0}
        s_cmp_ge_u32 s{sNF}, s{sT0}
        s_cselect_b32 s3, s{sT0}, 0
        s_sub_u32 s{sNF}, s{sNF}, s3
        s_cmp_ge_u32 s{sNF}, s{sT0}
        s_cselect_b32 s3, s{sT0}, 0
        s_sub_u32 s{sNF}, s{sNF}, s3
        s_cmp_ge_u32 s{sNF}, s{sT0}
        s_cselect_b32 s3, s{sT0}, 0
        s_sub_u32 s{sNF}, s{sNF}, s3
        s_sub_u32 s{sNF}, s{sNF}, s{sT1}
        s_bitset0_b64 s[{sMS}:{sMS+1}], s{sJ}
        """)
    def ticket():
        e(f"buffer_load_dword v{vTK}, off, s[{SD}:{SD+3}], s{sCA} sc1\ns_mov_b32 s{sTI}, 0x7fffffff")
    def go(tag):
        e(f"""
        s_mov_b32 s{sTM}, {POLL:#x}
        L_go{tag}:
        v_readfirstlane_b32 s3, v{vTK}
        s_cmp_lg_u32 s3, 0
        s_cbranch_scc1 L_go{tag}_ok
        buffer_load_dword v{vTK}, off, s[{SD}:{SD+3}], s{sCA} sc1
        s_sub_u32 s{sTM}, s{sTM}, 1
        s_waitcnt vmcnt(0)
        s_cbranch_scc0 L_go{tag}
        L_go{tag}_ok:
        """)
    def signal(sA):
        e(f"""
        v_mov_b32 v{vA}, 1
        s_mov_b64 exec, 1
        buffer_store_dword v{vA}, off, s[{SW}:{SW+3}], s{sA} sc1
        s_mov_b64 exec, -1
        """)
    e(f"s_mov_b32 s{sI}, 0\ns_mov_b32 s{sSEG}, 0\ns_waitcnt vmcnt(0)")
    q_scale()
    q_load(1)
    stamp(2)
    e("s_barrier")
    stamp(3)
    e("s_branch L_first")

    def kread(j, slot, base=vKA):
        r = vK + 4 * (j & 3)
        return f"ds_read_b128 v[{r}:{r+3}], v{base+(j&3)} offset:{slot*8192+4096*(j>>2)}"
    def vread(db, u, slot, base=vVA):
        r = vV + 4 * db + 2 * u
        return f"ds_read_b64_tr_b16 v[{r}:{r+1}], v{base+db} offset:{slot*8192+4096*u}"
    R4 = lambda r: f"v[{r}:{r+3}]"
    R2 = lambda r: f"v[{r}:{r+1}]"
    SI = lambda S, qb, i: S + 8 * (i >> 2) + 4 * qb + (i & 3)
    def qk(j, qb, S, zero=False):
        d = S + 8 * (j >> 2) + 4 * qb
        c = R4(d) if j & 3 else ("0" if zero else R4(vNM + 4 * qb))
        return f"v_mfma_f32_16x16x32_bf16 {R4(d)}, {R4(vK+4*(j&3))}, {R4(vQ+16*qb+4*(j&3))}, {c}"
    def pv(db, qb):
        d = vO + 8 * db + 4 * qb
        return f"v_mfma_f32_16x16x32_bf16 {R4(d)}, {R4(vV+4*db)}, {R4(vP+4*qb)}, {R4(d)}"
    def soft(S, qb):
        EX = lambda i: f"v_exp_f32 v{vE+(i&3)}, v{SI(S, qb, i)}"
        CV = lambda m: f"v_cvt_pk_bf16_f32 v{vP+4*qb+m}, v{vE+((2*m)&3)}, v{vE+((2*m+1)&3)}"
        LS = R2(vLS + 2 * qb)
        return [EX(0), EX(1), EX(2), EX(3), CV(0), f"v_pk_add_f32 {LS}, {R2(vE)}, {R2(vE+2)}", CV(1),
                EX(4), EX(5), EX(6), f"v_pk_add_f32 {LS}, {LS}, {R2(vE)}", EX(7), CV(2),
                f"v_pk_add_f32 {LS}, {LS}, {R2(vE+2)}", CV(3)]
    def guard():
        return [f"v_max3_f32 v{vT}, v{vLS}, v{vLS+1}, v{vLS+2}", f"v_max_f32 v{vT}, v{vT}, v{vLS+3}", f"v_cmp_lt_f32 vcc, s{sG}, v{vT}"]
    def lacc():
        return [f"v_pk_add_f32 {R2(vL+2*q)}, {R2(vL+2*q)}, {R2(vLS+2*q)}" for q in range(2)]
    def mask_block(S):
        e(f"s_nop 7\nv_lshrrev_b32 v{vA}, 4, v{vLane}\nv_lshlrev_b32 v{vA}, 2, v{vA}\nv_mov_b32 v{vT}, {NEGINF:#x}")
        for i in range(8):
            e(f"""
            v_add_u32 v{vT2}, {(i & 3) + 16 * (i >> 2)}, v{vA}
            v_cmp_gt_u32 vcc, s{sREM}, v{vT2}
            s_nop 1
            v_cndmask_b32 v{SI(S, 0, i)}, v{vT}, v{SI(S, 0, i)}, vcc
            v_cndmask_b32 v{SI(S, 1, i)}, v{vT}, v{SI(S, 1, i)}, vcc
            """)
    def xlane(op, regs):
        tm = (vT2, vU2)
        for sw in ("v_permlane16_swap_b32", "v_permlane32_swap_b32"):
            for r, t in zip(regs, tm): e(f"v_mov_b32 v{t}, v{r}")
            e("s_nop 1")
            for r, t in zip(regs, tm): e(f"{sw} v{r}, v{t}")
            e("s_nop 1")
            for r, t in zip(regs, tm): e(f"{op} v{r}, v{r}, v{t}")
    MX = (vT, vU)
    def rowmax(S):
        for q in range(2):
            x = lambda i: SI(S, q, i)
            e(f"""
            v_max3_f32 v{MX[q]}, v{x(0)}, v{x(1)}, v{x(2)}
            v_max3_f32 v{MX[q]}, v{MX[q]}, v{x(3)}, v{x(4)}
            v_max3_f32 v{MX[q]}, v{MX[q]}, v{x(5)}, v{x(6)}
            v_max_f32 v{MX[q]}, v{MX[q]}, v{x(7)}
            """)
        xlane("v_max_f32", MX)
    def slow(So, Sn):
        e("s_nop 7")
        rowmax(So)
        AL = (vT2, vU2)
        for q in range(2): e(f"v_max_f32 v{MX[q]}, 0, v{MX[q]}\nv_exp_f32 v{AL[q]}, -v{MX[q]}")
        for q in range(2):
            for i in range(8): e(f"v_sub_f32 v{SI(So, q, i)}, v{SI(So, q, i)}, v{MX[q]}")
            for i in range(4): e(f"v_sub_f32 v{vNM+4*q+i}, v{vNM+4*q+i}, v{MX[q]}")
            if Sn is not None:
                for i in range(8): e(f"v_sub_f32 v{SI(Sn, q, i)}, v{SI(Sn, q, i)}, v{MX[q]}")
            for db in range(8):
                for i in range(4): e(f"v_mul_f32 v{vO+8*db+4*q+i}, v{vO+8*db+4*q+i}, v{AL[q]}")
            for i in range(2): e(f"v_mul_f32 v{vL+2*q+i}, v{vL+2*q+i}, v{AL[q]}")
        for q in range(2):
            for x in soft(So, q): e(x)
        e("s_nop 1")

    class Lds:
        def __init__(self): self.q = []
        def rd(self, tag, ins): e(ins); self.q.append(tag)
        def need(self, tag):
            idx = [i for i, t in enumerate(self.q) if t == tag]
            if idx:
                n = len(self.q) - 1 - idx[-1]
                assert n <= 15
                e(f"s_waitcnt lgkmcnt({n})"); self.q = self.q[idx[-1] + 1:]

    e(".p2align 6")
    mark = len(e.l)
    for p in range(NS):
        Sn, So = vS[p & 1], vS[(p + 1) & 1]
        ks_, vs_ = p, (p - 1) % NS
        e(f"L_ph{p}:\ns_barrier")
        e(f"s_cmp_ge_u32 s{sI}, s{sE}\ns_cbranch_scc1 L_bnd{p}")
        if o["compute"]:
            L = Lds()
            sb, sa = soft(So, 1), soft(Sn, 0)
            fill = [[] for _ in range(32)]
            for j in range(4): fill[2 * j + 1].append(("K", j + 4))
            for n in range(16): fill[3 + n].append(("V", n))
            rest = sb[5:] + guard()
            for n, x in enumerate(rest): fill[n + 1].append(x)
            fill[16] += [lacc()[0], f"s_cmp_eq_u32 s{sI}, s{sMK}"]
            fill[17] += [lacc()[1], f"s_cbranch_scc1 L_mask{p}\nL_mask{p}_ret:"]
            for n, x in zip((18, 19, 20, 21), sa[:4]): fill[n].append(x)
            fill[22].append(sa[5])
            fill[24] += [sa[4], sa[6]]
            for n, x in zip((24, 25, 26, 27, 27, 28, 29, 30), sa[7:]): fill[n].append(x)
            if FU: fill[25] += [f"s_cmp_ge_i32 s{sI}, s{sTI}", f"s_cbranch_scc1 L_tick{p}\nL_tick{p}_ret:"]
            fill[30].append(f"s_add_u32 s{sI}, s{sI}, 1")
            for j in range(4): L.rd(("K", j), kread(j, ks_))
            for x in sb[:5]: e(x)
            for sl in range(32):
                if sl < 16:
                    if not sl & 1: L.need(("K", sl >> 1))
                    e(qk(sl >> 1, sl & 1, Sn))
                else:
                    if sl == 16: e(f"s_cbranch_vccnz L_slow{p}\nL_slow{p}_ret:")
                    if sl < 24: L.need(("V", 2 * (sl - 16) + 1))
                    e(pv((sl - 16) & 7, (sl - 16) >> 3))
                for x in fill[sl]:
                    if isinstance(x, tuple):
                        L.rd(x, kread(x[1], ks_) if x[0] == "K" else vread(x[1] >> 1, x[1] & 1, vs_))
                    else: e(x)
        else:
            e(f"s_add_u32 s{sI}, s{sI}, 1\nL_slow{p}_ret:\nL_mask{p}_ret:")
        if p == NS - 1:
            e("s_branch L_ph0")
    drop = [x for b, xs in ((1, ["ds_read"]), (2, ["v_mfma"]), (4, ["v_exp", "v_pk_add", "v_cvt_pk"])) if not o["cm"] & b for x in xs]
    e.l[mark:] = [x for x in e.l[mark:] if not any(x.strip().startswith(d) for d in drop)]
    for p in range(NS):
        Sn, So = vS[p & 1], vS[(p + 1) & 1]
        e(f"L_slow{p}:"); slow(So, Sn); e(f"s_branch L_slow{p}_ret")
        e(f"L_mask{p}:"); mask_block(Sn); e(f"s_branch L_mask{p}_ret")
        if FU and o["compute"]: e(f"L_tick{p}:"); ticket(); e(f"s_branch L_tick{p}_ret")
        e(f"L_bnd{p}:")
        vr = [vread(db, u, (p - 1) % NS) for db in range(8) for u in range(2)]
        for x in vr[:12]: e(x)
        if So != vS[0]:
            for i in range(16): e(f"v_mov_b32 v{vS[0]+i}, v{So+i}")
        e("s_waitcnt lgkmcnt(8)")
        for x in vr[12:]: e(x)
        e("s_branch L_last")
    e("L_last:")
    for x in soft(vS[0], 1) + guard(): e(x)
    e("s_nop 1\ns_cbranch_vccz L_last_ok")
    slow(vS[0], None)
    e("L_last_ok:")
    for x in lacc(): e(x)
    e("s_waitcnt lgkmcnt(0)")
    for qb in range(2):
        for db in range(8): e(pv(db, qb))
    stamp(4)
    e(f"v_add_f32 v{vT}, v{vL}, v{vL+1}\nv_add_f32 v{vU}, v{vL+2}, v{vL+3}")
    xlane("v_add_f32", MX)
    if FU:
        e(f"""
        s_add_u32 s{sPD}, s{sSL}, s{sJ}
        s_add_u32 s{sPD}, s{sPD}, s{sBB}
        s_lshl_b32 s{sPD}, s{sPD}, 2
        s_add_u32 s{sPD}, s{sPD}, s{sW}
        s_lshl_b32 s{sPD}, s{sPD}, {FS}
        s_add_u32 s{sPD}, s{sPD}, {FLAG_OFF}
        s_waitcnt vmcnt(0)
        s_cmp_lt_u32 s{sI}, s{sNT}
        s_cbranch_scc0 L_fin
        s_mov_b32 m0, s{sBB}
        s_nop 0
        s_movrels_b32 s{sT0}, s{SS}
        s_cmp_lt_u32 s{sT0}, s{sLO}
        s_cbranch_scc0 L_out
        s_mul_i32 s{sT0}, s{sW}, 8704
        s_add_u32 s{sT0}, s{sT0}, {2*VR}
        v_and_b32 v{vA}, 16, v{vLane}
        v_cmp_eq_u32 vcc, 0, v{vA}
        v_lshl_add_u32 v{vA}, v{vLane}, 3, s{sT0}
        v_lshl_add_u32 v{vE}, v{vLane}, 4, s{sT0}
        v_cndmask_b32 v{vT2}, v{vU}, v{vT}, vcc
        v_cndmask_b32 v{vT}, v{vNM+4}, v{vNM}, vcc
        v_sub_f32 v{vT}, 0, v{vT}
        ds_write_b64 v{vA}, v[{vT}:{vT+1}] offset:8192
        """)
        for c in range(8):
            q, pp = c >> 2, c & 3
            for n in range(4):
                r = vO + 8 * (2 * pp + (n >> 1)) + 4 * q + 2 * (n & 1)
                e(f"v_cvt_pk_bf16_f32 v{vV+4*c+n}, v{r}, v{r+1}")
            e(f"ds_write_b128 v{vE}, v[{vV+4*c}:{vV+4*c+3}] offset:{1024*c}")
        e(f"""
        s_branch L_next
        L_fin:
        s_cmp_eq_u32 s{sNF}, 0
        s_cbranch_scc1 L_merge
        L_part:
        """)
    e(f"""
    v_and_b32 v{vA}, 16, v{vLane}
    v_cmp_eq_u32 vcc, 0, v{vA}
    s_add_u32 s{sT0}, s{sJ}, s{sBB}
    s_mul_i32 s{sT1}, s{sH}, {NSLOT_H}
    s_add_u32 s{sT0}, s{sT0}, s{sT1}
    v_cndmask_b32 v{vT2}, v{vU}, v{vT}, vcc
    v_cndmask_b32 v{vT}, v{vNM+4}, v{vNM}, vcc
    s_lshl_b32 s{sT0}, s{sT0}, 2
    s_add_u32 s{sT0}, s{sT0}, s{sW}
    v_sub_f32 v{vT}, 0, v{vT}
    s_lshl_b32 s{sT1}, s{sT0}, 9
    s_add_u32 s{sT1}, s{sT1}, {ML_OFF}
    v_lshlrev_b32 v{vA}, 3, v{vLane}
    s_lshl_b32 s{sT0}, s{sT0}, 13
    buffer_store_dwordx2 v[{vT}:{vT+1}], v{vA}, s[{SW}:{SW+3}], s{sT1} offen{sc}
    s_add_u32 s{sT1}, s{sT0}, 4096
    v_lshlrev_b32 v{vU}, 4, v{vLane}
    """)
    for c in range(8):
        q, pp = c >> 2, c & 3
        for n in range(4):
            r = vO + 8 * (2 * pp + (n >> 1)) + 4 * q + 2 * (n & 1)
            e(f"v_cvt_pk_bf16_f32 v{vV+4*c+n}, v{r}, v{r+1}")
        e(f"buffer_store_dwordx4 v[{vV+4*c}:{vV+4*c+3}], v{vU}, s[{SW}:{SW+3}], s{sT0 if c<4 else sT1} offen offset:{1024*(c&3)}{sc}")
    e(f"""
    s_cmp_ge_u32 s{sI}, s{sNT}
    s_cbranch_scc1 {"L_pdone" if FU else "L_done"}
    L_next:
    s_add_u32 s{sBB}, s{sBB}, 1
    {"" if FU else "s_waitcnt vmcnt(9)"}
    """)
    seg_params()
    q_scale()
    q_load(1)
    e(f"""
    L_first:
    s_mov_b32 s{sT0}, s{sI}
    """)
    if NS & (NS - 1):
        e(f"s_mul_i32 s{sT1}, s{sI}, {(65536 + NS - 1) // NS}\ns_lshr_b32 s{sT1}, s{sT1}, 16\ns_mul_i32 s{sT1}, s{sT1}, {NS}\ns_sub_u32 s{sT0}, s{sI}, s{sT1}")
    else:
        e(f"s_and_b32 s{sT0}, s{sI}, {NS-1}")
    e(f"s_lshl_b32 s{sT1}, s{sT0}, 13")
    for k4 in range(4): e(f"v_add_u32 v{vS[1]+k4}, s{sT1}, v{vKA+k4}")
    for j in range(4): e(kread(j, 0, vS[1]))
    for i in range(64): e(f"v_mov_b32 v{vO+i}, 0")
    for i in range(4): e(f"v_mov_b32 v{vL+i}, 0")
    for j in range(8):
        e(f"s_waitcnt lgkmcnt({min(3, 7-j)})"); e(qk(j, 0, vS[0], True)); e(qk(j, 1, vS[0], True))
        if j < 4: e(kread(j + 4, 0, vS[1]))
    e(f"s_nop 7\ns_cmp_lg_u32 s{sI}, s{sMK}\ns_cbranch_scc1 L_f_nomask")
    mask_block(vS[0])
    e("L_f_nomask:")
    rowmax(vS[0])
    for q in range(2):
        for i in range(8): e(f"v_sub_f32 v{SI(vS[0], q, i)}, v{SI(vS[0], q, i)}, v{MX[q]}")
        for i in range(4): e(f"v_sub_f32 v{vNM+4*q+i}, 0, v{MX[q]}")
    for x in soft(vS[0], 0): e(x)
    e(f"s_bitcmp0_b32 s{sT0}, 0\ns_cbranch_scc1 L_f_even")
    for i in range(8, 16): e(f"v_mov_b32 v{vS[1]+i}, v{vS[0]+i}")
    for i in range(8): e(f"v_mov_b32 v{vS[1]+i}, v{vS[0]+i}")
    e(f"L_f_even:\ns_add_u32 s{sI}, s{sI}, 1")
    for p in range(NS - 1):
        e(f"s_cmp_eq_u32 s{sT0}, {p}\ns_cbranch_scc1 L_ph{p+1}")
    e("s_branch L_ph0")
    if FU:
        BUF, vML, vM, vAL, vA2 = (64, 104, 136, 184), 168, 216, 218, 222
        LL = (vT, vU)
        e("L_pdone:\ns_waitcnt vmcnt(0)")
        go("b"); signal(sPD)
        e(f"""
        s_branch L_done
        L_merge:
        s_bcnt1_i32_b64 s{sKK}, s[{sMS}:{sMS+1}]
        s_cmp_eq_u32 s{sKK}, 0
        s_cbranch_scc1 L_out
        """)
        go("c")
        e(f"""
        s_add_u32 s{sSL}, s{sSL}, s{sBB}
        s_lshl_b32 s{sT1}, s{sSL}, 2
        s_add_u32 s{sT1}, s{sT1}, s{sW}
        s_lshl_b32 s{sT1}, s{sT1}, {FS}
        s_add_u32 s{sT1}, s{sT1}, {FLAG_OFF}
        v_lshlrev_b32 v{vE}, {FS+2}, v{vLane}
        s_mov_b64 exec, s[{sMS}:{sMS+1}]
        buffer_load_dword v{vE+1}, v{vE}, s[{SW}:{SW+3}], s{sT1} offen sc1
        s_mov_b64 exec, -1
        v_sub_f32 v{vM}, 0, v{vNM}
        v_sub_f32 v{vM+1}, 0, v{vNM+4}
        v_and_b32 v{vA}, 15, v{vLane}
        v_lshlrev_b32 v{vA}, 3, v{vA}
        v_add_u32 v{vA}, {ML_OFF}, v{vA}
        v_lshlrev_b32 v{vA2}, 4, v{vLane}
        v_add_u32 v{vA2+1}, 4096, v{vA2}
        s_mov_b64 exec, s[{sMS}:{sMS+1}]
        L_poll:
        s_waitcnt vmcnt(0)
        v_cmp_ne_u32 vcc, 1, v{vE+1}
        s_sub_u32 s{sTM}, s{sTM}, 1
        s_cbranch_scc1 L_ready
        {"s_branch" if o["nopoll"] else "s_cbranch_vccz"} L_ready
        buffer_load_dword v{vE+1}, v{vE}, s[{SW}:{SW+3}], s{sT1} offen sc1
        s_branch L_poll
        L_ready:
        s_mov_b64 exec, -1
        L_round:
        """)
        NSL = 6
        B16, MLR, SOF = (64, 80, 104, 120, 136, 152, 184, 200), (168, 172, 176, 180, 228, 232), (98, 99, 100, 101, 94, 95)
        for c in range(NSL):
            e(f"""
            s_ff1_i32_b64 s{sT0}, s[{sMS}:{sMS+1}]
            s_bitset0_b64 s[{sMS}:{sMS+1}], s{sT0}
            s_add_u32 s{sT0}, s{sT0}, s{sSL}
            s_lshl_b32 s{sT0}, s{sT0}, 2
            s_add_u32 s{sT0}, s{sT0}, s{sW}
            s_lshl_b32 s{sT1}, s{sT0}, 9
            s_lshl_b32 s{SOF[c]}, s{sT0}, 13
            s_cmp_gt_i32 s{sKK}, {c}
            s_cselect_b32 s{sT1}, s{sT1}, {OOB:#x}
            s_cselect_b32 s{SOF[c]}, s{SOF[c]}, {OOB:#x}
            buffer_load_dwordx2 {R2(MLR[c])}, v{vA}, s[{SW}:{SW+3}], s{sT1} offen sc1
            buffer_load_dwordx2 {R2(MLR[c]+2)}, v{vA}, s[{SW}:{SW+3}], s{sT1} offen offset:128 sc1
            """)
        def uload(u):
            for k in range(4):
                e(f"buffer_load_dwordx4 {R4(B16[u&7]+4*k)}, v{vA2+(u&1)}, s[{SW}:{SW+3}], s{SOF[u>>1]} offen offset:{1024*k} sc1")
        for u in range(8): uload(u)
        e("s_waitcnt vmcnt(32)")
        for c in range(1, NSL):
            e(f"s_cmp_gt_i32 s{sKK}, {c}\ns_cselect_b32 s3, 0, {NEGINF:#x}\nv_add_f32 v{MLR[c]}, s3, v{MLR[c]}\nv_add_f32 v{MLR[c]+2}, s3, v{MLR[c]+2}")
        for c in range(0, NSL, 2):
            for q in range(2):
                e(f"v_max3_f32 v{vE+q}, v{vE+q if c else vM+q}, v{MLR[c]+2*q}, v{MLR[c+1]+2*q}")
        for q in range(2):
            e(f"v_sub_f32 v{vAL+2*q}, v{vM+q}, v{vE+q}\nv_mov_b32 v{vM+q}, v{vE+q}")
            for c in range(NSL): e(f"v_sub_f32 v{MLR[c]+2*q}, v{MLR[c]+2*q}, v{vE+q}")
        for q in range(2):
            e(f"v_exp_f32 v{vAL+2*q}, v{vAL+2*q}")
            for c in range(NSL): e(f"v_exp_f32 v{MLR[c]+2*q}, v{MLR[c]+2*q}")
        e("s_nop 0")
        for q in range(2):
            e(f"v_mul_f32 v{LL[q]}, v{LL[q]}, v{vAL+2*q}")
            for c in range(NSL): e(f"v_fmac_f32 v{LL[q]}, v{MLR[c]+2*q+1}, v{MLR[c]+2*q}")
        def oscale(w):
            for db in range(8):
                for q in range(2):
                    for h2 in range(2):
                        r = vO + 8 * db + 4 * q + 2 * h2
                        e(f"v_pk_mul_f32 {R2(r)}, {R2(r)}, {R2(w+2*q)} op_sel_hi:[1,0]")
        oscale(vAL)
        for u in range(2 * NSL):
            c, q = u >> 1, u & 1
            if c and not q: e(f"s_cmp_gt_i32 s{sKK}, {c}\ns_cbranch_scc0 L_out")
            e(f"s_waitcnt vmcnt({min(28, 4*(2*NSL-1-u))})")
            for pp in range(4):
                for n in range(4):
                    r = vO + 8 * (2 * pp + (n >> 1)) + 4 * q + 2 * (n & 1)
                    x, t = B16[u & 7] + 4 * pp + n, vE + 2 * (n & 1)
                    e(f"v_lshlrev_b32 v{t}, 16, v{x}\nv_and_b32 v{t+1}, 0xffff0000, v{x}\nv_pk_fma_f32 {R2(r)}, {R2(t)}, {R2(MLR[c]+2*q)}, {R2(r)} op_sel_hi:[1,0,1]")
            if u + 8 < 2 * NSL: uload(u + 8)
        e(f"""
        s_sub_i32 s{sKK}, s{sKK}, {NSL}
        s_cmp_gt_i32 s{sKK}, 0
        s_cbranch_scc1 L_round
        L_out:
        v_rcp_f32 v{vAL}, v{vT}
        v_rcp_f32 v{vAL+2}, v{vU}
        s_lshl_b32 s{sT0}, s{sBB}, 3
        s_add_u32 s{sT0}, s{sT0}, s{sH}
        s_lshl_b32 s{sT0}, s{sT0}, 2
        s_add_u32 s{sT0}, s{sT0}, s{sW}
        s_lshl_b32 s{sT0}, s{sT0}, 13
        s_add_u32 s{sT1}, s{sT0}, 4096
        v_and_b32 v{vA}, 15, v{vLane}
        v_lshlrev_b32 v{vA}, 8, v{vA}
        v_bfe_u32 v{vT2}, v{vLane}, 4, 1
        v_lshl_add_u32 v{vA}, v{vT2}, 5, v{vA}
        v_lshrrev_b32 v{vT2}, 5, v{vLane}
        v_lshl_add_u32 v{vA}, v{vT2}, 4, v{vA}
        s_waitcnt vmcnt(0)
        """)
        oscale(vAL)
        for c in range(8):
            q, pp = c >> 2, c & 3
            for n in range(4):
                r = vO + 8 * (2 * pp + (n >> 1)) + 4 * q + 2 * (n & 1)
                e(f"v_cvt_pk_bf16_f32 v{vV+4*c+n}, v{r}, v{r+1}")
            if c:
                d = vV + 4 * (c - 1)
                e(f"v_permlane16_swap_b32 v{d}, v{d+2}\nv_permlane16_swap_b32 v{d+1}, v{d+3}")
            if c > 1:
                e(f"buffer_store_dwordx4 {R4(vV+4*(c-2))}, v{vA}, s[{SO}:{SO+3}], s{sT0 if c-2<4 else sT1} offen offset:{64*((c-2)&3)}")
        e(f"s_nop 1\nv_permlane16_swap_b32 v{vV+28}, v{vV+30}\nv_permlane16_swap_b32 v{vV+29}, v{vV+31}")
        for c in (6, 7):
            e(f"buffer_store_dwordx4 {R4(vV+4*c)}, v{vA}, s[{SO}:{SO+3}], s{sT1} offen offset:{64*(c&3)}")
        e(f"s_cmp_lt_u32 s{sI}, s{sNT}\ns_cbranch_scc1 L_next")
    e("L_done:")
    if o["stamp"]:
        e("s_waitcnt vmcnt(0)")
        stamp(5); stamp(7, True)
        if o["stamp"] == 4:
            srd(e, SD, 28, 256)
            e(f"""
            s_nop 4
            v_readlane_b32 s94, v{vST}, 0
            v_readlane_b32 s95, v{vST}, 5
            v_readlane_b32 s96, v{vST}, 4
            v_readlane_b32 s97, v{vST}, 3
            v_readlane_b32 s98, v{vST}, 6
            v_readlane_b32 s99, v{vST}, 7
            s_cmp_lg_u32 s{sW}, 0
            s_cbranch_scc1 L_end
            s_sub_u32 s95, s95, s94
            s_sub_u32 s96, s96, s94
            s_sub_u32 s97, s97, s94
            s_sub_u32 s98, s99, s98
            v_mov_b32 v1, s95
            v_mov_b32 v2, s96
            v_mov_b32 v3, s97
            v_mov_b32 v4, s98
            s_mov_b64 exec, 1
            buffer_atomic_umax v1, off, s[{SD}:{SD+3}], 0 offset:4 sc1
            buffer_atomic_add v1, off, s[{SD}:{SD+3}], 0 offset:8 sc1
            buffer_atomic_umax v2, off, s[{SD}:{SD+3}], 0 offset:12 sc1
            buffer_atomic_add v2, off, s[{SD}:{SD+3}], 0 offset:16 sc1
            buffer_atomic_add v3, off, s[{SD}:{SD+3}], 0 offset:20 sc1
            buffer_atomic_add v4, off, s[{SD}:{SD+3}], 0 offset:24 sc1
            s_endpgm
            """)
        stamp_store(e, vST, sW, 0)
        if o["stamp"] == 2:
            e(f"""
            s_mov_b64 exec, -1
            s_lshl_b32 s3, s2, 2
            s_add_u32 s3, s3, s{sW}
            s_lshl_b32 s3, s3, 9
            s_add_u32 s3, s3, {STAMP_OFF + (1 << 20)}
            v_lshlrev_b32 v8, 2, v{vLane}
            buffer_store_dword v254, v8, s[{SW}:{SW+3}], s3 offen
            """)
    e("L_end:\ns_endpgm")

    vDK0, vDK1, vDV0, vDV1, vPG, vB, vC, vSt, vM = 1, 2, 3, 4, 5, 6, 7, 8, 9
    sLD, sKD, sVD, sPK, sPV = 9, 10, 11, 12, 13
    e("L_loader:")
    if o["prio"]: e("s_setprio 1")
    srd(e, SK, 18, KV_BYTES); srd(e, SV, 20, KV_BYTES); srd(e, SB, 22, 8 * 512 * 4)
    e(f"""
    s_and_b32 s{sT0}, s{sW}, 1
    s_lshl_b32 s{sT0}, s{sT0}, 3
    s_lshl_b32 s{sT1}, s{sH}, 8
    v_lshrrev_b32 v{vT}, 4, v{vLane}
    v_add_u32 v{vT2}, s{sT0}, v{vT}
    v_and_b32 v{vA}, 15, v{vLane}
    v_xor_b32 v{vM}, v{vA}, v{vT2}
    v_lshlrev_b32 v{vM}, 4, v{vM}
    v_lshl_add_u32 v{vM}, v{vT2}, 11, v{vM}
    v_add_u32 v{vDK0}, s{sT1}, v{vM}
    v_xor_b32 v{vDK1}, 64, v{vDK0}
    v_add_u32 v{vDK1}, {8192-1024}, v{vDK1}
    v_lshlrev_b32 v{vT}, 1, v{vT}
    v_xor_b32 v{vT}, s{sT0}, v{vT}
    v_xor_b32 v{vM}, v{vA}, v{vT}
    v_lshlrev_b32 v{vM}, 4, v{vM}
    v_lshl_add_u32 v{vM}, v{vT2}, 11, v{vM}
    v_add_u32 v{vDV0}, s{sT1}, v{vM}
    v_xor_b32 v{vDV1}, 128, v{vDV0}
    v_add_u32 v{vDV1}, {8192-1024}, v{vDV1}
    s_and_b32 s{sW}, s{sW}, 3
    s_lshl_b32 s{sKD}, s{sW}, 11
    s_add_u32 s{sVD}, s{sKD}, {VR + (NS-1)*8192}
    s_waitcnt lgkmcnt(0)
    """)
    batch_tables(e)
    wg_range(e, o, sJ, sLO, sNT, sT0, sT1)
    e(f"""
    s_cmp_eq_u32 s{sNT}, 0
    s_cbranch_scc1 L_end
    s_lshr_b32 s{sT0}, s{sW}, 1
    s_mov_b32 s{sLD}, 0
    s_mov_b32 s{sPK}, {OOB:#x}
    """)
    def plist(vD, off, sm):
        e(f"""
        v_add_u32 v{vM}, {off}, v{vLane}
        v_add_u32 v{vT}, s{sLO}, v{vM}
        v_mov_b32 v{vB}, 0
        v_mov_b32 v{vC}, s{SC}
        v_mov_b32 v{vSt}, 0
        """)
        for b in range(1, 8):
            e(f"""
            v_cmp_le_u32 vcc, s{SS+b}, v{vT}
            v_mov_b32 v{vT2}, s{SC+b}
            v_mov_b32 v{vA}, s{SS+b}
            v_cndmask_b32 v{vC}, v{vC}, v{vT2}, vcc
            v_cndmask_b32 v{vSt}, v{vSt}, v{vA}, vcc
            v_addc_co_u32 v{vB}, vcc, 0, v{vB}, vcc
            """)
        e(f"""
        v_sub_u32 v{vT}, v{vT}, v{vSt}
        v_lshl_add_u32 v{vT}, v{vT}, 1, s{sT0}
        v_lshl_add_u32 v{vT2}, v{vB}, 9, v{vT}
        v_lshlrev_b32 v{vT2}, 2, v{vT2}
        buffer_load_dword v{vD}, v{vT2}, s[{SB}:{SB+3}], 0 offen
        v_lshlrev_b32 v{vT}, 4, v{vT}
        v_cmp_lt_u32 s[{sm}:{sm+1}], v{vT}, v{vC}
        v_cmp_gt_u32 vcc, s{sNT}, v{vM}
        s_nop 1
        s_and_b64 s[{sm}:{sm+1}], s[{sm}:{sm+1}], vcc
        """)
    vPG2 = 10
    plist(vPG, 0, 94); plist(vPG2, 64, 96)
    e(f"""
    v_mov_b32 v{vT}, {OOB:#x}
    s_waitcnt vmcnt(0)
    v_lshlrev_b32 v{vPG}, 15, v{vPG}
    v_lshlrev_b32 v{vPG2}, 15, v{vPG2}
    v_cndmask_b32 v{vPG}, v{vT}, v{vPG}, s[94:95]
    v_cndmask_b32 v{vPG2}, v{vT}, v{vPG2}, s[96:97]
    """)
    def fetch(first=False):
        e(f"""
        s_mov_b32 s{sPV}, s{sPK}
        v_readlane_b32 s{sPK}, v{vPG}, s{sLD}
        v_readlane_b32 s3, v{vPG2}, s{sLD}
        s_cmp_lt_u32 s{sLD}, 64
        s_cselect_b32 s{sPK}, s{sPK}, s3
        s_add_u32 s{sLD}, s{sLD}, 1
        """)
    def issue(first=False):
        e(f"""
        s_mov_b32 m0, s{sKD}
        s_add_u32 s{sKD}, s{sKD}, 8192
        buffer_load_dwordx4 v{vDK0}, s[{SK}:{SK+3}], s{sPK} offen{nt} lds
        buffer_load_dwordx4 v{vDK1}, s[{SK}:{SK+3}], s{sPK} offen offset:1024{nt} lds
        s_mov_b32 m0, s{sVD}
        s_add_u32 s{sVD}, s{sVD}, 8192
        """)
        if not first:
            e(f"""
            buffer_load_dwordx4 v{vDV0}, s[{SV}:{SV+3}], s{sPV} offen{nt} lds
            buffer_load_dwordx4 v{vDV1}, s[{SV}:{SV+3}], s{sPV} offen offset:1024{nt} lds
            """)
        e(f"""
        s_cmp_ge_u32 s{sKD}, {VR}
        s_cselect_b32 s{sT0}, {VR}, 0
        s_sub_u32 s{sKD}, s{sKD}, s{sT0}
        s_cmp_ge_u32 s{sVD}, {2*VR}
        s_cselect_b32 s{sT0}, {VR}, 0
        s_sub_u32 s{sVD}, s{sVD}, s{sT0}
        """)
    DS = [int(c) for c in str(o["D"])] if o["D"] else [NS - 1] * 8
    tab = sum(d << (4 * i) for i, d in enumerate(DS))
    sD = 14
    e(f"""
    s_lshr_b32 s{sT0}, s18, 8
    s_add_u32 s{sT0}, s{sT0}, s{sH}
    s_and_b32 s{sT0}, s{sT0}, 7
    s_lshl_b32 s{sT0}, s{sT0}, 2
    s_lshr_b32 s{sD}, {tab:#x}, s{sT0}
    s_and_b32 s{sD}, s{sD}, 15
    s_add_u32 s{sNT}, s{sNT}, s{sD}
    s_add_u32 s{sNT}, s{sNT}, 1
    """)
    for t in range(max(DS)):
        fetch(); e("s_nop 1"); issue(t == 0)
        if t + 1 in DS and t + 1 != max(DS): e(f"s_cmp_eq_u32 s{sD}, {t+1}\ns_cbranch_scc1 L_pre{t+1}")
    for D in sorted(set(DS), reverse=True):
        e(f"L_pre{D}:")
        fetch()
        e(f"L_ld{D}:\ns_waitcnt vmcnt({4*(D-1)})\ns_barrier")
        issue()
        if o["stamp"] == 3:
            e(f"s_memrealtime s[92:93]\ns_memtime s[94:95]\ns_sub_u32 s{sT0}, s{sLD}, {D+1}\ns_mov_b32 m0, s{sT0}\ns_waitcnt lgkmcnt(0)\nv_writelane_b32 v20, s92, m0\nv_writelane_b32 v21, s94, m0")
        fetch()
        e(f"s_cmp_le_u32 s{sLD}, s{sNT}\ns_cbranch_scc1 L_ld{D}\ns_branch L_ldone")
    e("L_ldone:")
    if FU:
        srd(e, SW, 30, 32 << 20); srd(e, SQ, 28, 256)
        e(f"s_mov_b32 s{sT0}, 0\ns_mov_b32 s{sKD}, 0\ns_mov_b32 s{sVD}, s{SS+1}")
        for b in range(1, 8):
            e(f"s_cmp_le_u32 s{SS+b}, s{sLO}\ns_cselect_b32 s{sT0}, {b}, s{sT0}\ns_cselect_b32 s{sKD}, s{SS+b}, s{sKD}\ns_cselect_b32 s{sVD}, s{SS+b+1}, s{sVD}")
        e(f"""
        s_cmp_lt_u32 s{sKD}, s{sLO}
        s_cbranch_scc0 L_lend
        s_add_u32 s{sLO}, s{sLO}, s{sNT}
        s_sub_u32 s{sLO}, s{sLO}, s{sD}
        s_sub_u32 s{sLO}, s{sLO}, 1
        s_cmp_lt_u32 s{sVD}, s{sLO}
        s_cbranch_scc0 L_lend
        s_mul_i32 s3, s{sW}, 8704
        s_add_u32 s3, s3, {2*VR}
        v_lshl_add_u32 v1, v{vLane}, 4, s3
        v_lshl_add_u32 v2, v{vLane}, 3, s3
        """)
        for c in range(8): e(f"ds_read_b128 v[{32+4*c}:{35+4*c}], v1 offset:{1024*c}")
        e(f"""
        ds_read_b64 v[30:31], v2 offset:8192
        s_lshl_b32 s{sPK}, s{sH}, 5
        buffer_load_dword v3, off, s[{SQ}:{SQ+3}], s{sPK} sc1
        s_mul_i32 s3, s{sH}, {NSLOT_H}
        s_add_u32 s{sT0}, s{sT0}, s3
        s_add_u32 s{sT0}, s{sT0}, s{sJ}
        s_lshl_b32 s{sT0}, s{sT0}, 2
        s_add_u32 s{sT0}, s{sT0}, s{sW}
        s_lshl_b32 s{sPV}, s{sT0}, {FS}
        s_add_u32 s{sPV}, s{sPV}, {FLAG_OFF}
        s_lshl_b32 s{sT1}, s{sT0}, 9
        s_add_u32 s{sT1}, s{sT1}, {ML_OFF}
        s_lshl_b32 s{sT0}, s{sT0}, 13
        s_add_u32 s{sKD}, s{sT0}, 4096
        v_lshlrev_b32 v1, 4, v{vLane}
        v_lshlrev_b32 v2, 3, v{vLane}
        """)
        for c in range(8):
            e(f"s_waitcnt lgkmcnt({8-c})\nbuffer_store_dwordx4 v[{32+4*c}:{35+4*c}], v1, s[{SW}:{SW+3}], s{sT0 if c<4 else sKD} offen offset:{1024*(c&3)}{sc}")
        e(f"""
        s_waitcnt lgkmcnt(0)
        buffer_store_dwordx2 v[30:31], v2, s[{SW}:{SW+3}], s{sT1} offen{sc}
        s_mov_b32 s{sVD}, {POLL:#x}
        v_mov_b32 v4, 1
        L_lgo:
        s_waitcnt vmcnt(0)
        v_readfirstlane_b32 s3, v3
        s_cmp_lg_u32 s3, 0
        s_cbranch_scc1 L_lgo_ok
        buffer_load_dword v3, off, s[{SQ}:{SQ+3}], s{sPK} sc1
        s_sub_u32 s{sVD}, s{sVD}, 1
        s_cbranch_scc0 L_lgo
        L_lgo_ok:
        s_mov_b64 exec, 1
        buffer_store_dword v4, off, s[{SW}:{SW+3}], s{sPV} sc1
        s_mov_b64 exec, -1
        L_lend:
        """)
    if o["stamp"] == 3:
        srd(e, SW, 30, 32 << 20)
        e(f"""
        s_lshl_b32 s3, s2, 2
        s_add_u32 s3, s3, s{sW}
        s_lshl_b32 s3, s3, 9
        s_add_u32 s3, s3, {STAMP_OFF + (1 << 20)}
        v_lshlrev_b32 v8, 2, v{vLane}
        buffer_store_dword v20, v8, s[{SW}:{SW+3}], s3 offen
        buffer_store_dword v21, v8, s[{SW}:{SW+3}], s3 offen offset:256
        """)
    e("s_endpgm")
    return e.text(), NS * 16384 + (4 * 8704 if FU else 0)

def build2(**kw):
    o = dict(DEF2); o.update(kw)
    k1, lds = main_kernel2(o)
    hdr = '.amdgcn_target "amdgcn-amd-amdhsa--gfx950"\n.text\n'
    if o["fuse"] or o["single"]:
        return f"; @launch {'kernel=' + NAME + '_kernel ' if o['single'] == 2 else ''}grid=(256,1,1) block=(512,1,1) lds={lds}\n" + hdr + k1 + '.section .rodata,"a"\n' + desc(NAME + "_kernel", 256, 256)
    s = f"; @launch kernel={NAME}_kernel grid=(256,1,1) block=(512,1,1) lds={lds}\n"
    s += "; @launch kernel=combine_kernel grid=(256,1,1) block=(256,1,1) lds=0\n"
    return s + hdr + k1 + combine_kernel(o) + '.section .rodata,"a"\n' + desc(NAME + "_kernel", 256, 256) + desc("combine_kernel", 104, 104)

if __name__ == "__main__":
    kw = {}
    for a in sys.argv[2:]:
        k, v = a.split("="); kw[k] = int(v)
    open(sys.argv[1], "w").write(build2(**kw))
```

```python
import sys
from gen import *
import gen

DEF2 = dict(NS=4, nt=1, hmap=0, compute=1, stamp=0, pad=0, prio=1, empty=0, single=0, warm=0, cm=7, lay=16, D=0, cnt=0, fuse=1, tk=3, ss=1, nopoll=0, rot=1, xt=0)
GUARD = f2u(1024.0)
FLAG_OFF = 14 << 20
FS = 6
POLL = 0x100000

def wg_range(e, o, sJ, sLO, sNT, t0, t1):
    P = o["pad"]
    e(f"""
    s_add_u32 s{t0}, s{SS+8}, {7*P}
    s_mul_i32 s{t0}, s{t0}, s35
    s_mul_i32 s{sLO}, s{sJ}, s{t0}
    s_add_u32 s{sNT}, s{sLO}, s{t0}
    s_lshr_b32 s{sLO}, s{sLO}, 17
    s_lshr_b32 s{sNT}, s{sNT}, 17
    """)
    if P:
        for b in range(1, 8):
            for r in (sLO, sNT):
                e(f"""
                s_sub_i32 s{t0}, s{r}, s{SS+b}
                s_max_i32 s{t0}, s{t0}, 0
                s_min_i32 s{t0}, s{t0}, {P}
                s_sub_u32 s{r}, s{r}, s{t0}
                """)
    e(f"s_sub_u32 s{sNT}, s{sNT}, s{sLO}")

def main_kernel2(o):
    NS = o["NS"]; nt = ["", " nt", " sc0", " sc1", " sc0 sc1", " sc0 nt", " sc1 nt", " sc0 sc1 nt"][o["nt"]]
    e = E()
    vO, vS, vNM, vQ, vQn, vK, vV, vP, vE, vKA, vVA = 0, (64, 80), 96, 104, 136, 168, 184, 216, 224, 228, 232
    vL, vLS, vT, vT2, vA, vLane, vU, vU2, vST = 240, 244, 248, 249, 250, 251, 252, 253, 255
    sH, sJ, sW, sLO, sNT = 4, 5, 6, 7, 8
    sI, sE, sMK, sREM, sSC = 9, 10, 11, 12, 13
    sBB, sG, sT0, sT1, sSEG = 14, 15, 32, 33, 34
    VR = NS * 8192
    FU = o["fuse"]
    SD = SK
    sMS, sNF, sTI, sPD, sCA, sKK, sTM, sSL = 86, 88, 89, 90, 91, 85, 96, 97
    vTK = 254
    sc = ["", " sc1", " sc1 nt", " sc0 sc1", " nt"][o["ss"]] if FU else ""
    def stamp(i, clk=False):
        if o["stamp"]:
            e(f"{'s_memtime' if clk else 's_memrealtime'} s[92:93]\ns_waitcnt lgkmcnt(0)\nv_writelane_b32 v{vST}, s92, {i}")
    e(f"""
    .globl {NAME}_kernel
    .p2align 8
    .type {NAME}_kernel,@function
    {NAME}_kernel:
    s_cmp_ge_u32 s2, {0 if o["empty"] else 256}
    s_cbranch_scc1 L_end
    s_load_dwordx16 s[16:31], s[0:1], 0
    """)
    stamp(0); stamp(6, True)
    if o["xt"] == 1:
        e(f"s_getreg_b32 s3, hwreg(HW_REG_XCC_ID, 0, 4)\ns_and_b32 s4, s2, 7\ns_cmp_eq_u32 s3, s4\ns_cbranch_scc1 L_xt\ns_mov_b32 s3, 8000\nL_xl:\ns_sub_u32 s3, s3, 1\ns_cbranch_scc0 L_xl\nL_xt:")
    cn = counts(o); base = min(cn)
    ex = [(c, k) for k in range(max(cn) - base) for c in range(8) if cn[c] - base > k]
    e(f"s_and_b32 s{sH}, s2, 7\ns_lshr_b32 s{sJ}, s2, 3")
    if ex:
        assert len(ex) <= 16
        tb = sum((c | (k << 3)) << (8 * i) for i, (c, k) in enumerate(ex))
        e(f"""
        s_mov_b32 s8, {tb & 0xffffffff:#x}
        s_mov_b32 s9, {(tb >> 32) & 0xffffffff:#x}
        s_mov_b32 s10, {(tb >> 64) & 0xffffffff:#x}
        s_mov_b32 s11, {(tb >> 96) & 0xffffffff:#x}
        s_sub_u32 s3, s2, {8*base}
        s_bitcmp1_b32 s3, 3
        s_cselect_b64 s[8:9], s[10:11], s[8:9]
        s_lshl_b32 s3, s3, 3
        s_lshr_b64 s[8:9], s[8:9], s3
        s_bfe_u32 s9, s8, 0x50003
        s_add_u32 s9, s9, {base}
        s_and_b32 s8, s8, 7
        s_cmp_ge_u32 s2, {8*base}
        s_cselect_b32 s{sH}, s8, s{sH}
        s_cselect_b32 s{sJ}, s9, s{sJ}
        """)
    magic_of_class(e, o, sH, 35)
    e(f"""
    v_lshrrev_b32 v{vT}, 6, v0
    v_and_b32 v{vLane}, 63, v0
    v_readfirstlane_b32 s{sW}, v{vT}
    s_waitcnt lgkmcnt(0)
    s_lshr_b32 s3, s18, 8
    s_sub_u32 s{sH}, s{sH}, s3
    s_and_b32 s{sH}, s{sH}, 7
    s_load_dwordx8 s[{SCL}:{SCL+7}], s[24:25], 0
    s_cmp_ge_u32 s{sW}, 4
    s_cbranch_scc1 L_loader
    """)
    srd(e, SQ, 16, Q_BYTES); srd(e, SW, 30, 32 << 20)
    if FU:
        srd(e, SD, 28, 256); srd(e, SO, 26, Q_BYTES)
        e(f"""
        s_lshl_b32 s{sCA}, s{sH}, 5
        s_mul_i32 s{sSL}, s{sH}, {NSLOT_H}
        v_mov_b32 v{vTK}, 0
        s_or_b32 s3, s{sJ}, s{sW}
        s_cbranch_scc1 L_noclr
        s_lshl_b32 s3, s{sSL}, {FS+2}
        s_add_u32 s3, s3, {FLAG_OFF}
        v_lshlrev_b32 v1, {FS}, v{vLane}
        v_add_u32 v2, {64 << FS}, v1
        v_add_u32 v3, {(4*NSLOT_H - 64) << FS}, v1
        buffer_store_dword v{vTK}, v1, s[{SW}:{SW+3}], s3 offen sc1
        buffer_store_dword v{vTK}, v2, s[{SW}:{SW+3}], s3 offen sc1
        buffer_store_dword v{vTK}, v3, s[{SW}:{SW+3}], s3 offen sc1
        v_mov_b32 v4, 1
        s_mov_b64 exec, 1
        s_waitcnt vmcnt(0)
        buffer_store_dword v4, off, s[{SD}:{SD+3}], s{sCA} sc1
        s_mov_b64 exec, -1
        L_noclr:
        """)
    e(f"""
    v_and_b32 v{vT}, 15, v{vLane}
    v_lshrrev_b32 v{vT2}, 4, v{vLane}
    v_xor_b32 v{vA}, v{vT}, v{vT2}
    v_lshlrev_b32 v{vA}, 4, v{vA}
    v_lshl_add_u32 v{vKA}, v{vT}, 8, v{vA}
    """)
    for k4 in range(1, 4):
        e(f"v_xor_b32 v{vKA+k4}, {k4<<6}, v{vKA}")
    e(f"""
    v_lshrrev_b32 v{vT}, 2, v{vLane}
    v_lshrrev_b32 v{vT2}, 5, v{vLane}
    v_lshlrev_b32 v{vT2}, 2, v{vT2}
    v_xor_b32 v{vT2}, v{vT2}, v{vT}
    v_and_b32 v{vT2}, 7, v{vT2}
    v_lshlrev_b32 v{vA}, 8, v{vT}
    v_lshl_add_u32 v{vA}, v{vT2}, 5, v{vA}
    v_and_b32 v{vT}, 3, v{vLane}
    v_lshl_add_u32 v{vA}, v{vT}, 3, v{vA}
    v_add_u32 v{vVA}, {VR}, v{vA}
    """)
    for db in range(1, 8):
        e(f"v_xor_b32 v{vVA+db}, {db<<5}, v{vVA}")
    e(f"s_mov_b32 s{sG}, {GUARD:#x}\ns_waitcnt lgkmcnt(0)")
    stamp(1)
    batch_tables(e)
    wg_range(e, o, sJ, sLO, sNT, sT0, sT1)
    e(f"""
    s_cmp_eq_u32 s{sNT}, 0
    s_cbranch_scc1 L_end
    s_mov_b32 s{sBB}, 0
    """)
    for b in range(1, 8):
        e(f"s_cmp_le_u32 s{SS+b}, s{sLO}\ns_cselect_b32 s{sBB}, {b}, s{sBB}")
    def seg_params():
        e(f"""
        s_mov_b32 m0, s{sBB}
        s_nop 0
        s_movrels_b32 s{sREM}, s{SC}
        s_movrels_b32 s{sMK}, s{SS+1}
        s_movrels_b32 s{sSC}, s{SCL}
        s_sub_u32 s{sMK}, s{sMK}, s{sLO}
        s_min_u32 s{sE}, s{sMK}, s{sNT}
        s_sub_u32 s{sMK}, s{sMK}, 1
        s_sub_u32 s{sREM}, s{sREM}, 1
        s_and_b32 s{sREM}, s{sREM}, 31
        s_add_u32 s{sREM}, s{sREM}, 1
        s_cmp_gt_i32 s{sSC}, 0
        s_cselect_b32 s{sSC}, {CSCALE:#x}, 0
        """)
    def q_load(boff):
        e(f"""
        s_add_u32 s{sT0}, s{sBB}, {boff}
        s_lshl_b32 s{sT0}, s{sT0}, 3
        s_add_u32 s{sT0}, s{sT0}, s{sH}
        s_lshl_b32 s{sT0}, s{sT0}, 2
        s_add_u32 s{sT0}, s{sT0}, s{sW}
        s_lshl_b32 s{sT0}, s{sT0}, 13
        v_and_b32 v{vT}, 15, v{vLane}
        v_lshrrev_b32 v{vT2}, 4, v{vLane}
        v_lshlrev_b32 v{vT}, 8, v{vT}
        v_lshl_add_u32 v{vT}, v{vT2}, 4, v{vT}
        v_add_u32 v{vT2}, 4096, v{vT}
        """)
        if boff:
            e(f"s_cmp_lt_u32 s{sE}, s{sNT}\ns_cselect_b32 s{sT0}, s{sT0}, {OOB:#x}")
        for ks in range(8):
            e(f"buffer_load_dwordx4 v[{vQn+4*ks}:{vQn+4*ks+3}], v{vT2 if ks >= 4 else vT}, s[{SQ}:{SQ+3}], s{sT0} offen offset:{64*(ks&3)}")
    def q_scale():
        for i in range(32):
            a, b = vE + 2 * (i & 1), vE + 2 * (i & 1) + 1
            e(f"""
            v_lshlrev_b32 v{a}, 16, v{vQn+i}
            v_and_b32 v{b}, 0xffff0000, v{vQn+i}
            v_mul_f32 v{a}, s{sSC}, v{a}
            v_mul_f32 v{b}, s{sSC}, v{b}
            v_cvt_pk_bf16_f32 v{vQ+i}, v{a}, v{b}
            """)
    seg_params()
    q_load(0)
    if FU:
        P = o["pad"]
        e(f"""
        s_add_u32 s{sT0}, s{sLO}, s{sNT}
        s_mov_b32 s{sMS}, 0
        s_mov_b32 s{sMS+1}, s{SS+1}
        """)
        for b in range(1, 8):
            e(f"s_cmp_lt_u32 s{SS+b}, s{sT0}\ns_cselect_b32 s{sMS}, s{SS+b}, s{sMS}\ns_cselect_b32 s{sMS+1}, s{SS+b+1}, s{sMS+1}")
        e(f"""
        s_add_u32 s{sT0}, s{SS+8}, {7*P}
        s_mul_i32 s{sT0}, s{sT0}, s35
        v_mul_lo_u32 v1, s{sT0}, v{vLane}
        v_add_u32 v2, s{sT0}, v1
        v_lshrrev_b32 v1, 17, v1
        v_lshrrev_b32 v2, 17, v2
        """)
        for b in range(1, 8) if P else ():
            for r in (1, 2):
                e(f"v_subrev_u32 v3, s{SS+b}, v{r}\nv_med3_i32 v3, v3, 0, {P}\nv_sub_u32 v{r}, v{r}, v3")
        e(f"""
        v_cmp_ge_u32 s[94:95], s{sMS+1}, v2
        v_max_u32 v1, s{sMS}, v1
        v_min_u32 v2, s{sMS+1}, v2
        v_cmp_lt_u32 vcc, v1, v2
        s_and_b32 s{sTI}, s{sJ}, 15
        s_add_u32 s{sTI}, s{sTI}, {o["tk"]}
        s_mov_b32 s{sPD}, -1
        s_mov_b64 s[{sMS}:{sMS+1}], vcc
        s_and_b64 s[94:95], s[94:95], vcc
        s_bcnt1_i32_b64 s{sT0}, s[94:95]
        s_bfm_b64 s[98:99], s{sJ}, 0
        s_and_b64 s[94:95], s[94:95], s[98:99]
        s_bcnt1_i32_b64 s{sT1}, s[94:95]
        s_mov_b32 s{sNF}, {"s%d" % sW if o["rot"] else 0}
        s_cmp_ge_u32 s{sNF}, s{sT0}
        s_cselect_b32 s3, s{sT0}, 0
        s_sub_u32 s{sNF}, s{sNF}, s3
        s_cmp_ge_u32 s{sNF}, s{sT0}
        s_cselect_b32 s3, s{sT0}, 0
        s_sub_u32 s{sNF}, s{sNF}, s3
        s_cmp_ge_u32 s{sNF}, s{sT0}
        s_cselect_b32 s3, s{sT0}, 0
        s_sub_u32 s{sNF}, s{sNF}, s3
        s_sub_u32 s{sNF}, s{sNF}, s{sT1}
        s_bitset0_b64 s[{sMS}:{sMS+1}], s{sJ}
        """)
    def ticket():
        e(f"buffer_load_dword v{vTK}, off, s[{SD}:{SD+3}], s{sCA} sc1\ns_mov_b32 s{sTI}, 0x7fffffff")
    def go(tag):
        e(f"""
        s_mov_b32 s{sTM}, {POLL:#x}
        L_go{tag}:
        v_readfirstlane_b32 s3, v{vTK}
        s_cmp_lg_u32 s3, 0
        s_cbranch_scc1 L_go{tag}_ok
        buffer_load_dword v{vTK}, off, s[{SD}:{SD+3}], s{sCA} sc1
        s_sub_u32 s{sTM}, s{sTM}, 1
        s_waitcnt vmcnt(0)
        s_cbranch_scc0 L_go{tag}
        L_go{tag}_ok:
        """)
    def signal(sA):
        e(f"""
        v_mov_b32 v{vA}, 1
        s_mov_b64 exec, 1
        buffer_store_dword v{vA}, off, s[{SW}:{SW+3}], s{sA} sc1
        s_mov_b64 exec, -1
        """)
    e(f"s_mov_b32 s{sI}, 0\ns_mov_b32 s{sSEG}, 0\ns_waitcnt vmcnt(0)")
    q_scale()
    q_load(1)
    stamp(2)
    e("s_barrier")
    stamp(3)
    e("s_branch L_first")

    def kread(j, slot, base=vKA):
        r = vK + 4 * (j & 3)
        return f"ds_read_b128 v[{r}:{r+3}], v{base+(j&3)} offset:{slot*8192+4096*(j>>2)}"
    def vread(db, u, slot, base=vVA):
        r = vV + 4 * db + 2 * u
        return f"ds_read_b64_tr_b16 v[{r}:{r+1}], v{base+db} offset:{slot*8192+4096*u}"
    R4 = lambda r: f"v[{r}:{r+3}]"
    R2 = lambda r: f"v[{r}:{r+1}]"
    SI = lambda S, qb, i: S + 8 * (i >> 2) + 4 * qb + (i & 3)
    def qk(j, qb, S, zero=False):
        d = S + 8 * (j >> 2) + 4 * qb
        c = R4(d) if j & 3 else ("0" if zero else R4(vNM + 4 * qb))
        return f"v_mfma_f32_16x16x32_bf16 {R4(d)}, {R4(vK+4*(j&3))}, {R4(vQ+16*qb+4*(j&3))}, {c}"
    def pv(db, qb):
        d = vO + 8 * db + 4 * qb
        return f"v_mfma_f32_16x16x32_bf16 {R4(d)}, {R4(vV+4*db)}, {R4(vP+4*qb)}, {R4(d)}"
    def soft(S, qb):
        EX = lambda i: f"v_exp_f32 v{vE+(i&3)}, v{SI(S, qb, i)}"
        CV = lambda m: f"v_cvt_pk_bf16_f32 v{vP+4*qb+m}, v{vE+((2*m)&3)}, v{vE+((2*m+1)&3)}"
        LS = R2(vLS + 2 * qb)
        return [EX(0), EX(1), EX(2), EX(3), CV(0), f"v_pk_add_f32 {LS}, {R2(vE)}, {R2(vE+2)}", CV(1),
                EX(4), EX(5), EX(6), f"v_pk_add_f32 {LS}, {LS}, {R2(vE)}", EX(7), CV(2),
                f"v_pk_add_f32 {LS}, {LS}, {R2(vE+2)}", CV(3)]
    def guard():
        return [f"v_max3_f32 v{vT}, v{vLS}, v{vLS+1}, v{vLS+2}", f"v_max_f32 v{vT}, v{vT}, v{vLS+3}", f"v_cmp_lt_f32 vcc, s{sG}, v{vT}"]
    def lacc():
        return [f"v_pk_add_f32 {R2(vL+2*q)}, {R2(vL+2*q)}, {R2(vLS+2*q)}" for q in range(2)]
    def mask_block(S):
        e(f"s_nop 7\nv_lshrrev_b32 v{vA}, 4, v{vLane}\nv_lshlrev_b32 v{vA}, 2, v{vA}\nv_mov_b32 v{vT}, {NEGINF:#x}")
        for i in range(8):
            e(f"""
            v_add_u32 v{vT2}, {(i & 3) + 16 * (i >> 2)}, v{vA}
            v_cmp_gt_u32 vcc, s{sREM}, v{vT2}
            s_nop 1
            v_cndmask_b32 v{SI(S, 0, i)}, v{vT}, v{SI(S, 0, i)}, vcc
            v_cndmask_b32 v{SI(S, 1, i)}, v{vT}, v{SI(S, 1, i)}, vcc
            """)
    def xlane(op, regs):
        tm = (vT2, vU2)
        for sw in ("v_permlane16_swap_b32", "v_permlane32_swap_b32"):
            for r, t in zip(regs, tm): e(f"v_mov_b32 v{t}, v{r}")
            e("s_nop 1")
            for r, t in zip(regs, tm): e(f"{sw} v{r}, v{t}")
            e("s_nop 1")
            for r, t in zip(regs, tm): e(f"{op} v{r}, v{r}, v{t}")
    MX = (vT, vU)
    def rowmax(S):
        for q in range(2):
            x = lambda i: SI(S, q, i)
            e(f"""
            v_max3_f32 v{MX[q]}, v{x(0)}, v{x(1)}, v{x(2)}
            v_max3_f32 v{MX[q]}, v{MX[q]}, v{x(3)}, v{x(4)}
            v_max3_f32 v{MX[q]}, v{MX[q]}, v{x(5)}, v{x(6)}
            v_max_f32 v{MX[q]}, v{MX[q]}, v{x(7)}
            """)
        xlane("v_max_f32", MX)
    def slow(So, Sn):
        e("s_nop 7")
        rowmax(So)
        AL = (vT2, vU2)
        for q in range(2): e(f"v_max_f32 v{MX[q]}, 0, v{MX[q]}\nv_exp_f32 v{AL[q]}, -v{MX[q]}")
        for q in range(2):
            for i in range(8): e(f"v_sub_f32 v{SI(So, q, i)}, v{SI(So, q, i)}, v{MX[q]}")
            for i in range(4): e(f"v_sub_f32 v{vNM+4*q+i}, v{vNM+4*q+i}, v{MX[q]}")
            if Sn is not None:
                for i in range(8): e(f"v_sub_f32 v{SI(Sn, q, i)}, v{SI(Sn, q, i)}, v{MX[q]}")
            for db in range(8):
                for i in range(4): e(f"v_mul_f32 v{vO+8*db+4*q+i}, v{vO+8*db+4*q+i}, v{AL[q]}")
            for i in range(2): e(f"v_mul_f32 v{vL+2*q+i}, v{vL+2*q+i}, v{AL[q]}")
        for q in range(2):
            for x in soft(So, q): e(x)
        e("s_nop 1")

    class Lds:
        def __init__(self): self.q = []
        def rd(self, tag, ins): e(ins); self.q.append(tag)
        def need(self, tag):
            idx = [i for i, t in enumerate(self.q) if t == tag]
            if idx:
                n = len(self.q) - 1 - idx[-1]
                assert n <= 15
                e(f"s_waitcnt lgkmcnt({n})"); self.q = self.q[idx[-1] + 1:]

    e(".p2align 6")
    mark = len(e.l)
    for p in range(NS):
        Sn, So = vS[p & 1], vS[(p + 1) & 1]
        ks_, vs_ = p, (p - 1) % NS
        e(f"L_ph{p}:\ns_barrier")
        e(f"s_cmp_ge_u32 s{sI}, s{sE}\ns_cbranch_scc1 L_bnd{p}")
        if o["compute"]:
            L = Lds()
            sb, sa = soft(So, 1), soft(Sn, 0)
            fill = [[] for _ in range(32)]
            for j in range(4): fill[2 * j + 1].append(("K", j + 4))
            for n in range(16): fill[3 + n].append(("V", n))
            rest = sb[5:] + guard()
            for n, x in enumerate(rest): fill[n + 1].append(x)
            fill[16] += [lacc()[0], f"s_cmp_eq_u32 s{sI}, s{sMK}"]
            fill[17] += [lacc()[1], f"s_cbranch_scc1 L_mask{p}\nL_mask{p}_ret:"]
            for n, x in zip((18, 19, 20, 21), sa[:4]): fill[n].append(x)
            fill[22].append(sa[5])
            fill[24] += [sa[4], sa[6]]
            for n, x in zip((24, 25, 26, 27, 27, 28, 29, 30), sa[7:]): fill[n].append(x)
            if FU: fill[25] += [f"s_cmp_ge_i32 s{sI}, s{sTI}", f"s_cbranch_scc1 L_tick{p}\nL_tick{p}_ret:"]
            fill[30].append(f"s_add_u32 s{sI}, s{sI}, 1")
            for j in range(4): L.rd(("K", j), kread(j, ks_))
            for x in sb[:5]: e(x)
            for sl in range(32):
                if sl < 16:
                    if not sl & 1: L.need(("K", sl >> 1))
                    e(qk(sl >> 1, sl & 1, Sn))
                else:
                    if sl == 16: e(f"s_cbranch_vccnz L_slow{p}\nL_slow{p}_ret:")
                    if sl < 24: L.need(("V", 2 * (sl - 16) + 1))
                    e(pv((sl - 16) & 7, (sl - 16) >> 3))
                for x in fill[sl]:
                    if isinstance(x, tuple):
                        L.rd(x, kread(x[1], ks_) if x[0] == "K" else vread(x[1] >> 1, x[1] & 1, vs_))
                    else: e(x)
        else:
            e(f"s_add_u32 s{sI}, s{sI}, 1\nL_slow{p}_ret:\nL_mask{p}_ret:")
        if p == NS - 1:
            e("s_branch L_ph0")
    drop = [x for b, xs in ((1, ["ds_read"]), (2, ["v_mfma"]), (4, ["v_exp", "v_pk_add", "v_cvt_pk"])) if not o["cm"] & b for x in xs]
    e.l[mark:] = [x for x in e.l[mark:] if not any(x.strip().startswith(d) for d in drop)]
    for p in range(NS):
        Sn, So = vS[p & 1], vS[(p + 1) & 1]
        e(f"L_slow{p}:"); slow(So, Sn); e(f"s_branch L_slow{p}_ret")
        e(f"L_mask{p}:"); mask_block(Sn); e(f"s_branch L_mask{p}_ret")
        if FU and o["compute"]: e(f"L_tick{p}:"); ticket(); e(f"s_branch L_tick{p}_ret")
        e(f"L_bnd{p}:")
        vr = [vread(db, u, (p - 1) % NS) for db in range(8) for u in range(2)]
        for x in vr[:12]: e(x)
        if So != vS[0]:
            for i in range(16): e(f"v_mov_b32 v{vS[0]+i}, v{So+i}")
        e("s_waitcnt lgkmcnt(8)")
        for x in vr[12:]: e(x)
        e("s_branch L_last")
    e("L_last:")
    for x in soft(vS[0], 1) + guard(): e(x)
    e("s_nop 1\ns_cbranch_vccz L_last_ok")
    slow(vS[0], None)
    e("L_last_ok:")
    for x in lacc(): e(x)
    e("s_waitcnt lgkmcnt(0)")
    for qb in range(2):
        for db in range(8): e(pv(db, qb))
    stamp(4)
    e(f"v_add_f32 v{vT}, v{vL}, v{vL+1}\nv_add_f32 v{vU}, v{vL+2}, v{vL+3}")
    xlane("v_add_f32", MX)
    if FU:
        e(f"""
        s_add_u32 s{sPD}, s{sSL}, s{sJ}
        s_add_u32 s{sPD}, s{sPD}, s{sBB}
        s_lshl_b32 s{sPD}, s{sPD}, 2
        s_add_u32 s{sPD}, s{sPD}, s{sW}
        s_lshl_b32 s{sPD}, s{sPD}, {FS}
        s_add_u32 s{sPD}, s{sPD}, {FLAG_OFF}
        s_waitcnt vmcnt(0)
        s_cmp_lt_u32 s{sI}, s{sNT}
        s_cbranch_scc0 L_fin
        s_mov_b32 m0, s{sBB}
        s_nop 0
        s_movrels_b32 s{sT0}, s{SS}
        s_cmp_lt_u32 s{sT0}, s{sLO}
        s_cbranch_scc0 L_out
        s_mul_i32 s{sT0}, s{sW}, 8704
        s_add_u32 s{sT0}, s{sT0}, {2*VR}
        v_and_b32 v{vA}, 16, v{vLane}
        v_cmp_eq_u32 vcc, 0, v{vA}
        v_lshl_add_u32 v{vA}, v{vLane}, 3, s{sT0}
        v_lshl_add_u32 v{vE}, v{vLane}, 4, s{sT0}
        v_cndmask_b32 v{vT2}, v{vU}, v{vT}, vcc
        v_cndmask_b32 v{vT}, v{vNM+4}, v{vNM}, vcc
        v_sub_f32 v{vT}, 0, v{vT}
        ds_write_b64 v{vA}, v[{vT}:{vT+1}] offset:8192
        """)
        for c in range(8):
            q, pp = c >> 2, c & 3
            for n in range(4):
                r = vO + 8 * (2 * pp + (n >> 1)) + 4 * q + 2 * (n & 1)
                e(f"v_cvt_pk_bf16_f32 v{vV+4*c+n}, v{r}, v{r+1}")
            e(f"ds_write_b128 v{vE}, v[{vV+4*c}:{vV+4*c+3}] offset:{1024*c}")
        e(f"""
        s_branch L_next
        L_fin:
        s_cmp_eq_u32 s{sNF}, 0
        s_cbranch_scc1 L_merge
        L_part:
        """)
    e(f"""
    v_and_b32 v{vA}, 16, v{vLane}
    v_cmp_eq_u32 vcc, 0, v{vA}
    s_add_u32 s{sT0}, s{sJ}, s{sBB}
    s_mul_i32 s{sT1}, s{sH}, {NSLOT_H}
    s_add_u32 s{sT0}, s{sT0}, s{sT1}
    v_cndmask_b32 v{vT2}, v{vU}, v{vT}, vcc
    v_cndmask_b32 v{vT}, v{vNM+4}, v{vNM}, vcc
    s_lshl_b32 s{sT0}, s{sT0}, 2
    s_add_u32 s{sT0}, s{sT0}, s{sW}
    v_sub_f32 v{vT}, 0, v{vT}
    s_lshl_b32 s{sT1}, s{sT0}, 9
    s_add_u32 s{sT1}, s{sT1}, {ML_OFF}
    v_lshlrev_b32 v{vA}, 3, v{vLane}
    s_lshl_b32 s{sT0}, s{sT0}, 13
    buffer_store_dwordx2 v[{vT}:{vT+1}], v{vA}, s[{SW}:{SW+3}], s{sT1} offen{sc}
    s_add_u32 s{sT1}, s{sT0}, 4096
    v_lshlrev_b32 v{vU}, 4, v{vLane}
    """)
    for c in range(8):
        q, pp = c >> 2, c & 3
        for n in range(4):
            r = vO + 8 * (2 * pp + (n >> 1)) + 4 * q + 2 * (n & 1)
            e(f"v_cvt_pk_bf16_f32 v{vV+4*c+n}, v{r}, v{r+1}")
        e(f"buffer_store_dwordx4 v[{vV+4*c}:{vV+4*c+3}], v{vU}, s[{SW}:{SW+3}], s{sT0 if c<4 else sT1} offen offset:{1024*(c&3)}{sc}")
    e(f"""
    s_cmp_ge_u32 s{sI}, s{sNT}
    s_cbranch_scc1 {"L_pdone" if FU else "L_done"}
    L_next:
    s_add_u32 s{sBB}, s{sBB}, 1
    {"" if FU else "s_waitcnt vmcnt(9)"}
    """)
    seg_params()
    q_scale()
    q_load(1)
    e(f"""
    L_first:
    s_mov_b32 s{sT0}, s{sI}
    """)
    if NS & (NS - 1):
        e(f"s_mul_i32 s{sT1}, s{sI}, {(65536 + NS - 1) // NS}\ns_lshr_b32 s{sT1}, s{sT1}, 16\ns_mul_i32 s{sT1}, s{sT1}, {NS}\ns_sub_u32 s{sT0}, s{sI}, s{sT1}")
    else:
        e(f"s_and_b32 s{sT0}, s{sI}, {NS-1}")
    e(f"s_lshl_b32 s{sT1}, s{sT0}, 13")
    for k4 in range(4): e(f"v_add_u32 v{vS[1]+k4}, s{sT1}, v{vKA+k4}")
    for j in range(4): e(kread(j, 0, vS[1]))
    for i in range(64): e(f"v_mov_b32 v{vO+i}, 0")
    for i in range(4): e(f"v_mov_b32 v{vL+i}, 0")
    for j in range(8):
        e(f"s_waitcnt lgkmcnt({min(3, 7-j)})"); e(qk(j, 0, vS[0], True)); e(qk(j, 1, vS[0], True))
        if j < 4: e(kread(j + 4, 0, vS[1]))
    e(f"s_nop 7\ns_cmp_lg_u32 s{sI}, s{sMK}\ns_cbranch_scc1 L_f_nomask")
    mask_block(vS[0])
    e("L_f_nomask:")
    rowmax(vS[0])
    for q in range(2):
        for i in range(8): e(f"v_sub_f32 v{SI(vS[0], q, i)}, v{SI(vS[0], q, i)}, v{MX[q]}")
        for i in range(4): e(f"v_sub_f32 v{vNM+4*q+i}, 0, v{MX[q]}")
    for x in soft(vS[0], 0): e(x)
    e(f"s_bitcmp0_b32 s{sT0}, 0\ns_cbranch_scc1 L_f_even")
    for i in range(8, 16): e(f"v_mov_b32 v{vS[1]+i}, v{vS[0]+i}")
    for i in range(8): e(f"v_mov_b32 v{vS[1]+i}, v{vS[0]+i}")
    e(f"L_f_even:\ns_add_u32 s{sI}, s{sI}, 1")
    for p in range(NS - 1):
        e(f"s_cmp_eq_u32 s{sT0}, {p}\ns_cbranch_scc1 L_ph{p+1}")
    e("s_branch L_ph0")
    if FU:
        BUF, vML, vM, vAL, vA2 = (64, 104, 136, 184), 168, 216, 218, 222
        LL = (vT, vU)
        e("L_pdone:\ns_waitcnt vmcnt(0)")
        go("b"); signal(sPD)
        e(f"""
        s_branch L_done
        L_merge:
        s_bcnt1_i32_b64 s{sKK}, s[{sMS}:{sMS+1}]
        s_cmp_eq_u32 s{sKK}, 0
        s_cbranch_scc1 L_out
        """)
        go("c")
        e(f"""
        s_add_u32 s{sSL}, s{sSL}, s{sBB}
        s_lshl_b32 s{sT1}, s{sSL}, 2
        s_add_u32 s{sT1}, s{sT1}, s{sW}
        s_lshl_b32 s{sT1}, s{sT1}, {FS}
        s_add_u32 s{sT1}, s{sT1}, {FLAG_OFF}
        v_lshlrev_b32 v{vE}, {FS+2}, v{vLane}
        s_mov_b64 exec, s[{sMS}:{sMS+1}]
        buffer_load_dword v{vE+1}, v{vE}, s[{SW}:{SW+3}], s{sT1} offen sc1
        s_mov_b64 exec, -1
        v_sub_f32 v{vM}, 0, v{vNM}
        v_sub_f32 v{vM+1}, 0, v{vNM+4}
        v_and_b32 v{vA}, 15, v{vLane}
        v_lshlrev_b32 v{vA}, 3, v{vA}
        v_add_u32 v{vA}, {ML_OFF}, v{vA}
        v_lshlrev_b32 v{vA2}, 4, v{vLane}
        v_add_u32 v{vA2+1}, 4096, v{vA2}
        s_mov_b64 exec, s[{sMS}:{sMS+1}]
        L_poll:
        s_waitcnt vmcnt(0)
        v_cmp_ne_u32 vcc, 1, v{vE+1}
        s_sub_u32 s{sTM}, s{sTM}, 1
        s_cbranch_scc1 L_ready
        {"s_branch" if o["nopoll"] else "s_cbranch_vccz"} L_ready
        buffer_load_dword v{vE+1}, v{vE}, s[{SW}:{SW+3}], s{sT1} offen sc1
        s_branch L_poll
        L_ready:
        s_mov_b64 exec, -1
        L_round:
        """)
        NSL = 6
        B16, MLR, SOF = (64, 80, 104, 120, 136, 152, 184, 200), (168, 172, 176, 180, 228, 232), (98, 99, 100, 101, 94, 95)
        for c in range(NSL):
            e(f"""
            s_ff1_i32_b64 s{sT0}, s[{sMS}:{sMS+1}]
            s_bitset0_b64 s[{sMS}:{sMS+1}], s{sT0}
            s_add_u32 s{sT0}, s{sT0}, s{sSL}
            s_lshl_b32 s{sT0}, s{sT0}, 2
            s_add_u32 s{sT0}, s{sT0}, s{sW}
            s_lshl_b32 s{sT1}, s{sT0}, 9
            s_lshl_b32 s{SOF[c]}, s{sT0}, 13
            s_cmp_gt_i32 s{sKK}, {c}
            s_cselect_b32 s{sT1}, s{sT1}, {OOB:#x}
            s_cselect_b32 s{SOF[c]}, s{SOF[c]}, {OOB:#x}
            buffer_load_dwordx2 {R2(MLR[c])}, v{vA}, s[{SW}:{SW+3}], s{sT1} offen sc1
            buffer_load_dwordx2 {R2(MLR[c]+2)}, v{vA}, s[{SW}:{SW+3}], s{sT1} offen offset:128 sc1
            """)
        def uload(u):
            for k in range(4):
                e(f"buffer_load_dwordx4 {R4(B16[u&7]+4*k)}, v{vA2+(u&1)}, s[{SW}:{SW+3}], s{SOF[u>>1]} offen offset:{1024*k} sc1")
        for u in range(8): uload(u)
        e("s_waitcnt vmcnt(32)")
        for c in range(1, NSL):
            e(f"s_cmp_gt_i32 s{sKK}, {c}\ns_cselect_b32 s3, 0, {NEGINF:#x}\nv_add_f32 v{MLR[c]}, s3, v{MLR[c]}\nv_add_f32 v{MLR[c]+2}, s3, v{MLR[c]+2}")
        for c in range(0, NSL, 2):
            for q in range(2):
                e(f"v_max3_f32 v{vE+q}, v{vE+q if c else vM+q}, v{MLR[c]+2*q}, v{MLR[c+1]+2*q}")
        for q in range(2):
            e(f"v_sub_f32 v{vAL+2*q}, v{vM+q}, v{vE+q}\nv_mov_b32 v{vM+q}, v{vE+q}")
            for c in range(NSL): e(f"v_sub_f32 v{MLR[c]+2*q}, v{MLR[c]+2*q}, v{vE+q}")
        for q in range(2):
            e(f"v_exp_f32 v{vAL+2*q}, v{vAL+2*q}")
            for c in range(NSL): e(f"v_exp_f32 v{MLR[c]+2*q}, v{MLR[c]+2*q}")
        e("s_nop 0")
        for q in range(2):
            e(f"v_mul_f32 v{LL[q]}, v{LL[q]}, v{vAL+2*q}")
            for c in range(NSL): e(f"v_fmac_f32 v{LL[q]}, v{MLR[c]+2*q+1}, v{MLR[c]+2*q}")
        def oscale(w):
            for db in range(8):
                for q in range(2):
                    for h2 in range(2):
                        r = vO + 8 * db + 4 * q + 2 * h2
                        e(f"v_pk_mul_f32 {R2(r)}, {R2(r)}, {R2(w+2*q)} op_sel_hi:[1,0]")
        oscale(vAL)
        for u in range(2 * NSL):
            c, q = u >> 1, u & 1
            if c and not q: e(f"s_cmp_gt_i32 s{sKK}, {c}\ns_cbranch_scc0 L_out")
            e(f"s_waitcnt vmcnt({min(28, 4*(2*NSL-1-u))})")
            for pp in range(4):
                for n in range(4):
                    r = vO + 8 * (2 * pp + (n >> 1)) + 4 * q + 2 * (n & 1)
                    x, t = B16[u & 7] + 4 * pp + n, vE + 2 * (n & 1)
                    e(f"v_lshlrev_b32 v{t}, 16, v{x}\nv_and_b32 v{t+1}, 0xffff0000, v{x}\nv_pk_fma_f32 {R2(r)}, {R2(t)}, {R2(MLR[c]+2*q)}, {R2(r)} op_sel_hi:[1,0,1]")
            if u + 8 < 2 * NSL: uload(u + 8)
        e(f"""
        s_sub_i32 s{sKK}, s{sKK}, {NSL}
        s_cmp_gt_i32 s{sKK}, 0
        s_cbranch_scc1 L_round
        L_out:
        v_rcp_f32 v{vAL}, v{vT}
        v_rcp_f32 v{vAL+2}, v{vU}
        s_lshl_b32 s{sT0}, s{sBB}, 3
        s_add_u32 s{sT0}, s{sT0}, s{sH}
        s_lshl_b32 s{sT0}, s{sT0}, 2
        s_add_u32 s{sT0}, s{sT0}, s{sW}
        s_lshl_b32 s{sT0}, s{sT0}, 13
        s_add_u32 s{sT1}, s{sT0}, 4096
        v_and_b32 v{vA}, 15, v{vLane}
        v_lshlrev_b32 v{vA}, 8, v{vA}
        v_bfe_u32 v{vT2}, v{vLane}, 4, 1
        v_lshl_add_u32 v{vA}, v{vT2}, 5, v{vA}
        v_lshrrev_b32 v{vT2}, 5, v{vLane}
        v_lshl_add_u32 v{vA}, v{vT2}, 4, v{vA}
        s_waitcnt vmcnt(0)
        """)
        oscale(vAL)
        for c in range(8):
            q, pp = c >> 2, c & 3
            for n in range(4):
                r = vO + 8 * (2 * pp + (n >> 1)) + 4 * q + 2 * (n & 1)
                e(f"v_cvt_pk_bf16_f32 v{vV+4*c+n}, v{r}, v{r+1}")
            if c:
                d = vV + 4 * (c - 1)
                e(f"v_permlane16_swap_b32 v{d}, v{d+2}\nv_permlane16_swap_b32 v{d+1}, v{d+3}")
            if c > 1:
                e(f"buffer_store_dwordx4 {R4(vV+4*(c-2))}, v{vA}, s[{SO}:{SO+3}], s{sT0 if c-2<4 else sT1} offen offset:{64*((c-2)&3)}")
        e(f"s_nop 1\nv_permlane16_swap_b32 v{vV+28}, v{vV+30}\nv_permlane16_swap_b32 v{vV+29}, v{vV+31}")
        for c in (6, 7):
            e(f"buffer_store_dwordx4 {R4(vV+4*c)}, v{vA}, s[{SO}:{SO+3}], s{sT1} offen offset:{64*(c&3)}")
        e(f"s_cmp_lt_u32 s{sI}, s{sNT}\ns_cbranch_scc1 L_next")
    e("L_done:")
    if o["stamp"]:
        e("s_waitcnt vmcnt(0)")
        stamp(5); stamp(7, True)
        if o["xt"] == 2: e(f"s_getreg_b32 s3, hwreg(HW_REG_XCC_ID, 0, 16)\nv_writelane_b32 v{vST}, s3, 1")
        if o["stamp"] == 4:
            srd(e, SD, 28, 256)
            e(f"""
            s_nop 4
            v_readlane_b32 s94, v{vST}, 0
            v_readlane_b32 s95, v{vST}, 5
            v_readlane_b32 s96, v{vST}, 4
            v_readlane_b32 s97, v{vST}, 3
            v_readlane_b32 s98, v{vST}, 6
            v_readlane_b32 s99, v{vST}, 7
            s_cmp_lg_u32 s{sW}, 0
            s_cbranch_scc1 L_end
            s_sub_u32 s95, s95, s94
            s_sub_u32 s96, s96, s94
            s_sub_u32 s97, s97, s94
            s_sub_u32 s98, s99, s98
            v_mov_b32 v1, s95
            v_mov_b32 v2, s96
            v_mov_b32 v3, s97
            v_mov_b32 v4, s98
            s_mov_b64 exec, 1
            buffer_atomic_umax v1, off, s[{SD}:{SD+3}], 0 offset:4 sc1
            buffer_atomic_add v1, off, s[{SD}:{SD+3}], 0 offset:8 sc1
            buffer_atomic_umax v2, off, s[{SD}:{SD+3}], 0 offset:12 sc1
            buffer_atomic_add v2, off, s[{SD}:{SD+3}], 0 offset:16 sc1
            buffer_atomic_add v3, off, s[{SD}:{SD+3}], 0 offset:20 sc1
            buffer_atomic_add v4, off, s[{SD}:{SD+3}], 0 offset:24 sc1
            s_endpgm
            """)
        stamp_store(e, vST, sW, 0)
        if o["stamp"] == 2:
            e(f"""
            s_mov_b64 exec, -1
            s_lshl_b32 s3, s2, 2
            s_add_u32 s3, s3, s{sW}
            s_lshl_b32 s3, s3, 9
            s_add_u32 s3, s3, {STAMP_OFF + (1 << 20)}
            v_lshlrev_b32 v8, 2, v{vLane}
            buffer_store_dword v254, v8, s[{SW}:{SW+3}], s3 offen
            """)
    e("L_end:\ns_endpgm")

    vDK0, vDK1, vDV0, vDV1, vPG, vB, vC, vSt, vM = 1, 2, 3, 4, 5, 6, 7, 8, 9
    sLD, sKD, sVD, sPK, sPV = 9, 10, 11, 12, 13
    e("L_loader:")
    if o["prio"]: e("s_setprio 1")
    srd(e, SK, 18, KV_BYTES); srd(e, SV, 20, KV_BYTES); srd(e, SB, 22, 8 * 512 * 4)
    e(f"""
    s_and_b32 s{sT0}, s{sW}, 1
    s_lshl_b32 s{sT0}, s{sT0}, 3
    s_lshl_b32 s{sT1}, s{sH}, 8
    v_lshrrev_b32 v{vT}, 4, v{vLane}
    v_add_u32 v{vT2}, s{sT0}, v{vT}
    v_and_b32 v{vA}, 15, v{vLane}
    v_xor_b32 v{vM}, v{vA}, v{vT2}
    v_lshlrev_b32 v{vM}, 4, v{vM}
    v_lshl_add_u32 v{vM}, v{vT2}, 11, v{vM}
    v_add_u32 v{vDK0}, s{sT1}, v{vM}
    v_xor_b32 v{vDK1}, 64, v{vDK0}
    v_add_u32 v{vDK1}, {8192-1024}, v{vDK1}
    v_lshlrev_b32 v{vT}, 1, v{vT}
    v_xor_b32 v{vT}, s{sT0}, v{vT}
    v_xor_b32 v{vM}, v{vA}, v{vT}
    v_lshlrev_b32 v{vM}, 4, v{vM}
    v_lshl_add_u32 v{vM}, v{vT2}, 11, v{vM}
    v_add_u32 v{vDV0}, s{sT1}, v{vM}
    v_xor_b32 v{vDV1}, 128, v{vDV0}
    v_add_u32 v{vDV1}, {8192-1024}, v{vDV1}
    s_and_b32 s{sW}, s{sW}, 3
    s_lshl_b32 s{sKD}, s{sW}, 11
    s_add_u32 s{sVD}, s{sKD}, {VR + (NS-1)*8192}
    s_waitcnt lgkmcnt(0)
    """)
    batch_tables(e)
    wg_range(e, o, sJ, sLO, sNT, sT0, sT1)
    e(f"""
    s_cmp_eq_u32 s{sNT}, 0
    s_cbranch_scc1 L_end
    s_lshr_b32 s{sT0}, s{sW}, 1
    s_mov_b32 s{sLD}, 0
    s_mov_b32 s{sPK}, {OOB:#x}
    """)
    def plist(vD, off, sm):
        e(f"""
        v_add_u32 v{vM}, {off}, v{vLane}
        v_add_u32 v{vT}, s{sLO}, v{vM}
        v_mov_b32 v{vB}, 0
        v_mov_b32 v{vC}, s{SC}
        v_mov_b32 v{vSt}, 0
        """)
        for b in range(1, 8):
            e(f"""
            v_cmp_le_u32 vcc, s{SS+b}, v{vT}
            v_mov_b32 v{vT2}, s{SC+b}
            v_mov_b32 v{vA}, s{SS+b}
            v_cndmask_b32 v{vC}, v{vC}, v{vT2}, vcc
            v_cndmask_b32 v{vSt}, v{vSt}, v{vA}, vcc
            v_addc_co_u32 v{vB}, vcc, 0, v{vB}, vcc
            """)
        e(f"""
        v_sub_u32 v{vT}, v{vT}, v{vSt}
        v_lshl_add_u32 v{vT}, v{vT}, 1, s{sT0}
        v_lshl_add_u32 v{vT2}, v{vB}, 9, v{vT}
        v_lshlrev_b32 v{vT2}, 2, v{vT2}
        buffer_load_dword v{vD}, v{vT2}, s[{SB}:{SB+3}], 0 offen
        v_lshlrev_b32 v{vT}, 4, v{vT}
        v_cmp_lt_u32 s[{sm}:{sm+1}], v{vT}, v{vC}
        v_cmp_gt_u32 vcc, s{sNT}, v{vM}
        s_nop 1
        s_and_b64 s[{sm}:{sm+1}], s[{sm}:{sm+1}], vcc
        """)
    vPG2 = 10
    plist(vPG, 0, 94); plist(vPG2, 64, 96)
    e(f"""
    v_mov_b32 v{vT}, {OOB:#x}
    s_waitcnt vmcnt(0)
    v_lshlrev_b32 v{vPG}, 15, v{vPG}
    v_lshlrev_b32 v{vPG2}, 15, v{vPG2}
    v_cndmask_b32 v{vPG}, v{vT}, v{vPG}, s[94:95]
    v_cndmask_b32 v{vPG2}, v{vT}, v{vPG2}, s[96:97]
    """)
    def fetch(first=False):
        e(f"""
        s_mov_b32 s{sPV}, s{sPK}
        v_readlane_b32 s{sPK}, v{vPG}, s{sLD}
        v_readlane_b32 s3, v{vPG2}, s{sLD}
        s_cmp_lt_u32 s{sLD}, 64
        s_cselect_b32 s{sPK}, s{sPK}, s3
        s_add_u32 s{sLD}, s{sLD}, 1
        """)
    def issue(first=False):
        e(f"""
        s_mov_b32 m0, s{sKD}
        s_add_u32 s{sKD}, s{sKD}, 8192
        buffer_load_dwordx4 v{vDK0}, s[{SK}:{SK+3}], s{sPK} offen{nt} lds
        buffer_load_dwordx4 v{vDK1}, s[{SK}:{SK+3}], s{sPK} offen offset:1024{nt} lds
        s_mov_b32 m0, s{sVD}
        s_add_u32 s{sVD}, s{sVD}, 8192
        """)
        if not first:
            e(f"""
            buffer_load_dwordx4 v{vDV0}, s[{SV}:{SV+3}], s{sPV} offen{nt} lds
            buffer_load_dwordx4 v{vDV1}, s[{SV}:{SV+3}], s{sPV} offen offset:1024{nt} lds
            """)
        e(f"""
        s_cmp_ge_u32 s{sKD}, {VR}
        s_cselect_b32 s{sT0}, {VR}, 0
        s_sub_u32 s{sKD}, s{sKD}, s{sT0}
        s_cmp_ge_u32 s{sVD}, {2*VR}
        s_cselect_b32 s{sT0}, {VR}, 0
        s_sub_u32 s{sVD}, s{sVD}, s{sT0}
        """)
    DS = [int(c) for c in str(o["D"])] if o["D"] else [NS - 1] * 8
    tab = sum(d << (4 * i) for i, d in enumerate(DS))
    sD = 14
    e(f"""
    s_lshr_b32 s{sT0}, s18, 8
    s_add_u32 s{sT0}, s{sT0}, s{sH}
    s_and_b32 s{sT0}, s{sT0}, 7
    s_lshl_b32 s{sT0}, s{sT0}, 2
    s_lshr_b32 s{sD}, {tab:#x}, s{sT0}
    s_and_b32 s{sD}, s{sD}, 15
    s_add_u32 s{sNT}, s{sNT}, s{sD}
    s_add_u32 s{sNT}, s{sNT}, 1
    """)
    for t in range(max(DS)):
        fetch(); e("s_nop 1"); issue(t == 0)
        if t + 1 in DS and t + 1 != max(DS): e(f"s_cmp_eq_u32 s{sD}, {t+1}\ns_cbranch_scc1 L_pre{t+1}")
    for D in sorted(set(DS), reverse=True):
        e(f"L_pre{D}:")
        fetch()
        e(f"L_ld{D}:\ns_waitcnt vmcnt({4*(D-1)})\ns_barrier")
        issue()
        if o["stamp"] == 3:
            e(f"s_memrealtime s[92:93]\ns_memtime s[94:95]\ns_sub_u32 s{sT0}, s{sLD}, {D+1}\ns_mov_b32 m0, s{sT0}\ns_waitcnt lgkmcnt(0)\nv_writelane_b32 v20, s92, m0\nv_writelane_b32 v21, s94, m0")
        fetch()
        e(f"s_cmp_le_u32 s{sLD}, s{sNT}\ns_cbranch_scc1 L_ld{D}\ns_branch L_ldone")
    e("L_ldone:")
    if FU:
        srd(e, SW, 30, 32 << 20); srd(e, SQ, 28, 256)
        e(f"s_mov_b32 s{sT0}, 0\ns_mov_b32 s{sKD}, 0\ns_mov_b32 s{sVD}, s{SS+1}")
        for b in range(1, 8):
            e(f"s_cmp_le_u32 s{SS+b}, s{sLO}\ns_cselect_b32 s{sT0}, {b}, s{sT0}\ns_cselect_b32 s{sKD}, s{SS+b}, s{sKD}\ns_cselect_b32 s{sVD}, s{SS+b+1}, s{sVD}")
        e(f"""
        s_cmp_lt_u32 s{sKD}, s{sLO}
        s_cbranch_scc0 L_lend
        s_add_u32 s{sLO}, s{sLO}, s{sNT}
        s_sub_u32 s{sLO}, s{sLO}, s{sD}
        s_sub_u32 s{sLO}, s{sLO}, 1
        s_cmp_lt_u32 s{sVD}, s{sLO}
        s_cbranch_scc0 L_lend
        s_mul_i32 s3, s{sW}, 8704
        s_add_u32 s3, s3, {2*VR}
        v_lshl_add_u32 v1, v{vLane}, 4, s3
        v_lshl_add_u32 v2, v{vLane}, 3, s3
        """)
        for c in range(8): e(f"ds_read_b128 v[{32+4*c}:{35+4*c}], v1 offset:{1024*c}")
        e(f"""
        ds_read_b64 v[30:31], v2 offset:8192
        s_lshl_b32 s{sPK}, s{sH}, 5
        buffer_load_dword v3, off, s[{SQ}:{SQ+3}], s{sPK} sc1
        s_mul_i32 s3, s{sH}, {NSLOT_H}
        s_add_u32 s{sT0}, s{sT0}, s3
        s_add_u32 s{sT0}, s{sT0}, s{sJ}
        s_lshl_b32 s{sT0}, s{sT0}, 2
        s_add_u32 s{sT0}, s{sT0}, s{sW}
        s_lshl_b32 s{sPV}, s{sT0}, {FS}
        s_add_u32 s{sPV}, s{sPV}, {FLAG_OFF}
        s_lshl_b32 s{sT1}, s{sT0}, 9
        s_add_u32 s{sT1}, s{sT1}, {ML_OFF}
        s_lshl_b32 s{sT0}, s{sT0}, 13
        s_add_u32 s{sKD}, s{sT0}, 4096
        v_lshlrev_b32 v1, 4, v{vLane}
        v_lshlrev_b32 v2, 3, v{vLane}
        """)
        for c in range(8):
            e(f"s_waitcnt lgkmcnt({8-c})\nbuffer_store_dwordx4 v[{32+4*c}:{35+4*c}], v1, s[{SW}:{SW+3}], s{sT0 if c<4 else sKD} offen offset:{1024*(c&3)}{sc}")
        e(f"""
        s_waitcnt lgkmcnt(0)
        buffer_store_dwordx2 v[30:31], v2, s[{SW}:{SW+3}], s{sT1} offen{sc}
        s_mov_b32 s{sVD}, {POLL:#x}
        v_mov_b32 v4, 1
        L_lgo:
        s_waitcnt vmcnt(0)
        v_readfirstlane_b32 s3, v3
        s_cmp_lg_u32 s3, 0
        s_cbranch_scc1 L_lgo_ok
        buffer_load_dword v3, off, s[{SQ}:{SQ+3}], s{sPK} sc1
        s_sub_u32 s{sVD}, s{sVD}, 1
        s_cbranch_scc0 L_lgo
        L_lgo_ok:
        s_mov_b64 exec, 1
        buffer_store_dword v4, off, s[{SW}:{SW+3}], s{sPV} sc1
        s_mov_b64 exec, -1
        L_lend:
        """)
    if o["stamp"] == 3:
        srd(e, SW, 30, 32 << 20)
        e(f"""
        s_lshl_b32 s3, s2, 2
        s_add_u32 s3, s3, s{sW}
        s_lshl_b32 s3, s3, 9
        s_add_u32 s3, s3, {STAMP_OFF + (1 << 20)}
        v_lshlrev_b32 v8, 2, v{vLane}
        buffer_store_dword v20, v8, s[{SW}:{SW+3}], s3 offen
        buffer_store_dword v21, v8, s[{SW}:{SW+3}], s3 offen offset:256
        """)
    e("s_endpgm")
    return e.text(), NS * 16384 + (4 * 8704 if FU else 0)

def build2(**kw):
    o = dict(DEF2); o.update(kw)
    k1, lds = main_kernel2(o)
    hdr = '.amdgcn_target "amdgcn-amd-amdhsa--gfx950"\n.text\n'
    if o["fuse"] or o["single"]:
        return f"; @launch {'kernel=' + NAME + '_kernel ' if o['single'] == 2 else ''}grid=(256,1,1) block=(512,1,1) lds={lds}\n" + hdr + k1 + '.section .rodata,"a"\n' + desc(NAME + "_kernel", 256, 256)
    s = f"; @launch kernel={NAME}_kernel grid=(256,1,1) block=(512,1,1) lds={lds}\n"
    s += "; @launch kernel=combine_kernel grid=(256,1,1) block=(256,1,1) lds=0\n"
    return s + hdr + k1 + combine_kernel(o) + '.section .rodata,"a"\n' + desc(NAME + "_kernel", 256, 256) + desc("combine_kernel", 104, 104)

if __name__ == "__main__":
    kw = {}
    for a in sys.argv[2:]:
        k, v = a.split("="); kw[k] = int(v)
    open(sys.argv[1], "w").write(build2(**kw))
```

```python
import sys
from gen import *
import gen

DEF2 = dict(NS=4, nt=1, hmap=0, compute=1, stamp=0, pad=0, prio=1, empty=0, single=0, warm=0, cm=7, lay=16, D=0, cnt=0, fuse=1, tk=3, ss=1, nopoll=0, rot=1, xt=0, wm=0, tl=1, inc=1)
GUARD = f2u(1024.0)
FLAG_OFF = 14 << 20
FS = 6
POLL = 0x100000

def wg_range(e, o, sJ, sLO, sNT, t0, t1):
    P = o["pad"]
    e(f"""
    s_add_u32 s{t0}, s{SS+8}, {7*P}
    s_mul_i32 s{t0}, s{t0}, s35
    s_mul_i32 s{sLO}, s{sJ}, s{t0}
    s_add_u32 s{sNT}, s{sLO}, s{t0}
    s_lshr_b32 s{sLO}, s{sLO}, 17
    s_lshr_b32 s{sNT}, s{sNT}, 17
    """)
    if P:
        for b in range(1, 8):
            for r in (sLO, sNT):
                e(f"""
                s_sub_i32 s{t0}, s{r}, s{SS+b}
                s_max_i32 s{t0}, s{t0}, 0
                s_min_i32 s{t0}, s{t0}, {P}
                s_sub_u32 s{r}, s{r}, s{t0}
                """)
    e(f"s_sub_u32 s{sNT}, s{sNT}, s{sLO}")

def main_kernel2(o):
    NS = o["NS"]; nt = ["", " nt", " sc0", " sc1", " sc0 sc1", " sc0 nt", " sc1 nt", " sc0 sc1 nt"][o["nt"]]
    e = E()
    vO, vS, vNM, vQ, vQn, vK, vV, vP, vE, vKA, vVA = 0, (64, 80), 96, 104, 136, 168, 184, 216, 224, 228, 232
    vL, vLS, vT, vT2, vA, vLane, vU, vU2, vST = 240, 244, 248, 249, 250, 251, 252, 253, 255
    sH, sJ, sW, sLO, sNT = 4, 5, 6, 7, 8
    sI, sE, sMK, sREM, sSC = 9, 10, 11, 12, 13
    sBB, sG, sT0, sT1, sSEG = 14, 15, 32, 33, 34
    VR = NS * 8192
    FU = o["fuse"]
    SD = SK
    sMS, sNF, sTI, sPD, sCA, sKK, sTM, sSL = 86, 88, 89, 90, 91, 85, 96, 97
    vTK = 254
    sc = ["", " sc1", " sc1 nt", " sc0 sc1", " nt"][o["ss"]] if FU else ""
    def stamp(i, clk=False):
        if o["stamp"]:
            e(f"{'s_memtime' if clk else 's_memrealtime'} s[92:93]\ns_waitcnt lgkmcnt(0)\nv_writelane_b32 v{vST}, s92, {i}")
    e(f"""
    .globl {NAME}_kernel
    .p2align 8
    .type {NAME}_kernel,@function
    {NAME}_kernel:
    s_cmp_ge_u32 s2, {0 if o["empty"] else 256}
    s_cbranch_scc1 L_end
    s_load_dwordx16 s[16:31], s[0:1], 0
    """)
    stamp(0); stamp(6, True)
    if o["xt"] == 1:
        e(f"s_getreg_b32 s3, hwreg(HW_REG_XCC_ID, 0, 4)\ns_and_b32 s4, s2, 7\ns_cmp_eq_u32 s3, s4\ns_cbranch_scc1 L_xt\ns_mov_b32 s3, 8000\nL_xl:\ns_sub_u32 s3, s3, 1\ns_cbranch_scc0 L_xl\nL_xt:")
    cn = counts(o); base = min(cn)
    ex = [(c, k) for k in range(max(cn) - base) for c in range(8) if cn[c] - base > k]
    e(f"s_and_b32 s{sH}, s2, 7\ns_lshr_b32 s{sJ}, s2, 3")
    if ex:
        assert len(ex) <= 16
        tb = sum((c | (k << 3)) << (8 * i) for i, (c, k) in enumerate(ex))
        e(f"""
        s_mov_b32 s8, {tb & 0xffffffff:#x}
        s_mov_b32 s9, {(tb >> 32) & 0xffffffff:#x}
        s_mov_b32 s10, {(tb >> 64) & 0xffffffff:#x}
        s_mov_b32 s11, {(tb >> 96) & 0xffffffff:#x}
        s_sub_u32 s3, s2, {8*base}
        s_bitcmp1_b32 s3, 3
        s_cselect_b64 s[8:9], s[10:11], s[8:9]
        s_lshl_b32 s3, s3, 3
        s_lshr_b64 s[8:9], s[8:9], s3
        s_bfe_u32 s9, s8, 0x50003
        s_add_u32 s9, s9, {base}
        s_and_b32 s8, s8, 7
        s_cmp_ge_u32 s2, {8*base}
        s_cselect_b32 s{sH}, s8, s{sH}
        s_cselect_b32 s{sJ}, s9, s{sJ}
        """)
    magic_of_class(e, o, sH, 35)
    e(f"""
    v_lshrrev_b32 v{vT}, 6, v0
    v_and_b32 v{vLane}, 63, v0
    v_readfirstlane_b32 s{sW}, v{vT}
    s_waitcnt lgkmcnt(0)
    s_lshr_b32 s3, s18, 8
    s_sub_u32 s{sH}, s{sH}, s3
    s_and_b32 s{sH}, s{sH}, 7
    s_load_dwordx8 s[{SCL}:{SCL+7}], s[24:25], 0
    s_cmp_ge_u32 s{sW}, 4
    s_cbranch_scc1 L_loader
    """)
    if o["wm"]:
        e(f"s_cmp_ge_u32 s{sW}, 2\ns_cbranch_scc1 L_nowm\ns_cmp_eq_u32 s{sW}, 0\ns_cselect_b64 s[{SV}:{SV+1}], s[18:19], s[20:21]")
        e(f"s_and_b32 s{SV+1}, s{SV+1}, 0xffff\ns_mov_b32 s{SV+2}, {KV_BYTES:#x}\ns_mov_b32 s{SV+3}, 0x20000")
        e(f"v_lshlrev_b32 v12, 21, v{vLane}\ns_lshl_b32 s3, s2, 12\nbuffer_load_dword v13, v12, s[{SV}:{SV+3}], s3 offen\nL_nowm:")
    srd(e, SQ, 16, Q_BYTES); srd(e, SW, 30, 32 << 20)
    if FU:
        srd(e, SD, 28, 256); srd(e, SO, 26, Q_BYTES)
        e(f"""
        s_lshl_b32 s{sCA}, s{sH}, 5
        s_mul_i32 s{sSL}, s{sH}, {NSLOT_H}
        v_mov_b32 v{vTK}, 0
        s_or_b32 s3, s{sJ}, s{sW}
        s_cbranch_scc1 L_noclr
        s_lshl_b32 s3, s{sSL}, {FS+2}
        s_add_u32 s3, s3, {FLAG_OFF}
        v_lshlrev_b32 v1, {FS}, v{vLane}
        v_add_u32 v2, {64 << FS}, v1
        v_add_u32 v3, {(4*NSLOT_H - 64) << FS}, v1
        buffer_store_dword v{vTK}, v1, s[{SW}:{SW+3}], s3 offen sc1
        buffer_store_dword v{vTK}, v2, s[{SW}:{SW+3}], s3 offen sc1
        buffer_store_dword v{vTK}, v3, s[{SW}:{SW+3}], s3 offen sc1
        L_noclr:
        """)
    e(f"""
    v_and_b32 v{vT}, 15, v{vLane}
    v_lshrrev_b32 v{vT2}, 4, v{vLane}
    v_xor_b32 v{vA}, v{vT}, v{vT2}
    v_lshlrev_b32 v{vA}, 4, v{vA}
    v_lshl_add_u32 v{vKA}, v{vT}, 8, v{vA}
    """)
    for k4 in range(1, 4):
        e(f"v_xor_b32 v{vKA+k4}, {k4<<6}, v{vKA}")
    e(f"""
    v_lshrrev_b32 v{vT}, 2, v{vLane}
    v_lshrrev_b32 v{vT2}, 5, v{vLane}
    v_lshlrev_b32 v{vT2}, 2, v{vT2}
    v_xor_b32 v{vT2}, v{vT2}, v{vT}
    v_and_b32 v{vT2}, 7, v{vT2}
    v_lshlrev_b32 v{vA}, 8, v{vT}
    v_lshl_add_u32 v{vA}, v{vT2}, 5, v{vA}
    v_and_b32 v{vT}, 3, v{vLane}
    v_lshl_add_u32 v{vA}, v{vT}, 3, v{vA}
    v_add_u32 v{vVA}, {VR}, v{vA}
    """)
    for db in range(1, 8):
        e(f"v_xor_b32 v{vVA+db}, {db<<5}, v{vVA}")
    e(f"s_mov_b32 s{sG}, {GUARD:#x}\ns_waitcnt lgkmcnt(0)")
    stamp(1)
    batch_tables(e)
    wg_range(e, o, sJ, sLO, sNT, sT0, sT1)
    e(f"""
    s_cmp_eq_u32 s{sNT}, 0
    s_cbranch_scc1 L_idle
    s_mov_b32 s{sBB}, 0
    """)
    for b in range(1, 8):
        e(f"s_cmp_le_u32 s{SS+b}, s{sLO}\ns_cselect_b32 s{sBB}, {b}, s{sBB}")
    def seg_params():
        e(f"""
        s_mov_b32 m0, s{sBB}
        s_nop 0
        s_movrels_b32 s{sREM}, s{SC}
        s_movrels_b32 s{sMK}, s{SS+1}
        s_movrels_b32 s{sSC}, s{SCL}
        s_sub_u32 s{sMK}, s{sMK}, s{sLO}
        s_min_u32 s{sE}, s{sMK}, s{sNT}
        s_sub_u32 s{sMK}, s{sMK}, 1
        s_sub_u32 s{sREM}, s{sREM}, 1
        s_and_b32 s{sREM}, s{sREM}, 31
        s_add_u32 s{sREM}, s{sREM}, 1
        s_cmp_gt_i32 s{sSC}, 0
        s_cselect_b32 s{sSC}, {CSCALE:#x}, 0
        """)
    def q_load(boff):
        e(f"""
        s_add_u32 s{sT0}, s{sBB}, {boff}
        s_lshl_b32 s{sT0}, s{sT0}, 3
        s_add_u32 s{sT0}, s{sT0}, s{sH}
        s_lshl_b32 s{sT0}, s{sT0}, 2
        s_add_u32 s{sT0}, s{sT0}, s{sW}
        s_lshl_b32 s{sT0}, s{sT0}, 13
        v_and_b32 v{vT}, 15, v{vLane}
        v_lshrrev_b32 v{vT2}, 4, v{vLane}
        v_lshlrev_b32 v{vT}, 8, v{vT}
        v_lshl_add_u32 v{vT}, v{vT2}, 4, v{vT}
        v_add_u32 v{vT2}, 4096, v{vT}
        """)
        if boff:
            e(f"s_cmp_lt_u32 s{sE}, s{sNT}\ns_cselect_b32 s{sT0}, s{sT0}, {OOB:#x}")
        for ks in range(8):
            e(f"buffer_load_dwordx4 v[{vQn+4*ks}:{vQn+4*ks+3}], v{vT2 if ks >= 4 else vT}, s[{SQ}:{SQ+3}], s{sT0} offen offset:{64*(ks&3)}")
    def q_scale():
        for i in range(32):
            a, b = vE + 2 * (i & 1), vE + 2 * (i & 1) + 1
            e(f"""
            v_lshlrev_b32 v{a}, 16, v{vQn+i}
            v_and_b32 v{b}, 0xffff0000, v{vQn+i}
            v_mul_f32 v{a}, s{sSC}, v{a}
            v_mul_f32 v{b}, s{sSC}, v{b}
            v_cvt_pk_bf16_f32 v{vQ+i}, v{a}, v{b}
            """)
    seg_params()
    q_load(0)
    if o["tl"]: e("s_barrier")
    if FU:
        P = o["pad"]
        e(f"""
        s_add_u32 s{sT0}, s{sLO}, s{sNT}
        s_mov_b32 s{sMS}, 0
        s_mov_b32 s{sMS+1}, s{SS+1}
        """)
        for b in range(1, 8):
            e(f"s_cmp_lt_u32 s{SS+b}, s{sT0}\ns_cselect_b32 s{sMS}, s{SS+b}, s{sMS}\ns_cselect_b32 s{sMS+1}, s{SS+b+1}, s{sMS+1}")
        e(f"""
        s_add_u32 s{sT0}, s{SS+8}, {7*P}
        s_mul_i32 s{sT0}, s{sT0}, s35
        v_mul_lo_u32 v1, s{sT0}, v{vLane}
        v_add_u32 v2, s{sT0}, v1
        v_lshrrev_b32 v1, 17, v1
        v_lshrrev_b32 v2, 17, v2
        """)
        for b in range(1, 8) if P else ():
            for r in (1, 2):
                e(f"v_subrev_u32 v3, s{SS+b}, v{r}\nv_med3_i32 v3, v3, 0, {P}\nv_sub_u32 v{r}, v{r}, v3")
        e(f"""
        v_cmp_ge_u32 s[94:95], s{sMS+1}, v2
        v_max_u32 v1, s{sMS}, v1
        v_min_u32 v2, s{sMS+1}, v2
        v_cmp_lt_u32 vcc, v1, v2
        s_and_b32 s{sTI}, s{sJ}, 15
        s_add_u32 s{sTI}, s{sTI}, {o["tk"]}
        s_mov_b32 s{sPD}, -1
        s_mov_b64 s[{sMS}:{sMS+1}], vcc
        s_and_b64 s[94:95], s[94:95], vcc
        s_bcnt1_i32_b64 s{sT0}, s[94:95]
        s_bfm_b64 s[98:99], s{sJ}, 0
        s_and_b64 s[94:95], s[94:95], s[98:99]
        s_bcnt1_i32_b64 s{sT1}, s[94:95]
        s_mov_b32 s{sNF}, {"s%d" % sW if o["rot"] else 0}
        s_cmp_ge_u32 s{sNF}, s{sT0}
        s_cselect_b32 s3, s{sT0}, 0
        s_sub_u32 s{sNF}, s{sNF}, s3
        s_cmp_ge_u32 s{sNF}, s{sT0}
        s_cselect_b32 s3, s{sT0}, 0
        s_sub_u32 s{sNF}, s{sNF}, s3
        s_cmp_ge_u32 s{sNF}, s{sT0}
        s_cselect_b32 s3, s{sT0}, 0
        s_sub_u32 s{sNF}, s{sNF}, s3
        s_sub_u32 s{sNF}, s{sNF}, s{sT1}
        s_bitset0_b64 s[{sMS}:{sMS+1}], s{sJ}
        """)
    def ticket():
        e(f"buffer_load_dword v{vTK}, off, s[{SD}:{SD+3}], s{sCA} sc1\ns_mov_b32 s{sTI}, 0x7fffffff")
    def go(tag):
        e(f"""
        s_mov_b32 s{sTM}, {POLL:#x}
        L_go{tag}:
        v_readfirstlane_b32 s3, v{vTK}
        s_cmp_lg_u32 s3, 0
        s_cbranch_scc1 L_go{tag}_ok
        buffer_load_dword v{vTK}, off, s[{SD}:{SD+3}], s{sCA} sc1
        s_sub_u32 s{sTM}, s{sTM}, 1
        s_waitcnt vmcnt(0)
        s_cbranch_scc0 L_go{tag}
        L_go{tag}_ok:
        """)
    def signal(sA):
        e(f"""
        v_mov_b32 v{vA}, 1
        s_mov_b64 exec, 1
        buffer_store_dword v{vA}, off, s[{SW}:{SW+3}], s{sA} sc1
        s_mov_b64 exec, -1
        """)
    e(f"s_mov_b32 s{sI}, 0\ns_mov_b32 s{sSEG}, 0\ns_waitcnt vmcnt(0)")
    def publish(tag):
        if FU: e(f"""
        s_or_b32 s3, s{sJ}, s{sW}
        s_cbranch_scc1 L_nopub{tag}
        v_mov_b32 v4, 1
        s_mov_b64 exec, 1
        s_waitcnt vmcnt(0)
        buffer_store_dword v4, off, s[{SD}:{SD+3}], s{sCA} sc1
        s_mov_b64 exec, -1
        L_nopub{tag}:
        """)
    publish("a")
    q_scale()
    q_load(1)
    stamp(2)
    e("s_barrier")
    stamp(3)
    e("s_branch L_first")

    def kread(j, slot, base=vKA):
        r = vK + 4 * (j & 3)
        return f"ds_read_b128 v[{r}:{r+3}], v{base+(j&3)} offset:{slot*8192+4096*(j>>2)}"
    def vread(db, u, slot, base=vVA):
        r = vV + 4 * db + 2 * u
        return f"ds_read_b64_tr_b16 v[{r}:{r+1}], v{base+db} offset:{slot*8192+4096*u}"
    R4 = lambda r: f"v[{r}:{r+3}]"
    R2 = lambda r: f"v[{r}:{r+1}]"
    SI = lambda S, qb, i: S + 8 * (i >> 2) + 4 * qb + (i & 3)
    def qk(j, qb, S, zero=False):
        d = S + 8 * (j >> 2) + 4 * qb
        c = R4(d) if j & 3 else ("0" if zero else R4(vNM + 4 * qb))
        return f"v_mfma_f32_16x16x32_bf16 {R4(d)}, {R4(vK+4*(j&3))}, {R4(vQ+16*qb+4*(j&3))}, {c}"
    def pv(db, qb):
        d = vO + 8 * db + 4 * qb
        return f"v_mfma_f32_16x16x32_bf16 {R4(d)}, {R4(vV+4*db)}, {R4(vP+4*qb)}, {R4(d)}"
    def soft(S, qb):
        EX = lambda i: f"v_exp_f32 v{vE+(i&3)}, v{SI(S, qb, i)}"
        CV = lambda m: f"v_cvt_pk_bf16_f32 v{vP+4*qb+m}, v{vE+((2*m)&3)}, v{vE+((2*m+1)&3)}"
        LS = R2(vLS + 2 * qb)
        return [EX(0), EX(1), EX(2), EX(3), CV(0), f"v_pk_add_f32 {LS}, {R2(vE)}, {R2(vE+2)}", CV(1),
                EX(4), EX(5), EX(6), f"v_pk_add_f32 {LS}, {LS}, {R2(vE)}", EX(7), CV(2),
                f"v_pk_add_f32 {LS}, {LS}, {R2(vE+2)}", CV(3)]
    def guard():
        return [f"v_max3_f32 v{vT}, v{vLS}, v{vLS+1}, v{vLS+2}", f"v_max_f32 v{vT}, v{vT}, v{vLS+3}", f"v_cmp_lt_f32 vcc, s{sG}, v{vT}"]
    def lacc():
        return [f"v_pk_add_f32 {R2(vL+2*q)}, {R2(vL+2*q)}, {R2(vLS+2*q)}" for q in range(2)]
    def mask_block(S):
        e(f"s_nop 7\nv_lshrrev_b32 v{vA}, 4, v{vLane}\nv_lshlrev_b32 v{vA}, 2, v{vA}\nv_mov_b32 v{vT}, {NEGINF:#x}")
        for i in range(8):
            e(f"""
            v_add_u32 v{vT2}, {(i & 3) + 16 * (i >> 2)}, v{vA}
            v_cmp_gt_u32 vcc, s{sREM}, v{vT2}
            s_nop 1
            v_cndmask_b32 v{SI(S, 0, i)}, v{vT}, v{SI(S, 0, i)}, vcc
            v_cndmask_b32 v{SI(S, 1, i)}, v{vT}, v{SI(S, 1, i)}, vcc
            """)
    def xlane(op, regs):
        tm = (vT2, vU2)
        for sw in ("v_permlane16_swap_b32", "v_permlane32_swap_b32"):
            for r, t in zip(regs, tm): e(f"v_mov_b32 v{t}, v{r}")
            e("s_nop 1")
            for r, t in zip(regs, tm): e(f"{sw} v{r}, v{t}")
            e("s_nop 1")
            for r, t in zip(regs, tm): e(f"{op} v{r}, v{r}, v{t}")
    MX = (vT, vU)
    def rowmax(S):
        for q in range(2):
            x = lambda i: SI(S, q, i)
            e(f"""
            v_max3_f32 v{MX[q]}, v{x(0)}, v{x(1)}, v{x(2)}
            v_max3_f32 v{MX[q]}, v{MX[q]}, v{x(3)}, v{x(4)}
            v_max3_f32 v{MX[q]}, v{MX[q]}, v{x(5)}, v{x(6)}
            v_max_f32 v{MX[q]}, v{MX[q]}, v{x(7)}
            """)
        xlane("v_max_f32", MX)
    def slow(So, Sn):
        e("s_nop 7")
        rowmax(So)
        AL = (vT2, vU2)
        for q in range(2): e(f"v_max_f32 v{MX[q]}, 0, v{MX[q]}\nv_exp_f32 v{AL[q]}, -v{MX[q]}")
        for q in range(2):
            for i in range(8): e(f"v_sub_f32 v{SI(So, q, i)}, v{SI(So, q, i)}, v{MX[q]}")
            for i in range(4): e(f"v_sub_f32 v{vNM+4*q+i}, v{vNM+4*q+i}, v{MX[q]}")
            if Sn is not None:
                for i in range(8): e(f"v_sub_f32 v{SI(Sn, q, i)}, v{SI(Sn, q, i)}, v{MX[q]}")
            for db in range(8):
                for i in range(4): e(f"v_mul_f32 v{vO+8*db+4*q+i}, v{vO+8*db+4*q+i}, v{AL[q]}")
            for i in range(2): e(f"v_mul_f32 v{vL+2*q+i}, v{vL+2*q+i}, v{AL[q]}")
        for q in range(2):
            for x in soft(So, q): e(x)
        e("s_nop 1")

    class Lds:
        def __init__(self): self.q = []
        def rd(self, tag, ins): e(ins); self.q.append(tag)
        def need(self, tag):
            idx = [i for i, t in enumerate(self.q) if t == tag]
            if idx:
                n = len(self.q) - 1 - idx[-1]
                assert n <= 15
                e(f"s_waitcnt lgkmcnt({n})"); self.q = self.q[idx[-1] + 1:]

    e(".p2align 6")
    mark = len(e.l)
    for p in range(NS):
        Sn, So = vS[p & 1], vS[(p + 1) & 1]
        ks_, vs_ = p, (p - 1) % NS
        e(f"L_ph{p}:\ns_barrier")
        e(f"s_cmp_ge_u32 s{sI}, s{sE}\ns_cbranch_scc1 L_bnd{p}")
        if o["compute"]:
            L = Lds()
            sb, sa = soft(So, 1), soft(Sn, 0)
            fill = [[] for _ in range(32)]
            for j in range(4): fill[2 * j + 1].append(("K", j + 4))
            for n in range(16): fill[3 + n].append(("V", n))
            rest = sb[5:] + guard()
            for n, x in enumerate(rest): fill[n + 1].append(x)
            fill[16] += [lacc()[0], f"s_cmp_eq_u32 s{sI}, s{sMK}"]
            fill[17] += [lacc()[1], f"s_cbranch_scc1 L_mask{p}\nL_mask{p}_ret:"]
            for n, x in zip((18, 19, 20, 21), sa[:4]): fill[n].append(x)
            fill[22].append(sa[5])
            fill[24] += [sa[4], sa[6]]
            for n, x in zip((24, 25, 26, 27, 27, 28, 29, 30), sa[7:]): fill[n].append(x)
            if FU: fill[25] += [f"s_cmp_ge_i32 s{sI}, s{sTI}", f"s_cbranch_scc1 L_tick{p}\nL_tick{p}_ret:"]
            fill[30].append(f"s_add_u32 s{sI}, s{sI}, 1")
            for j in range(4): L.rd(("K", j), kread(j, ks_))
            for x in sb[:5]: e(x)
            for sl in range(32):
                if sl < 16:
                    if not sl & 1: L.need(("K", sl >> 1))
                    e(qk(sl >> 1, sl & 1, Sn))
                else:
                    if sl == 16: e(f"s_cbranch_vccnz L_slow{p}\nL_slow{p}_ret:")
                    if sl < 24: L.need(("V", 2 * (sl - 16) + 1))
                    e(pv((sl - 16) & 7, (sl - 16) >> 3))
                for x in fill[sl]:
                    if isinstance(x, tuple):
                        L.rd(x, kread(x[1], ks_) if x[0] == "K" else vread(x[1] >> 1, x[1] & 1, vs_))
                    else: e(x)
        else:
            e(f"s_add_u32 s{sI}, s{sI}, 1\nL_slow{p}_ret:\nL_mask{p}_ret:")
        if p == NS - 1:
            e("s_branch L_ph0")
    drop = [x for b, xs in ((1, ["ds_read"]), (2, ["v_mfma"]), (4, ["v_exp", "v_pk_add", "v_cvt_pk"])) if not o["cm"] & b for x in xs]
    e.l[mark:] = [x for x in e.l[mark:] if not any(x.strip().startswith(d) for d in drop)]
    for p in range(NS):
        Sn, So = vS[p & 1], vS[(p + 1) & 1]
        e(f"L_slow{p}:"); slow(So, Sn); e(f"s_branch L_slow{p}_ret")
        e(f"L_mask{p}:"); mask_block(Sn); e(f"s_branch L_mask{p}_ret")
        if FU and o["compute"]: e(f"L_tick{p}:"); ticket(); e(f"s_branch L_tick{p}_ret")
        e(f"L_bnd{p}:")
        vr = [vread(db, u, (p - 1) % NS) for db in range(8) for u in range(2)]
        for x in vr[:12]: e(x)
        if So != vS[0]:
            for i in range(16): e(f"v_mov_b32 v{vS[0]+i}, v{So+i}")
        e("s_waitcnt lgkmcnt(8)")
        for x in vr[12:]: e(x)
        e("s_branch L_last")
    e("L_last:")
    for x in soft(vS[0], 1) + guard(): e(x)
    e("s_nop 1\ns_cbranch_vccz L_last_ok")
    slow(vS[0], None)
    e("L_last_ok:")
    for x in lacc(): e(x)
    e("s_waitcnt lgkmcnt(0)")
    for qb in range(2):
        for db in range(8): e(pv(db, qb))
    stamp(4)
    e(f"v_add_f32 v{vT}, v{vL}, v{vL+1}\nv_add_f32 v{vU}, v{vL+2}, v{vL+3}")
    xlane("v_add_f32", MX)
    if FU:
        e(f"""
        s_add_u32 s{sPD}, s{sSL}, s{sJ}
        s_add_u32 s{sPD}, s{sPD}, s{sBB}
        s_lshl_b32 s{sPD}, s{sPD}, 2
        s_add_u32 s{sPD}, s{sPD}, s{sW}
        s_lshl_b32 s{sPD}, s{sPD}, {FS}
        s_add_u32 s{sPD}, s{sPD}, {FLAG_OFF}
        s_waitcnt vmcnt(0)
        s_cmp_lt_u32 s{sI}, s{sNT}
        s_cbranch_scc0 L_fin
        s_mov_b32 m0, s{sBB}
        s_nop 0
        s_movrels_b32 s{sT0}, s{SS}
        s_cmp_lt_u32 s{sT0}, s{sLO}
        s_cbranch_scc0 L_out
        s_mul_i32 s{sT0}, s{sW}, 8704
        s_add_u32 s{sT0}, s{sT0}, {2*VR}
        v_and_b32 v{vA}, 16, v{vLane}
        v_cmp_eq_u32 vcc, 0, v{vA}
        v_lshl_add_u32 v{vA}, v{vLane}, 3, s{sT0}
        v_lshl_add_u32 v{vE}, v{vLane}, 4, s{sT0}
        v_cndmask_b32 v{vT2}, v{vU}, v{vT}, vcc
        v_cndmask_b32 v{vT}, v{vNM+4}, v{vNM}, vcc
        v_sub_f32 v{vT}, 0, v{vT}
        ds_write_b64 v{vA}, v[{vT}:{vT+1}] offset:8192
        """)
        for c in range(8):
            q, pp = c >> 2, c & 3
            for n in range(4):
                r = vO + 8 * (2 * pp + (n >> 1)) + 4 * q + 2 * (n & 1)
                e(f"v_cvt_pk_bf16_f32 v{vV+4*c+n}, v{r}, v{r+1}")
            e(f"ds_write_b128 v{vE}, v[{vV+4*c}:{vV+4*c+3}] offset:{1024*c}")
        e(f"""
        s_branch L_next
        L_fin:
        s_cmp_eq_u32 s{sNF}, 0
        s_cbranch_scc1 L_merge
        L_part:
        """)
    e(f"""
    v_and_b32 v{vA}, 16, v{vLane}
    v_cmp_eq_u32 vcc, 0, v{vA}
    s_add_u32 s{sT0}, s{sJ}, s{sBB}
    s_mul_i32 s{sT1}, s{sH}, {NSLOT_H}
    s_add_u32 s{sT0}, s{sT0}, s{sT1}
    v_cndmask_b32 v{vT2}, v{vU}, v{vT}, vcc
    v_cndmask_b32 v{vT}, v{vNM+4}, v{vNM}, vcc
    s_lshl_b32 s{sT0}, s{sT0}, 2
    s_add_u32 s{sT0}, s{sT0}, s{sW}
    v_sub_f32 v{vT}, 0, v{vT}
    s_lshl_b32 s{sT1}, s{sT0}, 9
    s_add_u32 s{sT1}, s{sT1}, {ML_OFF}
    v_lshlrev_b32 v{vA}, 3, v{vLane}
    s_lshl_b32 s{sT0}, s{sT0}, 13
    buffer_store_dwordx2 v[{vT}:{vT+1}], v{vA}, s[{SW}:{SW+3}], s{sT1} offen{sc}
    s_add_u32 s{sT1}, s{sT0}, 4096
    v_lshlrev_b32 v{vU}, 4, v{vLane}
    """)
    for c in range(8):
        q, pp = c >> 2, c & 3
        for n in range(4):
            r = vO + 8 * (2 * pp + (n >> 1)) + 4 * q + 2 * (n & 1)
            e(f"v_cvt_pk_bf16_f32 v{vV+4*c+n}, v{r}, v{r+1}")
        e(f"buffer_store_dwordx4 v[{vV+4*c}:{vV+4*c+3}], v{vU}, s[{SW}:{SW+3}], s{sT0 if c<4 else sT1} offen offset:{1024*(c&3)}{sc}")
    e(f"""
    s_cmp_ge_u32 s{sI}, s{sNT}
    s_cbranch_scc1 {"L_pdone" if FU else "L_done"}
    L_next:
    s_add_u32 s{sBB}, s{sBB}, 1
    {"" if FU else "s_waitcnt vmcnt(9)"}
    """)
    seg_params()
    q_scale()
    q_load(1)
    e(f"""
    L_first:
    s_mov_b32 s{sT0}, s{sI}
    """)
    if NS & (NS - 1):
        e(f"s_mul_i32 s{sT1}, s{sI}, {(65536 + NS - 1) // NS}\ns_lshr_b32 s{sT1}, s{sT1}, 16\ns_mul_i32 s{sT1}, s{sT1}, {NS}\ns_sub_u32 s{sT0}, s{sI}, s{sT1}")
    else:
        e(f"s_and_b32 s{sT0}, s{sI}, {NS-1}")
    e(f"s_lshl_b32 s{sT1}, s{sT0}, 13")
    for k4 in range(4): e(f"v_add_u32 v{vS[1]+k4}, s{sT1}, v{vKA+k4}")
    for j in range(4): e(kread(j, 0, vS[1]))
    for i in range(64): e(f"v_mov_b32 v{vO+i}, 0")
    for i in range(4): e(f"v_mov_b32 v{vL+i}, 0")
    for j in range(8):
        e(f"s_waitcnt lgkmcnt({min(3, 7-j)})"); e(qk(j, 0, vS[0], True)); e(qk(j, 1, vS[0], True))
        if j < 4: e(kread(j + 4, 0, vS[1]))
    e(f"s_nop 7\ns_cmp_lg_u32 s{sI}, s{sMK}\ns_cbranch_scc1 L_f_nomask")
    mask_block(vS[0])
    e("L_f_nomask:")
    rowmax(vS[0])
    for q in range(2):
        for i in range(8): e(f"v_sub_f32 v{SI(vS[0], q, i)}, v{SI(vS[0], q, i)}, v{MX[q]}")
        for i in range(4): e(f"v_sub_f32 v{vNM+4*q+i}, 0, v{MX[q]}")
    for x in soft(vS[0], 0): e(x)
    e(f"s_bitcmp0_b32 s{sT0}, 0\ns_cbranch_scc1 L_f_even")
    for i in range(8, 16): e(f"v_mov_b32 v{vS[1]+i}, v{vS[0]+i}")
    for i in range(8): e(f"v_mov_b32 v{vS[1]+i}, v{vS[0]+i}")
    e(f"L_f_even:\ns_add_u32 s{sI}, s{sI}, 1")
    for p in range(NS - 1):
        e(f"s_cmp_eq_u32 s{sT0}, {p}\ns_cbranch_scc1 L_ph{p+1}")
    e("s_branch L_ph0")
    if FU:
        BUF, vML, vM, vAL, vA2 = (64, 104, 136, 184), 168, 216, 218, 222
        LL = (vT, vU)
        vFA, vFL, sFO = 236, 237, sPD
        e("L_pdone:\ns_waitcnt vmcnt(0)")
        go("b"); signal(sPD)
        e(f"""
        s_branch L_done
        L_merge:
        s_bcnt1_i32_b64 s{sKK}, s[{sMS}:{sMS+1}]
        s_cmp_eq_u32 s{sKK}, 0
        s_cbranch_scc1 L_out
        """)
        go("c")
        e(f"""
        s_add_u32 s{sSL}, s{sSL}, s{sBB}
        s_lshl_b32 s{sFO}, s{sSL}, 2
        s_add_u32 s{sFO}, s{sFO}, s{sW}
        s_lshl_b32 s{sFO}, s{sFO}, {FS}
        s_add_u32 s{sFO}, s{sFO}, {FLAG_OFF}
        v_lshlrev_b32 v{vFA}, {FS+2}, v{vLane}
        s_mov_b64 exec, s[{sMS}:{sMS+1}]
        buffer_load_dword v{vFL}, v{vFA}, s[{SW}:{SW+3}], s{sFO} offen sc1
        s_mov_b64 exec, -1
        v_sub_f32 v{vM}, 0, v{vNM}
        v_sub_f32 v{vM+1}, 0, v{vNM+4}
        v_and_b32 v{vA}, 15, v{vLane}
        v_lshlrev_b32 v{vA}, 3, v{vA}
        v_add_u32 v{vA}, {ML_OFF}, v{vA}
        v_lshlrev_b32 v{vA2}, 4, v{vLane}
        v_add_u32 v{vA2+1}, 4096, v{vA2}
        s_mov_b64 exec, s[{sMS}:{sMS+1}]
        L_poll:
        s_waitcnt vmcnt(0)
        v_cmp_{"eq" if o["inc"] else "ne"}_u32 vcc, 1, v{vFL}
        s_sub_u32 s{sTM}, s{sTM}, 1
        s_cbranch_scc1 L_all
        s_cbranch_{"vccnz L_ready" if o["inc"] else "vccz L_all"}
        buffer_load_dword v{vFL}, v{vFA}, s[{SW}:{SW+3}], s{sFO} offen sc1
        s_branch L_poll
        L_all:
        s_mov_b32 s{sTM}, 0
        s_mov_b64 vcc, s[{sMS}:{sMS+1}]
        L_ready:
        s_mov_b64 exec, -1
        s_bcnt1_i32_b64 s{sKK}, vcc
        """)
        NSL = 6
        B16, MLR, SOF = (64, 80, 104, 120, 136, 152, 184, 200), (168, 172, 176, 180, 228, 232), (98, 99, 100, 101, 94, 95)
        for c in range(NSL):
            e(f"""
            s_ff1_i32_b64 s{sT0}, vcc
            s_bitset0_b64 vcc, s{sT0}
            s_bitset0_b64 s[{sMS}:{sMS+1}], s{sT0}
            s_add_u32 s{sT0}, s{sT0}, s{sSL}
            s_lshl_b32 s{sT0}, s{sT0}, 2
            s_add_u32 s{sT0}, s{sT0}, s{sW}
            s_lshl_b32 s{sT1}, s{sT0}, 9
            s_lshl_b32 s{SOF[c]}, s{sT0}, 13
            s_cmp_gt_i32 s{sKK}, {c}
            s_cselect_b32 s{sT1}, s{sT1}, {OOB:#x}
            s_cselect_b32 s{SOF[c]}, s{SOF[c]}, {OOB:#x}
            buffer_load_dwordx2 {R2(MLR[c])}, v{vA}, s[{SW}:{SW+3}], s{sT1} offen sc1
            buffer_load_dwordx2 {R2(MLR[c]+2)}, v{vA}, s[{SW}:{SW+3}], s{sT1} offen offset:128 sc1
            """)
        def uload(u):
            for k in range(4):
                e(f"buffer_load_dwordx4 {R4(B16[u&7]+4*k)}, v{vA2+(u&1)}, s[{SW}:{SW+3}], s{SOF[u>>1]} offen offset:{1024*k} sc1")
        e(f"""
        s_cmp_eq_u64 s[{sMS}:{sMS+1}], 0
        s_cselect_b32 s3, {OOB:#x}, s{sFO}
        s_cselect_b64 exec, -1, s[{sMS}:{sMS+1}]
        buffer_load_dword v{vFL}, v{vFA}, s[{SW}:{SW+3}], s3 offen sc1
        s_mov_b64 exec, -1
        """)
        for u in range(8): uload(u)
        e("s_waitcnt vmcnt(32)")
        for c in range(1, NSL):
            e(f"s_cmp_gt_i32 s{sKK}, {c}\ns_cselect_b32 s3, 0, {NEGINF:#x}\nv_add_f32 v{MLR[c]}, s3, v{MLR[c]}\nv_add_f32 v{MLR[c]+2}, s3, v{MLR[c]+2}")
        for c in range(0, NSL, 2):
            for q in range(2):
                e(f"v_max3_f32 v{vE+q}, v{vE+q if c else vM+q}, v{MLR[c]+2*q}, v{MLR[c+1]+2*q}")
        for q in range(2):
            e(f"v_sub_f32 v{vAL+2*q}, v{vM+q}, v{vE+q}\nv_mov_b32 v{vM+q}, v{vE+q}")
            for c in range(NSL): e(f"v_sub_f32 v{MLR[c]+2*q}, v{MLR[c]+2*q}, v{vE+q}")
        for q in range(2):
            e(f"v_exp_f32 v{vAL+2*q}, v{vAL+2*q}")
            for c in range(NSL): e(f"v_exp_f32 v{MLR[c]+2*q}, v{MLR[c]+2*q}")
        e("s_nop 0")
        for q in range(2):
            e(f"v_mul_f32 v{LL[q]}, v{LL[q]}, v{vAL+2*q}")
            for c in range(NSL): e(f"v_fmac_f32 v{LL[q]}, v{MLR[c]+2*q+1}, v{MLR[c]+2*q}")
        def oscale(w):
            for db in range(8):
                for q in range(2):
                    for h2 in range(2):
                        r = vO + 8 * db + 4 * q + 2 * h2
                        e(f"v_pk_mul_f32 {R2(r)}, {R2(r)}, {R2(w+2*q)} op_sel_hi:[1,0]")
        oscale(vAL)
        for u in range(2 * NSL):
            c, q = u >> 1, u & 1
            if c and not q: e(f"s_cmp_gt_i32 s{sKK}, {c}\ns_cbranch_scc0 L_rend")
            e(f"s_waitcnt vmcnt({min(28, 4*(2*NSL-1-u))})")
            for pp in range(4):
                for n in range(4):
                    r = vO + 8 * (2 * pp + (n >> 1)) + 4 * q + 2 * (n & 1)
                    x, t = B16[u & 7] + 4 * pp + n, vE + 2 * (n & 1)
                    e(f"v_lshlrev_b32 v{t}, 16, v{x}\nv_and_b32 v{t+1}, 0xffff0000, v{x}\nv_pk_fma_f32 {R2(r)}, {R2(t)}, {R2(MLR[c]+2*q)}, {R2(r)} op_sel_hi:[1,0,1]")
            if u + 8 < 2 * NSL: uload(u + 8)
        e(f"""
        L_rend:
        s_cmp_eq_u64 s[{sMS}:{sMS+1}], 0
        s_cbranch_scc1 L_out
        s_mov_b64 exec, s[{sMS}:{sMS+1}]
        s_branch L_poll
        L_out:
        v_rcp_f32 v{vAL}, v{vT}
        v_rcp_f32 v{vAL+2}, v{vU}
        s_lshl_b32 s{sT0}, s{sBB}, 3
        s_add_u32 s{sT0}, s{sT0}, s{sH}
        s_lshl_b32 s{sT0}, s{sT0}, 2
        s_add_u32 s{sT0}, s{sT0}, s{sW}
        s_lshl_b32 s{sT0}, s{sT0}, 13
        s_add_u32 s{sT1}, s{sT0}, 4096
        v_and_b32 v{vA}, 15, v{vLane}
        v_lshlrev_b32 v{vA}, 8, v{vA}
        v_bfe_u32 v{vT2}, v{vLane}, 4, 1
        v_lshl_add_u32 v{vA}, v{vT2}, 5, v{vA}
        v_lshrrev_b32 v{vT2}, 5, v{vLane}
        v_lshl_add_u32 v{vA}, v{vT2}, 4, v{vA}
        s_waitcnt vmcnt(0)
        """)
        oscale(vAL)
        for c in range(8):
            q, pp = c >> 2, c & 3
            for n in range(4):
                r = vO + 8 * (2 * pp + (n >> 1)) + 4 * q + 2 * (n & 1)
                e(f"v_cvt_pk_bf16_f32 v{vV+4*c+n}, v{r}, v{r+1}")
            if c:
                d = vV + 4 * (c - 1)
                e(f"v_permlane16_swap_b32 v{d}, v{d+2}\nv_permlane16_swap_b32 v{d+1}, v{d+3}")
            if c > 1:
                e(f"buffer_store_dwordx4 {R4(vV+4*(c-2))}, v{vA}, s[{SO}:{SO+3}], s{sT0 if c-2<4 else sT1} offen offset:{64*((c-2)&3)}")
        e(f"s_nop 1\nv_permlane16_swap_b32 v{vV+28}, v{vV+30}\nv_permlane16_swap_b32 v{vV+29}, v{vV+31}")
        for c in (6, 7):
            e(f"buffer_store_dwordx4 {R4(vV+4*c)}, v{vA}, s[{SO}:{SO+3}], s{sT1} offen offset:{64*(c&3)}")
        e(f"s_cmp_lt_u32 s{sI}, s{sNT}\ns_cbranch_scc1 L_next")
    e("L_done:")
    if o["stamp"]:
        e("s_waitcnt vmcnt(0)")
        stamp(5); stamp(7, True)
        if o["xt"] == 2: e(f"s_getreg_b32 s3, hwreg(HW_REG_XCC_ID, 0, 16)\nv_writelane_b32 v{vST}, s3, 1")
        if o["stamp"] == 4:
            srd(e, SD, 28, 256)
            e(f"""
            s_nop 4
            v_readlane_b32 s94, v{vST}, 0
            v_readlane_b32 s95, v{vST}, 5
            v_readlane_b32 s96, v{vST}, 4
            v_readlane_b32 s97, v{vST}, 3
            v_readlane_b32 s98, v{vST}, 6
            v_readlane_b32 s99, v{vST}, 7
            s_cmp_lg_u32 s{sW}, 0
            s_cbranch_scc1 L_end
            s_sub_u32 s95, s95, s94
            s_sub_u32 s96, s96, s94
            s_sub_u32 s97, s97, s94
            s_sub_u32 s98, s99, s98
            v_mov_b32 v1, s95
            v_mov_b32 v2, s96
            v_mov_b32 v3, s97
            v_mov_b32 v4, s98
            s_mov_b64 exec, 1
            buffer_atomic_umax v1, off, s[{SD}:{SD+3}], 0 offset:4 sc1
            buffer_atomic_add v1, off, s[{SD}:{SD+3}], 0 offset:8 sc1
            buffer_atomic_umax v2, off, s[{SD}:{SD+3}], 0 offset:12 sc1
            buffer_atomic_add v2, off, s[{SD}:{SD+3}], 0 offset:16 sc1
            buffer_atomic_add v3, off, s[{SD}:{SD+3}], 0 offset:20 sc1
            buffer_atomic_add v4, off, s[{SD}:{SD+3}], 0 offset:24 sc1
            s_endpgm
            """)
        stamp_store(e, vST, sW, 0)
        if o["stamp"] == 2:
            e(f"""
            s_mov_b64 exec, -1
            s_lshl_b32 s3, s2, 2
            s_add_u32 s3, s3, s{sW}
            s_lshl_b32 s3, s3, 9
            s_add_u32 s3, s3, {STAMP_OFF + (1 << 20)}
            v_lshlrev_b32 v8, 2, v{vLane}
            buffer_store_dword v254, v8, s[{SW}:{SW+3}], s3 offen
            """)
    e("L_end:\ns_endpgm\nL_idle:")
    publish("b")
    e("s_endpgm")

    vDK0, vDK1, vDV0, vDV1, vPG, vB, vC, vSt, vM = 1, 2, 3, 4, 5, 6, 7, 8, 9
    sLD, sKD, sVD, sPK, sPV, sHF = 9, 10, 11, 12, 13, 15
    e("L_loader:")
    def lst(i):
        return f"s_memrealtime s[92:93]\ns_waitcnt lgkmcnt(0)\nv_writelane_b32 v20, s92, {i}\n" if o["stamp"] == 3 else ""
    if o["prio"]: e("s_setprio 1")
    srd(e, SB, 22, 8 * 512 * 4)
    if o["tl"]:
        e(f"""
        s_and_b32 s3, s{sW}, 3
        s_lshl_b32 s3, s3, 12
        s_add_u32 m0, s3, {2*VR}
        v_lshlrev_b32 v1, 4, v{vLane}
        """)
        for k in range(4): e(f"buffer_load_dwordx4 v1, s[{SB}:{SB+3}], s3 offen offset:{1024*k} lds")
    srd(e, SK, 18, KV_BYTES); srd(e, SV, 20, KV_BYTES)
    DS = [int(c) for c in str(o["D"])] if o["D"] else [NS - 1] * 8
    tab = sum(d << (4 * i) for i, d in enumerate(DS))
    sD = 14
    e(f"""
    s_lshr_b32 s{sT0}, s18, 8
    s_add_u32 s{sT0}, s{sT0}, s{sH}
    s_and_b32 s{sT0}, s{sT0}, 7
    s_lshl_b32 s{sT0}, s{sT0}, 2
    s_lshr_b32 s{sD}, {tab:#x}, s{sT0}
    s_and_b32 s{sD}, s{sD}, 15
    """)
    e(f"""
    s_and_b32 s{sT0}, s{sW}, 1
    s_lshl_b32 s{sT0}, s{sT0}, 3
    s_lshl_b32 s{sT1}, s{sH}, 8
    v_lshrrev_b32 v{vT}, 4, v{vLane}
    v_add_u32 v{vT2}, s{sT0}, v{vT}
    v_and_b32 v{vA}, 15, v{vLane}
    v_xor_b32 v{vM}, v{vA}, v{vT2}
    v_lshlrev_b32 v{vM}, 4, v{vM}
    v_lshl_add_u32 v{vM}, v{vT2}, 11, v{vM}
    v_add_u32 v{vDK0}, s{sT1}, v{vM}
    v_xor_b32 v{vDK1}, 64, v{vDK0}
    v_add_u32 v{vDK1}, {8192-1024}, v{vDK1}
    v_lshlrev_b32 v{vT}, 1, v{vT}
    v_xor_b32 v{vT}, s{sT0}, v{vT}
    v_xor_b32 v{vM}, v{vA}, v{vT}
    v_lshlrev_b32 v{vM}, 4, v{vM}
    v_lshl_add_u32 v{vM}, v{vT2}, 11, v{vM}
    v_add_u32 v{vDV0}, s{sT1}, v{vM}
    v_xor_b32 v{vDV1}, 128, v{vDV0}
    v_add_u32 v{vDV1}, {8192-1024}, v{vDV1}
    s_and_b32 s{sW}, s{sW}, 3
    s_lshl_b32 s{sKD}, s{sW}, 11
    s_add_u32 s{sVD}, s{sKD}, {VR + (NS-1)*8192}
    s_waitcnt lgkmcnt(0)
    {lst(58)}
    """)
    batch_tables(e)
    wg_range(e, o, sJ, sLO, sNT, sT0, sT1)
    e(f"""
    s_cmp_eq_u32 s{sNT}, 0
    s_cbranch_scc1 L_lidle
    s_lshr_b32 s{sHF}, s{sW}, 1
    s_mov_b32 s{sLD}, 0
    s_mov_b32 s{sPK}, {OOB:#x}
    """)
    def plist(vD, off):
        e(f"""
        v_add_u32 v{vM}, {off}, v{vLane}
        v_add_u32 v{vT}, s{sLO}, v{vM}
        v_mov_b32 v{vB}, 0
        v_mov_b32 v{vC}, s{SC}
        v_mov_b32 v{vSt}, 0
        """)
        for b in range(1, 8):
            e(f"v_cmpx_le_u32 vcc, s{SS+b}, v{vT}\nv_mov_b32 v{vC}, s{SC+b}\nv_mov_b32 v{vSt}, s{SS+b}\nv_mov_b32 v{vB}, {b*2048}")
        e(f"""
        s_mov_b64 exec, -1
        v_sub_u32 v{vT}, v{vT}, v{vSt}
        v_lshl_add_u32 v{vT}, v{vT}, 1, s{sHF}
        v_lshl_add_u32 v{vT2}, v{vT}, 2, v{vB}
        """)
        if o["tl"]:
            e(f"v_min_u32 v{vT2}, 16380, v{vT2}")
            if off == 0: e(lst(59) + "s_waitcnt vmcnt(0)\n" + lst(60) + "s_barrier\n" + lst(61))
            e(f"ds_read_b32 v{vD}, v{vT2} offset:{2*VR}" if 2 * VR < 65536 else f"v_add_u32 v{vT2}, {2*VR}, v{vT2}\nds_read_b32 v{vD}, v{vT2}")
        else:
            e(f"buffer_load_dword v{vD}, v{vT2}, s[{SB}:{SB+3}], 0 offen")
        e(f"""
        v_lshlrev_b32 v{vT}, 4, v{vT}
        v_cmp_lt_u32 s[94:95], v{vT}, v{vC}
        v_cmp_gt_u32 vcc, s{sNT}, v{vM}
        v_mov_b32 v{vT}, {OOB:#x}
        s_and_b64 s[94:95], s[94:95], vcc
        s_waitcnt {"lgkmcnt(0)" if o["tl"] else "vmcnt(0)"}
        v_lshlrev_b32 v{vD}, 15, v{vD}
        v_cndmask_b32 v{vD}, v{vT}, v{vD}, s[94:95]
        """)
    vPG2 = 10
    plist(vPG, 0)
    if not o["tl"]: plist(vPG2, 64)
    def fetch(first=False):
        e(f"""
        s_mov_b32 s{sPV}, s{sPK}
        v_readlane_b32 s{sPK}, v{vPG}, s{sLD}
        v_readlane_b32 s3, v{vPG2}, s{sLD}
        s_cmp_lt_u32 s{sLD}, 64
        s_cselect_b32 s{sPK}, s{sPK}, s3
        s_add_u32 s{sLD}, s{sLD}, 1
        """)
    def issue(first=False):
        e(f"""
        s_mov_b32 m0, s{sKD}
        s_add_u32 s{sKD}, s{sKD}, 8192
        buffer_load_dwordx4 v{vDK0}, s[{SK}:{SK+3}], s{sPK} offen{nt} lds
        buffer_load_dwordx4 v{vDK1}, s[{SK}:{SK+3}], s{sPK} offen offset:1024{nt} lds
        s_mov_b32 m0, s{sVD}
        s_add_u32 s{sVD}, s{sVD}, 8192
        """)
        if not first:
            e(f"""
            buffer_load_dwordx4 v{vDV0}, s[{SV}:{SV+3}], s{sPV} offen{nt} lds
            buffer_load_dwordx4 v{vDV1}, s[{SV}:{SV+3}], s{sPV} offen offset:1024{nt} lds
            """)
        e(f"""
        s_cmp_ge_u32 s{sKD}, {VR}
        s_cselect_b32 s{sT0}, {VR}, 0
        s_sub_u32 s{sKD}, s{sKD}, s{sT0}
        s_cmp_ge_u32 s{sVD}, {2*VR}
        s_cselect_b32 s{sT0}, {VR}, 0
        s_sub_u32 s{sVD}, s{sVD}, s{sT0}
        """)
    for t in range(max(DS)):
        fetch(); e("s_nop 1"); issue(t == 0)
        if t + 1 in DS and t + 1 != max(DS): e(f"s_cmp_eq_u32 s{sD}, {t+1}\ns_cbranch_scc1 L_pre{t+1}")
    for D in sorted(set(DS), reverse=True):
        e(f"L_pre{D}:")
        e(lst(62))
        if o["tl"]: plist(vPG2, 64)
        e(f"s_add_u32 s{sNT}, s{sNT}, {D+1}")
        fetch()
        e(f"L_ld{D}:\ns_waitcnt vmcnt({4*(D-1)})\ns_barrier")
        issue()
        if o["stamp"] == 3:
            e(f"s_memrealtime s[92:93]\ns_memtime s[94:95]\ns_sub_u32 s{sT0}, s{sLD}, {D+1}\ns_mov_b32 m0, s{sT0}\ns_waitcnt lgkmcnt(0)\nv_writelane_b32 v20, s92, m0\nv_writelane_b32 v21, s94, m0")
        fetch()
        e(f"s_cmp_le_u32 s{sLD}, s{sNT}\ns_cbranch_scc1 L_ld{D}\ns_branch L_ldone")
    e("L_ldone:")
    if FU:
        srd(e, SW, 30, 32 << 20); srd(e, SQ, 28, 256)
        e(f"s_mov_b32 s{sT0}, 0\ns_mov_b32 s{sKD}, 0\ns_mov_b32 s{sVD}, s{SS+1}")
        for b in range(1, 8):
            e(f"s_cmp_le_u32 s{SS+b}, s{sLO}\ns_cselect_b32 s{sT0}, {b}, s{sT0}\ns_cselect_b32 s{sKD}, s{SS+b}, s{sKD}\ns_cselect_b32 s{sVD}, s{SS+b+1}, s{sVD}")
        e(f"""
        s_cmp_lt_u32 s{sKD}, s{sLO}
        s_cbranch_scc0 L_lend
        s_add_u32 s{sLO}, s{sLO}, s{sNT}
        s_sub_u32 s{sLO}, s{sLO}, s{sD}
        s_sub_u32 s{sLO}, s{sLO}, 1
        s_cmp_lt_u32 s{sVD}, s{sLO}
        s_cbranch_scc0 L_lend
        s_mul_i32 s3, s{sW}, 8704
        s_add_u32 s3, s3, {2*VR}
        v_lshl_add_u32 v1, v{vLane}, 4, s3
        v_lshl_add_u32 v2, v{vLane}, 3, s3
        """)
        for c in range(8): e(f"ds_read_b128 v[{32+4*c}:{35+4*c}], v1 offset:{1024*c}")
        e(f"""
        ds_read_b64 v[30:31], v2 offset:8192
        s_lshl_b32 s{sPK}, s{sH}, 5
        buffer_load_dword v3, off, s[{SQ}:{SQ+3}], s{sPK} sc1
        s_mul_i32 s3, s{sH}, {NSLOT_H}
        s_add_u32 s{sT0}, s{sT0}, s3
        s_add_u32 s{sT0}, s{sT0}, s{sJ}
        s_lshl_b32 s{sT0}, s{sT0}, 2
        s_add_u32 s{sT0}, s{sT0}, s{sW}
        s_lshl_b32 s{sPV}, s{sT0}, {FS}
        s_add_u32 s{sPV}, s{sPV}, {FLAG_OFF}
        s_lshl_b32 s{sT1}, s{sT0}, 9
        s_add_u32 s{sT1}, s{sT1}, {ML_OFF}
        s_lshl_b32 s{sT0}, s{sT0}, 13
        s_add_u32 s{sKD}, s{sT0}, 4096
        v_lshlrev_b32 v1, 4, v{vLane}
        v_lshlrev_b32 v2, 3, v{vLane}
        """)
        for c in range(8):
            e(f"s_waitcnt lgkmcnt({8-c})\nbuffer_store_dwordx4 v[{32+4*c}:{35+4*c}], v1, s[{SW}:{SW+3}], s{sT0 if c<4 else sKD} offen offset:{1024*(c&3)}{sc}")
        e(f"""
        s_waitcnt lgkmcnt(0)
        buffer_store_dwordx2 v[30:31], v2, s[{SW}:{SW+3}], s{sT1} offen{sc}
        s_mov_b32 s{sVD}, {POLL:#x}
        v_mov_b32 v4, 1
        L_lgo:
        s_waitcnt vmcnt(0)
        v_readfirstlane_b32 s3, v3
        s_cmp_lg_u32 s3, 0
        s_cbranch_scc1 L_lgo_ok
        buffer_load_dword v3, off, s[{SQ}:{SQ+3}], s{sPK} sc1
        s_sub_u32 s{sVD}, s{sVD}, 1
        s_cbranch_scc0 L_lgo
        L_lgo_ok:
        s_mov_b64 exec, 1
        buffer_store_dword v4, off, s[{SW}:{SW+3}], s{sPV} sc1
        s_mov_b64 exec, -1
        L_lend:
        """)
    if o["stamp"] == 3:
        srd(e, SW, 30, 32 << 20)
        e(f"""
        s_lshl_b32 s3, s2, 2
        s_add_u32 s3, s3, s{sW}
        s_lshl_b32 s3, s3, 9
        s_add_u32 s3, s3, {STAMP_OFF + (1 << 20)}
        v_lshlrev_b32 v8, 2, v{vLane}
        buffer_store_dword v20, v8, s[{SW}:{SW+3}], s3 offen
        buffer_store_dword v21, v8, s[{SW}:{SW+3}], s3 offen offset:256
        """)
    e("s_endpgm\nL_lidle:\ns_waitcnt vmcnt(0)\ns_endpgm")
    return e.text(), NS * 16384 + (4 * 8704 if FU else 0)

def build2(**kw):
    o = dict(DEF2); o.update(kw)
    k1, lds = main_kernel2(o)
    hdr = '.amdgcn_target "amdgcn-amd-amdhsa--gfx950"\n.text\n'
    if o["fuse"] or o["single"]:
        return f"; @launch {'kernel=' + NAME + '_kernel ' if o['single'] == 2 else ''}grid=(256,1,1) block=(512,1,1) lds={lds}\n" + hdr + k1 + '.section .rodata,"a"\n' + desc(NAME + "_kernel", 256, 256)
    s = f"; @launch kernel={NAME}_kernel grid=(256,1,1) block=(512,1,1) lds={lds}\n"
    s += "; @launch kernel=combine_kernel grid=(256,1,1) block=(256,1,1) lds=0\n"
    return s + hdr + k1 + combine_kernel(o) + '.section .rodata,"a"\n' + desc(NAME + "_kernel", 256, 256) + desc("combine_kernel", 104, 104)

if __name__ == "__main__":
    kw = {}
    for a in sys.argv[2:]:
        k, v = a.split("="); kw[k] = int(v)
    open(sys.argv[1], "w").write(build2(**kw))
```

```python
import sys
from gen import *
import gen

DEF2 = dict(NS=4, nt=1, hmap=0, compute=1, stamp=0, pad=0, prio=1, empty=0, single=0, warm=0, cm=7, lay=16, D=0, cnt=0, fuse=1, tk=3, ss=1, nopoll=0, rot=1, xt=0, wm=0, tl=1, inc=1, os=0, lf=0, sm=0, sp=0)
GUARD = f2u(1024.0)
FLAG_OFF = 14 << 20
FS = 6
POLL = 0x100000

def wg_range(e, o, sJ, sLO, sNT, t0, t1):
    P = o["pad"]
    e(f"""
    s_add_u32 s{t0}, s{SS+8}, {7*P}
    s_mul_i32 s{t0}, s{t0}, s35
    s_mul_i32 s{sLO}, s{sJ}, s{t0}
    s_add_u32 s{sNT}, s{sLO}, s{t0}
    s_lshr_b32 s{sLO}, s{sLO}, 17
    s_lshr_b32 s{sNT}, s{sNT}, 17
    """)
    if P:
        for b in range(1, 8):
            for r in (sLO, sNT):
                e(f"""
                s_sub_i32 s{t0}, s{r}, s{SS+b}
                s_max_i32 s{t0}, s{t0}, 0
                s_min_i32 s{t0}, s{t0}, {P}
                s_sub_u32 s{r}, s{r}, s{t0}
                """)
    e(f"s_sub_u32 s{sNT}, s{sNT}, s{sLO}")

def main_kernel2(o):
    NS = o["NS"]; nt = ["", " nt", " sc0", " sc1", " sc0 sc1", " sc0 nt", " sc1 nt", " sc0 sc1 nt"][o["nt"]]
    e = E()
    vO, vS, vNM, vQ, vQn, vK, vV, vP, vE, vKA, vVA = 0, (64, 80), 96, 104, 136, 168, 184, 216, 224, 228, 232
    vL, vLS, vT, vT2, vA, vLane, vU, vU2, vST = 240, 244, 248, 249, 250, 251, 252, 253, 255
    sH, sJ, sW, sLO, sNT = 4, 5, 6, 7, 8
    sI, sE, sMK, sREM, sSC = 9, 10, 11, 12, 13
    sBB, sG, sT0, sT1, sSEG = 14, 15, 32, 33, 34
    VR = NS * 8192
    FU = o["fuse"]
    SD = SK
    sMS, sNF, sTI, sPD, sCA, sKK, sTM, sSL = 86, 88, 89, 90, 91, 85, 96, 97
    vTK = 254
    sc = ["", " sc1", " sc1 nt", " sc0 sc1", " nt"][o["ss"]] if FU else ""
    def stamp(i, clk=False):
        if o["stamp"]:
            e(f"{'s_memtime' if clk else 's_memrealtime'} s[92:93]\ns_waitcnt lgkmcnt(0)\nv_writelane_b32 v{vST}, s92, {i}")
    e(f"""
    .globl {NAME}_kernel
    .p2align 8
    .type {NAME}_kernel,@function
    {NAME}_kernel:
    s_cmp_ge_u32 s2, {0 if o["empty"] else 256}
    s_cbranch_scc1 L_end
    s_load_dwordx16 s[16:31], s[0:1], 0
    """)
    stamp(0); stamp(6, True)
    if o["xt"] == 1:
        e(f"s_getreg_b32 s3, hwreg(HW_REG_XCC_ID, 0, 4)\ns_and_b32 s4, s2, 7\ns_cmp_eq_u32 s3, s4\ns_cbranch_scc1 L_xt\ns_mov_b32 s3, 8000\nL_xl:\ns_sub_u32 s3, s3, 1\ns_cbranch_scc0 L_xl\nL_xt:")
    cn = counts(o); base = min(cn)
    ex = [(c, k) for k in range(max(cn) - base) for c in range(8) if cn[c] - base > k]
    e(f"s_and_b32 s{sH}, s2, 7\ns_lshr_b32 s{sJ}, s2, 3")
    if ex:
        assert len(ex) <= 16
        tb = sum((c | (k << 3)) << (8 * i) for i, (c, k) in enumerate(ex))
        e(f"""
        s_mov_b32 s8, {tb & 0xffffffff:#x}
        s_mov_b32 s9, {(tb >> 32) & 0xffffffff:#x}
        s_mov_b32 s10, {(tb >> 64) & 0xffffffff:#x}
        s_mov_b32 s11, {(tb >> 96) & 0xffffffff:#x}
        s_sub_u32 s3, s2, {8*base}
        s_bitcmp1_b32 s3, 3
        s_cselect_b64 s[8:9], s[10:11], s[8:9]
        s_lshl_b32 s3, s3, 3
        s_lshr_b64 s[8:9], s[8:9], s3
        s_bfe_u32 s9, s8, 0x50003
        s_add_u32 s9, s9, {base}
        s_and_b32 s8, s8, 7
        s_cmp_ge_u32 s2, {8*base}
        s_cselect_b32 s{sH}, s8, s{sH}
        s_cselect_b32 s{sJ}, s9, s{sJ}
        """)
    magic_of_class(e, o, sH, 35)
    e(f"""
    v_lshrrev_b32 v{vT}, 6, v0
    v_and_b32 v{vLane}, 63, v0
    v_readfirstlane_b32 s{sW}, v{vT}
    s_waitcnt lgkmcnt(0)
    s_lshr_b32 s3, s18, 8
    s_sub_u32 s{sH}, s{sH}, s3
    s_and_b32 s{sH}, s{sH}, 7
    s_load_dwordx8 s[{SCL}:{SCL+7}], s[24:25], 0
    s_cmp_ge_u32 s{sW}, 4
    s_cbranch_scc1 L_loader
    """)
    if o["wm"]:
        e(f"s_cmp_ge_u32 s{sW}, 2\ns_cbranch_scc1 L_nowm\ns_cmp_eq_u32 s{sW}, 0\ns_cselect_b64 s[{SV}:{SV+1}], s[18:19], s[20:21]")
        e(f"s_and_b32 s{SV+1}, s{SV+1}, 0xffff\ns_mov_b32 s{SV+2}, {KV_BYTES:#x}\ns_mov_b32 s{SV+3}, 0x20000")
        e(f"v_lshlrev_b32 v12, 21, v{vLane}\ns_lshl_b32 s3, s2, 12\nbuffer_load_dword v13, v12, s[{SV}:{SV+3}], s3 offen\nL_nowm:")
    srd(e, SQ, 16, Q_BYTES); srd(e, SW, 30, 32 << 20)
    if FU:
        srd(e, SD, 28, 256); srd(e, SO, 26, Q_BYTES)
        e(f"""
        s_lshl_b32 s{sCA}, s{sH}, 5
        s_mul_i32 s{sSL}, s{sH}, {NSLOT_H}
        v_mov_b32 v{vTK}, 0
        s_or_b32 s3, s{sJ}, s{sW}
        s_cbranch_scc1 L_noclr
        s_lshl_b32 s3, s{sSL}, {FS+2}
        s_add_u32 s3, s3, {FLAG_OFF}
        v_lshlrev_b32 v1, {FS}, v{vLane}
        v_add_u32 v2, {64 << FS}, v1
        v_add_u32 v3, {(4*NSLOT_H - 64) << FS}, v1
        buffer_store_dword v{vTK}, v1, s[{SW}:{SW+3}], s3 offen sc1
        buffer_store_dword v{vTK}, v2, s[{SW}:{SW+3}], s3 offen sc1
        buffer_store_dword v{vTK}, v3, s[{SW}:{SW+3}], s3 offen sc1
        L_noclr:
        """)
    e(f"""
    v_and_b32 v{vT}, 15, v{vLane}
    v_lshrrev_b32 v{vT2}, 4, v{vLane}
    v_xor_b32 v{vA}, v{vT}, v{vT2}
    v_lshlrev_b32 v{vA}, 4, v{vA}
    v_lshl_add_u32 v{vKA}, v{vT}, 8, v{vA}
    """)
    for k4 in range(1, 4):
        e(f"v_xor_b32 v{vKA+k4}, {k4<<6}, v{vKA}")
    e(f"""
    v_lshrrev_b32 v{vT}, 2, v{vLane}
    v_lshrrev_b32 v{vT2}, 5, v{vLane}
    v_lshlrev_b32 v{vT2}, 2, v{vT2}
    v_xor_b32 v{vT2}, v{vT2}, v{vT}
    v_and_b32 v{vT2}, 7, v{vT2}
    v_lshlrev_b32 v{vA}, 8, v{vT}
    v_lshl_add_u32 v{vA}, v{vT2}, 5, v{vA}
    v_and_b32 v{vT}, 3, v{vLane}
    v_lshl_add_u32 v{vA}, v{vT}, 3, v{vA}
    v_add_u32 v{vVA}, {VR}, v{vA}
    """)
    for db in range(1, 8):
        e(f"v_xor_b32 v{vVA+db}, {db<<5}, v{vVA}")
    e(f"s_mov_b32 s{sG}, {GUARD:#x}\ns_waitcnt lgkmcnt(0)")
    stamp(1)
    batch_tables(e)
    wg_range(e, o, sJ, sLO, sNT, sT0, sT1)
    e(f"""
    s_cmp_eq_u32 s{sNT}, 0
    s_cbranch_scc1 L_idle
    s_mov_b32 s{sBB}, 0
    """)
    for b in range(1, 8):
        e(f"s_cmp_le_u32 s{SS+b}, s{sLO}\ns_cselect_b32 s{sBB}, {b}, s{sBB}")
    def seg_params():
        e(f"""
        s_mov_b32 m0, s{sBB}
        s_nop 0
        s_movrels_b32 s{sREM}, s{SC}
        s_movrels_b32 s{sMK}, s{SS+1}
        s_movrels_b32 s{sSC}, s{SCL}
        s_sub_u32 s{sMK}, s{sMK}, s{sLO}
        s_min_u32 s{sE}, s{sMK}, s{sNT}
        s_sub_u32 s{sMK}, s{sMK}, 1
        s_sub_u32 s{sREM}, s{sREM}, 1
        s_and_b32 s{sREM}, s{sREM}, 31
        s_add_u32 s{sREM}, s{sREM}, 1
        s_cmp_gt_i32 s{sSC}, 0
        s_cselect_b32 s{sSC}, {CSCALE:#x}, 0
        """)
    def q_load(boff):
        e(f"""
        s_add_u32 s{sT0}, s{sBB}, {boff}
        s_lshl_b32 s{sT0}, s{sT0}, 3
        s_add_u32 s{sT0}, s{sT0}, s{sH}
        s_lshl_b32 s{sT0}, s{sT0}, 2
        s_add_u32 s{sT0}, s{sT0}, s{sW}
        s_lshl_b32 s{sT0}, s{sT0}, 13
        v_and_b32 v{vT}, 15, v{vLane}
        v_lshrrev_b32 v{vT2}, 4, v{vLane}
        v_lshlrev_b32 v{vT}, 8, v{vT}
        v_lshl_add_u32 v{vT}, v{vT2}, 4, v{vT}
        v_add_u32 v{vT2}, 4096, v{vT}
        """)
        if boff:
            e(f"s_cmp_lt_u32 s{sE}, s{sNT}\ns_cselect_b32 s{sT0}, s{sT0}, {OOB:#x}")
        for ks in range(8):
            e(f"buffer_load_dwordx4 v[{vQn+4*ks}:{vQn+4*ks+3}], v{vT2 if ks >= 4 else vT}, s[{SQ}:{SQ+3}], s{sT0} offen offset:{64*(ks&3)}")
    def q_scale():
        for i in range(32):
            a, b = vE + 2 * (i & 1), vE + 2 * (i & 1) + 1
            e(f"""
            v_lshlrev_b32 v{a}, 16, v{vQn+i}
            v_and_b32 v{b}, 0xffff0000, v{vQn+i}
            v_mul_f32 v{a}, s{sSC}, v{a}
            v_mul_f32 v{b}, s{sSC}, v{b}
            v_cvt_pk_bf16_f32 v{vQ+i}, v{a}, v{b}
            """)
    seg_params()
    q_load(0)
    if o["tl"]: e("s_barrier")
    if FU:
        P = o["pad"]
        e(f"""
        s_add_u32 s{sT0}, s{sLO}, s{sNT}
        s_mov_b32 s{sMS}, 0
        s_mov_b32 s{sMS+1}, s{SS+1}
        """)
        for b in range(1, 8):
            e(f"s_cmp_lt_u32 s{SS+b}, s{sT0}\ns_cselect_b32 s{sMS}, s{SS+b}, s{sMS}\ns_cselect_b32 s{sMS+1}, s{SS+b+1}, s{sMS+1}")
        e(f"""
        s_add_u32 s{sT0}, s{SS+8}, {7*P}
        s_mul_i32 s{sT0}, s{sT0}, s35
        v_mul_lo_u32 v1, s{sT0}, v{vLane}
        v_add_u32 v2, s{sT0}, v1
        v_lshrrev_b32 v1, 17, v1
        v_lshrrev_b32 v2, 17, v2
        """)
        for b in range(1, 8) if P else ():
            for r in (1, 2):
                e(f"v_subrev_u32 v3, s{SS+b}, v{r}\nv_med3_i32 v3, v3, 0, {P}\nv_sub_u32 v{r}, v{r}, v3")
        e(f"""
        v_cmp_ge_u32 s[94:95], s{sMS+1}, v2
        v_max_u32 v1, s{sMS}, v1
        v_min_u32 v2, s{sMS+1}, v2
        v_cmp_lt_u32 vcc, v1, v2
        s_and_b32 s{sTI}, s{sJ}, 15
        s_add_u32 s{sTI}, s{sTI}, {o["tk"]}
        s_mov_b32 s{sPD}, -1
        s_mov_b64 s[{sMS}:{sMS+1}], vcc
        s_and_b64 s[94:95], s[94:95], vcc
        s_bcnt1_i32_b64 s{sT0}, s[94:95]
        s_bfm_b64 s[98:99], s{sJ}, 0
        s_and_b64 s[94:95], s[94:95], s[98:99]
        s_bcnt1_i32_b64 s{sT1}, s[94:95]
        s_mov_b32 s{sNF}, {"s%d" % sW if o["rot"] else 0}
        s_cmp_ge_u32 s{sNF}, s{sT0}
        s_cselect_b32 s3, s{sT0}, 0
        s_sub_u32 s{sNF}, s{sNF}, s3
        s_cmp_ge_u32 s{sNF}, s{sT0}
        s_cselect_b32 s3, s{sT0}, 0
        s_sub_u32 s{sNF}, s{sNF}, s3
        s_cmp_ge_u32 s{sNF}, s{sT0}
        s_cselect_b32 s3, s{sT0}, 0
        s_sub_u32 s{sNF}, s{sNF}, s3
        s_bitset0_b64 s[{sMS}:{sMS+1}], s{sJ}
        """)
        if o["sp"]:
            e(f"s_mov_b32 s98, s{sNF}\ns_mov_b32 s{sNF}, 0")
            for k in range(4):
                e(f"s_cmp_eq_u32 s98, s{sT1}\ns_cselect_b32 s3, {1<<k}, 0\ns_or_b32 s{sNF}, s{sNF}, s3")
                if k < 3: e(f"s_add_u32 s98, s98, 1\ns_cmp_ge_u32 s98, s{sT0}\ns_cselect_b32 s98, 0, s98")
        else:
            e(f"s_sub_u32 s{sNF}, s{sNF}, s{sT1}")
    def ticket():
        e(f"buffer_load_dword v{vTK}, off, s[{SD}:{SD+3}], s{sCA} sc1\ns_mov_b32 s{sTI}, 0x7fffffff")
    def go(tag):
        e(f"""
        s_mov_b32 s{sTM}, {POLL:#x}
        L_go{tag}:
        v_readfirstlane_b32 s3, v{vTK}
        s_cmp_lg_u32 s3, 0
        s_cbranch_scc1 L_go{tag}_ok
        buffer_load_dword v{vTK}, off, s[{SD}:{SD+3}], s{sCA} sc1
        s_sub_u32 s{sTM}, s{sTM}, 1
        s_waitcnt vmcnt(0)
        s_cbranch_scc0 L_go{tag}
        L_go{tag}_ok:
        """)
    def signal(sA):
        e(f"""
        v_mov_b32 v{vA}, 1
        s_mov_b64 exec, 1
        buffer_store_dword v{vA}, off, s[{SW}:{SW+3}], s{sA} sc1
        s_mov_b64 exec, -1
        """)
    e(f"s_mov_b32 s{sI}, 0\ns_mov_b32 s{sSEG}, 15\ns_waitcnt vmcnt(0)")
    def publish(tag):
        if FU: e(f"""
        s_or_b32 s3, s{sJ}, s{sW}
        s_cbranch_scc1 L_nopub{tag}
        v_mov_b32 v4, 1
        s_mov_b64 exec, 1
        s_waitcnt vmcnt(0)
        buffer_store_dword v4, off, s[{SD}:{SD+3}], s{sCA} sc1
        s_mov_b64 exec, -1
        L_nopub{tag}:
        """)
    publish("a")
    q_scale()
    q_load(1)
    stamp(2)
    e("s_barrier")
    stamp(3)
    e("s_branch L_first")

    def kread(j, slot, base=vKA):
        r = vK + 4 * (j & 3)
        return f"ds_read_b128 v[{r}:{r+3}], v{base+(j&3)} offset:{slot*8192+4096*(j>>2)}"
    def vread(db, u, slot, base=vVA):
        r = vV + 4 * db + 2 * u
        return f"ds_read_b64_tr_b16 v[{r}:{r+1}], v{base+db} offset:{slot*8192+4096*u}"
    R4 = lambda r: f"v[{r}:{r+3}]"
    R2 = lambda r: f"v[{r}:{r+1}]"
    SI = lambda S, qb, i: S + 8 * (i >> 2) + 4 * qb + (i & 3)
    def qk(j, qb, S, zero=False):
        d = S + 8 * (j >> 2) + 4 * qb
        c = R4(d) if j & 3 else ("0" if zero else R4(vNM + 4 * qb))
        return f"v_mfma_f32_16x16x32_bf16 {R4(d)}, {R4(vK+4*(j&3))}, {R4(vQ+16*qb+4*(j&3))}, {c}"
    def pv(db, qb):
        d = vO + 8 * db + 4 * qb
        return f"v_mfma_f32_16x16x32_bf16 {R4(d)}, {R4(vV+4*db)}, {R4(vP+4*qb)}, {R4(d)}"
    def soft(S, qb):
        EX = lambda i: f"v_exp_f32 v{vE+(i&3)}, v{SI(S, qb, i)}"
        CV = lambda m: f"v_cvt_pk_bf16_f32 v{vP+4*qb+m}, v{vE+((2*m)&3)}, v{vE+((2*m+1)&3)}"
        LS = R2(vLS + 2 * qb)
        return [EX(0), EX(1), EX(2), EX(3), CV(0), f"v_pk_add_f32 {LS}, {R2(vE)}, {R2(vE+2)}", CV(1),
                EX(4), EX(5), EX(6), f"v_pk_add_f32 {LS}, {LS}, {R2(vE)}", EX(7), CV(2),
                f"v_pk_add_f32 {LS}, {LS}, {R2(vE+2)}", CV(3)]
    def guard():
        return [f"v_max3_f32 v{vT}, v{vLS}, v{vLS+1}, v{vLS+2}", f"v_max_f32 v{vT}, v{vT}, v{vLS+3}", f"v_cmp_lt_f32 vcc, s{sG}, v{vT}"]
    def lacc():
        return [f"v_pk_add_f32 {R2(vL+2*q)}, {R2(vL+2*q)}, {R2(vLS+2*q)}" for q in range(2)]
    def mask_block(S):
        e(f"s_nop 7\nv_lshrrev_b32 v{vA}, 4, v{vLane}\nv_lshlrev_b32 v{vA}, 2, v{vA}\nv_mov_b32 v{vT}, {NEGINF:#x}")
        for i in range(8):
            e(f"""
            v_add_u32 v{vT2}, {(i & 3) + 16 * (i >> 2)}, v{vA}
            v_cmp_gt_u32 vcc, s{sREM}, v{vT2}
            s_nop 1
            v_cndmask_b32 v{SI(S, 0, i)}, v{vT}, v{SI(S, 0, i)}, vcc
            v_cndmask_b32 v{SI(S, 1, i)}, v{vT}, v{SI(S, 1, i)}, vcc
            """)
    def xlane(op, regs):
        tm = (vT2, vU2)
        for sw in ("v_permlane16_swap_b32", "v_permlane32_swap_b32"):
            for r, t in zip(regs, tm): e(f"v_mov_b32 v{t}, v{r}")
            e("s_nop 1")
            for r, t in zip(regs, tm): e(f"{sw} v{r}, v{t}")
            e("s_nop 1")
            for r, t in zip(regs, tm): e(f"{op} v{r}, v{r}, v{t}")
    MX = (vT, vU)
    def rowmax(S):
        for q in range(2):
            x = lambda i: SI(S, q, i)
            e(f"""
            v_max3_f32 v{MX[q]}, v{x(0)}, v{x(1)}, v{x(2)}
            v_max3_f32 v{MX[q]}, v{MX[q]}, v{x(3)}, v{x(4)}
            v_max3_f32 v{MX[q]}, v{MX[q]}, v{x(5)}, v{x(6)}
            v_max_f32 v{MX[q]}, v{MX[q]}, v{x(7)}
            """)
        xlane("v_max_f32", MX)
    def slow(So, Sn):
        e("s_nop 7")
        rowmax(So)
        AL = (vT2, vU2)
        for q in range(2): e(f"v_max_f32 v{MX[q]}, 0, v{MX[q]}\nv_exp_f32 v{AL[q]}, -v{MX[q]}")
        for q in range(2):
            for i in range(8): e(f"v_sub_f32 v{SI(So, q, i)}, v{SI(So, q, i)}, v{MX[q]}")
            for i in range(4): e(f"v_sub_f32 v{vNM+4*q+i}, v{vNM+4*q+i}, v{MX[q]}")
            if Sn is not None:
                for i in range(8): e(f"v_sub_f32 v{SI(Sn, q, i)}, v{SI(Sn, q, i)}, v{MX[q]}")
            for db in range(8):
                for i in range(4): e(f"v_mul_f32 v{vO+8*db+4*q+i}, v{vO+8*db+4*q+i}, v{AL[q]}")
            for i in range(2): e(f"v_mul_f32 v{vL+2*q+i}, v{vL+2*q+i}, v{AL[q]}")
        for q in range(2):
            for x in soft(So, q): e(x)
        e("s_nop 1")

    class Lds:
        def __init__(self): self.q = []
        def rd(self, tag, ins): e(ins); self.q.append(tag)
        def need(self, tag):
            idx = [i for i, t in enumerate(self.q) if t == tag]
            if idx:
                n = len(self.q) - 1 - idx[-1]
                assert n <= 15
                e(f"s_waitcnt lgkmcnt({n})"); self.q = self.q[idx[-1] + 1:]

    e(".p2align 6")
    mark = len(e.l)
    for p in range(NS):
        Sn, So = vS[p & 1], vS[(p + 1) & 1]
        ks_, vs_ = p, (p - 1) % NS
        e(f"L_ph{p}:\ns_barrier")
        e(f"s_cmp_ge_u32 s{sI}, s{sE}\ns_cbranch_scc1 L_bnd{p}")
        if o["compute"]:
            L = Lds()
            sb, sa = soft(So, 1), soft(Sn, 0)
            fill = [[] for _ in range(32)]
            for j in range(4): fill[2 * j + 1].append(("K", j + 4))
            for n in range(16): fill[3 + n].append(("V", n))
            rest = sb[5:] + guard()
            for n, x in enumerate(rest): fill[n + 1].append(x)
            fill[16] += [lacc()[0], f"s_cmp_eq_u32 s{sI}, s{sMK}"]
            fill[17] += [lacc()[1], f"s_cbranch_scc1 L_mask{p}\nL_mask{p}_ret:"]
            for n, x in zip((18, 19, 20, 21), sa[:4]): fill[n].append(x)
            fill[22].append(sa[5])
            fill[24] += [sa[4], sa[6]]
            for n, x in zip((24, 25, 26, 27, 27, 28, 29, 30), sa[7:]): fill[n].append(x)
            if FU: fill[25] += [f"s_cmp_ge_i32 s{sI}, s{sTI}", f"s_cbranch_scc1 L_tick{p}\nL_tick{p}_ret:"]
            fill[30].append(f"s_add_u32 s{sI}, s{sI}, 1")
            for j in range(4): L.rd(("K", j), kread(j, ks_))
            for x in sb[:5]: e(x)
            for sl in range(32):
                if sl < 16:
                    if not sl & 1: L.need(("K", sl >> 1))
                    e(qk(sl >> 1, sl & 1, Sn))
                else:
                    if sl == 16: e(f"s_cbranch_vccnz L_slow{p}\nL_slow{p}_ret:")
                    if sl < 24: L.need(("V", 2 * (sl - 16) + 1))
                    e(pv((sl - 16) & 7, (sl - 16) >> 3))
                for x in fill[sl]:
                    if isinstance(x, tuple):
                        L.rd(x, kread(x[1], ks_) if x[0] == "K" else vread(x[1] >> 1, x[1] & 1, vs_))
                    else: e(x)
        else:
            e(f"s_add_u32 s{sI}, s{sI}, 1\nL_slow{p}_ret:\nL_mask{p}_ret:")
        if p == NS - 1:
            e("s_branch L_ph0")
    drop = [x for b, xs in ((1, ["ds_read"]), (2, ["v_mfma"]), (4, ["v_exp", "v_pk_add", "v_cvt_pk"])) if not o["cm"] & b for x in xs]
    e.l[mark:] = [x for x in e.l[mark:] if not any(x.strip().startswith(d) for d in drop)]
    for p in range(NS):
        Sn, So = vS[p & 1], vS[(p + 1) & 1]
        e(f"L_slow{p}:"); slow(So, Sn); e(f"s_branch L_slow{p}_ret")
        e(f"L_mask{p}:"); mask_block(Sn); e(f"s_branch L_mask{p}_ret")
        if FU and o["compute"]: e(f"L_tick{p}:"); ticket(); e(f"s_branch L_tick{p}_ret")
        e(f"L_bnd{p}:")
        vr = [vread(db, u, (p - 1) % NS) for db in range(8) for u in range(2)]
        for x in vr[:12]: e(x)
        if So != vS[0]:
            for i in range(16): e(f"v_mov_b32 v{vS[0]+i}, v{So+i}")
        e("s_waitcnt lgkmcnt(8)")
        for x in vr[12:]: e(x)
        e("s_branch L_last")
    e("L_last:")
    for x in soft(vS[0], 1) + guard(): e(x)
    e("s_nop 1\ns_cbranch_vccz L_last_ok")
    slow(vS[0], None)
    e("L_last_ok:")
    for x in lacc(): e(x)
    e("s_waitcnt lgkmcnt(0)")
    for qb in range(2):
        for db in range(8): e(pv(db, qb))
    stamp(4)
    e(f"v_add_f32 v{vT}, v{vL}, v{vL+1}\nv_add_f32 v{vU}, v{vL+2}, v{vL+3}")
    xlane("v_add_f32", MX)
    if FU:
        e(f"""
        s_add_u32 s{sPD}, s{sSL}, s{sJ}
        s_add_u32 s{sPD}, s{sPD}, s{sBB}
        s_lshl_b32 s{sPD}, s{sPD}, 2
        s_add_u32 s{sPD}, s{sPD}, s{sW}
        s_lshl_b32 s{sPD}, s{sPD}, {FS}
        s_add_u32 s{sPD}, s{sPD}, {FLAG_OFF}
        s_waitcnt vmcnt(0)
        s_cmp_lt_u32 s{sI}, s{sNT}
        s_cbranch_scc0 L_fin
        s_mov_b32 m0, s{sBB}
        s_nop 0
        s_movrels_b32 s{sT0}, s{SS}
        s_cmp_lt_u32 s{sT0}, s{sLO}
        s_cbranch_scc0 L_out
        s_mul_i32 s{sT0}, s{sW}, 8704
        s_add_u32 s{sT0}, s{sT0}, {2*VR}
        v_and_b32 v{vA}, 16, v{vLane}
        v_cmp_eq_u32 vcc, 0, v{vA}
        v_lshl_add_u32 v{vA}, v{vLane}, 3, s{sT0}
        v_lshl_add_u32 v{vE}, v{vLane}, 4, s{sT0}
        v_cndmask_b32 v{vT2}, v{vU}, v{vT}, vcc
        v_cndmask_b32 v{vT}, v{vNM+4}, v{vNM}, vcc
        v_sub_f32 v{vT}, 0, v{vT}
        ds_write_b64 v{vA}, v[{vT}:{vT+1}] offset:8192
        """)
        for c in range(8):
            q, pp = c >> 2, c & 3
            for n in range(4):
                r = vO + 8 * (2 * pp + (n >> 1)) + 4 * q + 2 * (n & 1)
                e(f"v_cvt_pk_bf16_f32 v{vV+4*c+n}, v{r}, v{r+1}")
            e(f"ds_write_b128 v{vE}, v[{vV+4*c}:{vV+4*c+3}] offset:{1024*c}")
        e(f"""
        s_branch L_next
        L_fin:
        {"s_mov_b32 s%d, s%d" % (sSEG, sNF) if o["sp"] else ""}
        s_cmp_eq_u32 s{sNF}, {15 if o["sp"] else 0}
        s_cbranch_scc1 L_merge
        L_part:
        """)
    mlr, adr = (vE, vU2) if o["sp"] else (vT, vU)
    e(f"""
    v_and_b32 v{vA}, 16, v{vLane}
    v_cmp_eq_u32 vcc, 0, v{vA}
    s_add_u32 s{sT0}, s{sJ}, s{sBB}
    s_mul_i32 s{sT1}, s{sH}, {NSLOT_H}
    s_add_u32 s{sT0}, s{sT0}, s{sT1}
    v_cndmask_b32 v{mlr+1}, v{vU}, v{vT}, vcc
    v_cndmask_b32 v{mlr}, v{vNM+4}, v{vNM}, vcc
    s_lshl_b32 s{sT0}, s{sT0}, 2
    s_add_u32 s{sT0}, s{sT0}, s{sW}
    v_sub_f32 v{mlr}, 0, v{mlr}
    s_lshl_b32 s{sT1}, s{sT0}, 9
    s_add_u32 s{sT1}, s{sT1}, {ML_OFF}
    v_lshlrev_b32 v{vA}, 3, v{vLane}
    s_lshl_b32 s{sT0}, s{sT0}, 13
    buffer_store_dwordx2 v[{mlr}:{mlr+1}], v{vA}, s[{SW}:{SW+3}], s{sT1} offen{sc}
    s_add_u32 s{sT1}, s{sT0}, 4096
    v_lshlrev_b32 v{adr}, 4, v{vLane}
    """)
    for c in range(8):
        q, pp = c >> 2, c & 3
        if o["sp"] and not c & 1: e(f"s_bitcmp1_b32 s{sNF}, {c>>1}\ns_cbranch_scc1 L_ps{c>>1}")
        for n in range(4):
            r = vO + 8 * (2 * pp + (n >> 1)) + 4 * q + 2 * (n & 1)
            e(f"v_cvt_pk_bf16_f32 v{vV+4*c+n}, v{r}, v{r+1}")
        e(f"buffer_store_dwordx4 v[{vV+4*c}:{vV+4*c+3}], v{adr}, s[{SW}:{SW+3}], s{sT0 if c<4 else sT1} offen offset:{1024*(c&3)}{sc}")
        if o["sp"] and c & 1: e(f"L_ps{c>>1}:")
    if o["sp"]: e(f"s_cmp_lg_u32 s{sNF}, 0\ns_cbranch_scc1 L_merge2")
    e(f"""
    s_cmp_ge_u32 s{sI}, s{sNT}
    s_cbranch_scc1 {"L_pdone" if FU else "L_done"}
    L_next:
    s_add_u32 s{sBB}, s{sBB}, 1
    {"" if FU else "s_waitcnt vmcnt(9)"}
    """)
    seg_params()
    q_scale()
    q_load(1)
    e(f"""
    L_first:
    s_mov_b32 s{sT0}, s{sI}
    """)
    if NS & (NS - 1):
        e(f"s_mul_i32 s{sT1}, s{sI}, {(65536 + NS - 1) // NS}\ns_lshr_b32 s{sT1}, s{sT1}, 16\ns_mul_i32 s{sT1}, s{sT1}, {NS}\ns_sub_u32 s{sT0}, s{sI}, s{sT1}")
    else:
        e(f"s_and_b32 s{sT0}, s{sI}, {NS-1}")
    e(f"s_lshl_b32 s{sT1}, s{sT0}, 13")
    for k4 in range(4): e(f"v_add_u32 v{vS[1]+k4}, s{sT1}, v{vKA+k4}")
    for j in range(4): e(kread(j, 0, vS[1]))
    for i in range(64): e(f"v_mov_b32 v{vO+i}, 0")
    for i in range(4): e(f"v_mov_b32 v{vL+i}, 0")
    for j in range(8):
        e(f"s_waitcnt lgkmcnt({min(3, 7-j)})"); e(qk(j, 0, vS[0], True)); e(qk(j, 1, vS[0], True))
        if j < 4: e(kread(j + 4, 0, vS[1]))
    e(f"s_nop 7\ns_cmp_lg_u32 s{sI}, s{sMK}\ns_cbranch_scc1 L_f_nomask")
    mask_block(vS[0])
    e("L_f_nomask:")
    rowmax(vS[0])
    for q in range(2):
        for i in range(8): e(f"v_sub_f32 v{SI(vS[0], q, i)}, v{SI(vS[0], q, i)}, v{MX[q]}")
        for i in range(4): e(f"v_sub_f32 v{vNM+4*q+i}, 0, v{MX[q]}")
    for x in soft(vS[0], 0): e(x)
    e(f"s_bitcmp0_b32 s{sT0}, 0\ns_cbranch_scc1 L_f_even")
    for i in range(8, 16): e(f"v_mov_b32 v{vS[1]+i}, v{vS[0]+i}")
    for i in range(8): e(f"v_mov_b32 v{vS[1]+i}, v{vS[0]+i}")
    e(f"L_f_even:\ns_add_u32 s{sI}, s{sI}, 1")
    for p in range(NS - 1):
        e(f"s_cmp_eq_u32 s{sT0}, {p}\ns_cbranch_scc1 L_ph{p+1}")
    e("s_branch L_ph0")
    if FU:
        BUF, vML, vM, vAL, vA2 = (64, 104, 136, 184), 168, 216, 218, 222
        LL = (vT, vU)
        vFA, vFL, sFO = 236, 237, sTI if o["sp"] else sPD
        e("L_pdone:\ns_waitcnt vmcnt(0)")
        go("b"); signal(sPD)
        e(f"""
        s_branch L_done
        L_merge:
        s_bcnt1_i32_b64 s{sKK}, s[{sMS}:{sMS+1}]
        s_cmp_eq_u32 s{sKK}, 0
        s_cbranch_scc1 L_out
        L_merge2:
        """)
        go("c")
        e(f"""
        s_add_u32 s{sSL}, s{sSL}, s{sBB}
        s_lshl_b32 s{sFO}, s{sSL}, 2
        s_add_u32 s{sFO}, s{sFO}, s{sW}
        s_lshl_b32 s{sFO}, s{sFO}, {FS}
        s_add_u32 s{sFO}, s{sFO}, {FLAG_OFF}
        v_lshlrev_b32 v{vFA}, {FS+2}, v{vLane}
        s_mov_b64 exec, s[{sMS}:{sMS+1}]
        buffer_load_dword v{vFL}, v{vFA}, s[{SW}:{SW+3}], s{sFO} offen sc1
        s_mov_b64 exec, -1
        v_sub_f32 v{vM}, 0, v{vNM}
        v_sub_f32 v{vM+1}, 0, v{vNM+4}
        """)
        if o["sp"]:
            e(f"s_waitcnt vmcnt(0)\nv_mov_b32 v{vE}, 1\ns_mov_b64 exec, 1\nbuffer_store_dword v{vE}, off, s[{SW}:{SW+3}], s{sPD} sc1\ns_mov_b64 exec, -1")
        e(f"""
        v_and_b32 v{vA}, 15, v{vLane}
        v_lshlrev_b32 v{vA}, 3, v{vA}
        v_add_u32 v{vA}, {ML_OFF}, v{vA}
        v_lshlrev_b32 v{vA2}, 4, v{vLane}
        v_add_u32 v{vA2+1}, 4096, v{vA2}
        s_mov_b64 exec, s[{sMS}:{sMS+1}]
        {"s_branch L_pollc" if o["sp"] else ""}
        L_poll:
        s_waitcnt vmcnt(0)
        L_pollc:
        v_cmp_{"eq" if o["inc"] else "ne"}_u32 vcc, 1, v{vFL}
        s_sub_u32 s{sTM}, s{sTM}, 1
        s_cbranch_scc1 L_all
        s_cbranch_{"vccnz L_ready" if o["inc"] else "vccz L_all"}
        buffer_load_dword v{vFL}, v{vFA}, s[{SW}:{SW+3}], s{sFO} offen sc1
        s_branch L_poll
        L_all:
        s_mov_b32 s{sTM}, 0
        s_mov_b64 vcc, s[{sMS}:{sMS+1}]
        L_ready:
        s_mov_b64 exec, -1
        s_bcnt1_i32_b64 s{sKK}, vcc
        """)
        if o["stamp"] == 5: stamp(1)
        B16, MLR, SOF = (64, 80, 104, 120, 136, 152, 184, 200), (168, 172, 176, 180, 228, 232), (98, 99, 100, 101, 94, 95)
        def oscale(w):
            for db in range(8):
                for q in range(2):
                    for h2 in range(2):
                        r = vO + 8 * db + 4 * q + 2 * h2
                        e(f"v_pk_mul_f32 {R2(r)}, {R2(r)}, {R2(w+2*q)} op_sel_hi:[1,0]")
        def pscale(w, k):
            for db in range(4 * (k & 1), 4 * (k & 1) + 4):
                for h2 in range(2):
                    r = vO + 8 * db + 4 * (k >> 1) + 2 * h2
                    e(f"v_pk_mul_f32 {R2(r)}, {R2(r)}, {R2(w+2*(k>>1))} op_sel_hi:[1,0]")
        def uload(u):
            for k in range(4):
                e(f"buffer_load_dwordx4 {R4(B16[u&7]+4*k)}, v{vA2+(u&1)}, s[{SW}:{SW+3}], s{SOF[u>>1]} offen offset:{1024*k} sc1")
        def repoll():
            e(f"""
            s_cmp_eq_u64 s[{sMS}:{sMS+1}], 0
            s_cselect_b32 s3, {OOB:#x}, s{sFO}
            s_cselect_b64 exec, -1, s[{sMS}:{sMS+1}]
            buffer_load_dword v{vFL}, v{vFA}, s[{SW}:{SW+3}], s3 offen sc1
            s_mov_b64 exec, -1
            """)
        def merge_round(NSL, kmin):
            NU, lf = min(8, 2 * NSL), o["lf"]
            for c in range(NSL):
                e(f"""
                s_ff1_i32_b64 s{sT0}, vcc
                s_bitset0_b64 vcc, s{sT0}
                s_bitset0_b64 s[{sMS}:{sMS+1}], s{sT0}
                s_add_u32 s{sT0}, s{sT0}, s{sSL}
                s_lshl_b32 s{sT0}, s{sT0}, 2
                s_add_u32 s{sT0}, s{sT0}, s{sW}
                s_lshl_b32 s{sT1}, s{sT0}, 9
                s_lshl_b32 s{SOF[c]}, s{sT0}, 13
                """)
                if c >= kmin:
                    e(f"""
                    s_cmp_gt_i32 s{sKK}, {c}
                    s_cselect_b32 s{sT1}, s{sT1}, {OOB:#x}
                    s_cselect_b32 s{SOF[c]}, s{SOF[c]}, {OOB:#x}
                    """)
                e(f"""
                buffer_load_dwordx2 {R2(MLR[c])}, v{vA}, s[{SW}:{SW+3}], s{sT1} offen sc1
                buffer_load_dwordx2 {R2(MLR[c]+2)}, v{vA}, s[{SW}:{SW+3}], s{sT1} offen offset:128 sc1
                """)
            cell = lambda k, c: (lambda i: B16[4 * (k >> 1) + (i >> 1)] + 8 * (i & 1))(7 - c if k & 1 else c)
            if o["sp"]:
                for k in range(4):
                    e(f"s_bitcmp1_b32 s{sNF}, {k}\ns_cbranch_scc0 L_ml{NSL}_{k}")
                    for c in range(NSL):
                        for h2 in range(2):
                            e(f"buffer_load_dwordx4 {R4(cell(k, c)+4*h2)}, v{vA2+(k>>1)}, s[{SW}:{SW+3}], s{SOF[c]} offen offset:{1024*(2*(k&1)+h2)} sc1")
                    e(f"L_ml{NSL}_{k}:")
                e("s_waitcnt vmcnt(0)")
                repoll()
            else:
                if not lf: repoll()
                for u in range(NU): uload(u)
                e(f"s_waitcnt vmcnt({4*NU})")
                if lf: repoll()
            if o["stamp"] == 5: stamp(2)
            for c in range(max(1, kmin), NSL):
                e(f"s_cmp_gt_i32 s{sKK}, {c}\ns_cselect_b32 s3, 0, {NEGINF:#x}\nv_add_f32 v{MLR[c]}, s3, v{MLR[c]}\nv_add_f32 v{MLR[c]+2}, s3, v{MLR[c]+2}")
            for c in range(0, NSL, 2):
                for q in range(2):
                    if c + 1 < NSL: e(f"v_max3_f32 v{vE+q}, v{vE+q if c else vM+q}, v{MLR[c]+2*q}, v{MLR[c+1]+2*q}")
                    else: e(f"v_max_f32 v{vE+q}, v{vE+q if c else vM+q}, v{MLR[c]+2*q}")
            for q in range(2):
                e(f"v_sub_f32 v{vAL+2*q}, v{vM+q}, v{vE+q}\nv_mov_b32 v{vM+q}, v{vE+q}")
                for c in range(NSL): e(f"v_sub_f32 v{MLR[c]+2*q}, v{MLR[c]+2*q}, v{vE+q}")
            for q in range(2):
                e(f"v_exp_f32 v{vAL+2*q}, v{vAL+2*q}")
                for c in range(NSL): e(f"v_exp_f32 v{MLR[c]+2*q}, v{MLR[c]+2*q}")
            e("s_nop 0")
            for q in range(2):
                e(f"v_mul_f32 v{LL[q]}, v{LL[q]}, v{vAL+2*q}")
                for c in range(NSL): e(f"v_fmac_f32 v{LL[q]}, v{MLR[c]+2*q+1}, v{MLR[c]+2*q}")
            if o["sp"]:
                for k in range(4):
                    q = k >> 1
                    e(f"s_bitcmp1_b32 s{sNF}, {k}\ns_cbranch_scc0 L_mf{NSL}_{k}")
                    pscale(vAL, k)
                    for c in range(NSL):
                        if c >= max(1, kmin): e(f"s_cmp_gt_i32 s{sKK}, {c}\ns_cbranch_scc0 L_mf{NSL}_{k}")
                        for h2 in range(2):
                            for n in range(4):
                                r = vO + 8 * (2 * (2 * (k & 1) + h2) + (n >> 1)) + 4 * q + 2 * (n & 1)
                                x, t = cell(k, c) + 4 * h2 + n, vE + 2 * (n & 1)
                                e(f"v_lshlrev_b32 v{t}, 16, v{x}\nv_and_b32 v{t+1}, 0xffff0000, v{x}\nv_pk_fma_f32 {R2(r)}, {R2(t)}, {R2(MLR[c]+2*q)}, {R2(r)} op_sel_hi:[1,0,1]")
                    e(f"L_mf{NSL}_{k}:")
                return
            oscale(vAL)
            for u in range(2 * NSL):
                c, q = u >> 1, u & 1
                if c >= max(1, kmin) and not q: e(f"s_cmp_gt_i32 s{sKK}, {c}\ns_cbranch_scc0 L_rend")
                e(f"s_waitcnt vmcnt({min(28, 4*(2*NSL-1-u)) + (1 if lf and u < NU else 0)})")
                for pp in range(4):
                    for n in range(4):
                        r = vO + 8 * (2 * pp + (n >> 1)) + 4 * q + 2 * (n & 1)
                        x, t = B16[u & 7] + 4 * pp + n, vE + 2 * (n & 1)
                        e(f"v_lshlrev_b32 v{t}, 16, v{x}\nv_and_b32 v{t+1}, 0xffff0000, v{x}\nv_pk_fma_f32 {R2(r)}, {R2(t)}, {R2(MLR[c]+2*q)}, {R2(r)} op_sel_hi:[1,0,1]")
                if u + 8 < 2 * NSL: uload(u + 8)
        if o["sm"]:
            e(f"s_cmp_gt_i32 s{sKK}, {o['sm']}\ns_cbranch_scc1 L_rbig")
            merge_round(o["sm"], 1)
            e("s_branch L_rend\nL_rbig:")
            merge_round(6, o["sm"] + 1)
        else:
            merge_round(6, 0)
        e(f"""
        L_rend:
        s_cmp_eq_u64 s[{sMS}:{sMS+1}], 0
        s_cbranch_scc1 L_out
        s_mov_b64 exec, s[{sMS}:{sMS+1}]
        s_branch L_poll
        L_out:
        v_rcp_f32 v{vAL}, v{vT}
        v_rcp_f32 v{vAL+2}, v{vU}
        s_lshl_b32 s{sT0}, s{sBB}, 3
        s_add_u32 s{sT0}, s{sT0}, s{sH}
        s_lshl_b32 s{sT0}, s{sT0}, 2
        s_add_u32 s{sT0}, s{sT0}, s{sW}
        s_lshl_b32 s{sT0}, s{sT0}, 13
        s_add_u32 s{sT1}, s{sT0}, 4096
        v_and_b32 v{vA}, 15, v{vLane}
        v_lshlrev_b32 v{vA}, 8, v{vA}
        v_bfe_u32 v{vT2}, v{vLane}, 4, 1
        v_lshl_add_u32 v{vA}, v{vT2}, 5, v{vA}
        v_lshrrev_b32 v{vT2}, 5, v{vLane}
        v_lshl_add_u32 v{vA}, v{vT2}, 4, v{vA}
        s_waitcnt vmcnt(0)
        """)
        if o["stamp"] == 5: stamp(3)
        osf = ["", " sc1", " sc1 nt", " sc0 sc1", " nt"][o["os"]]
        if o["sp"]:
            for k in range(4):
                e(f"s_bitcmp1_b32 s{sSEG}, {k}\ns_cbranch_scc0 L_os{k}")
                pscale(vAL, k)
                for c in (2 * k, 2 * k + 1):
                    q, pp = c >> 2, c & 3
                    for n in range(4):
                        r = vO + 8 * (2 * pp + (n >> 1)) + 4 * q + 2 * (n & 1)
                        e(f"v_cvt_pk_bf16_f32 v{vV+4*c+n}, v{r}, v{r+1}")
                for c in (2 * k, 2 * k + 1):
                    d = vV + 4 * c
                    e(f"v_permlane16_swap_b32 v{d}, v{d+2}\nv_permlane16_swap_b32 v{d+1}, v{d+3}")
                e("s_nop 0")
                for c in (2 * k, 2 * k + 1):
                    e(f"buffer_store_dwordx4 {R4(vV+4*c)}, v{vA}, s[{SO}:{SO+3}], s{sT0 if c<4 else sT1} offen offset:{64*(c&3)}{osf}")
                e(f"L_os{k}:")
        else:
            oscale(vAL)
            for c in range(8):
                q, pp = c >> 2, c & 3
                for n in range(4):
                    r = vO + 8 * (2 * pp + (n >> 1)) + 4 * q + 2 * (n & 1)
                    e(f"v_cvt_pk_bf16_f32 v{vV+4*c+n}, v{r}, v{r+1}")
                if c:
                    d = vV + 4 * (c - 1)
                    e(f"v_permlane16_swap_b32 v{d}, v{d+2}\nv_permlane16_swap_b32 v{d+1}, v{d+3}")
                if c > 1:
                    e(f"buffer_store_dwordx4 {R4(vV+4*(c-2))}, v{vA}, s[{SO}:{SO+3}], s{sT0 if c-2<4 else sT1} offen offset:{64*((c-2)&3)}{osf}")
            e(f"s_nop 1\nv_permlane16_swap_b32 v{vV+28}, v{vV+30}\nv_permlane16_swap_b32 v{vV+29}, v{vV+31}")
            for c in (6, 7):
                e(f"buffer_store_dwordx4 {R4(vV+4*c)}, v{vA}, s[{SO}:{SO+3}], s{sT1} offen offset:{64*(c&3)}{osf}")
        e(f"s_cmp_lt_u32 s{sI}, s{sNT}\ns_cbranch_scc1 L_next")
    e("L_done:")
    if o["stamp"]:
        e("s_waitcnt vmcnt(0)")
        stamp(5); stamp(7, True)
        if o["xt"] == 2: e(f"s_getreg_b32 s3, hwreg(HW_REG_XCC_ID, 0, 16)\nv_writelane_b32 v{vST}, s3, 1")
        if o["stamp"] == 4:
            srd(e, SD, 28, 256)
            e(f"""
            s_nop 4
            v_readlane_b32 s94, v{vST}, 0
            v_readlane_b32 s95, v{vST}, 5
            v_readlane_b32 s96, v{vST}, 4
            v_readlane_b32 s97, v{vST}, 3
            v_readlane_b32 s98, v{vST}, 6
            v_readlane_b32 s99, v{vST}, 7
            s_cmp_lg_u32 s{sW}, 0
            s_cbranch_scc1 L_end
            s_sub_u32 s95, s95, s94
            s_sub_u32 s96, s96, s94
            s_sub_u32 s97, s97, s94
            s_sub_u32 s98, s99, s98
            v_mov_b32 v1, s95
            v_mov_b32 v2, s96
            v_mov_b32 v3, s97
            v_mov_b32 v4, s98
            s_mov_b64 exec, 1
            buffer_atomic_umax v1, off, s[{SD}:{SD+3}], 0 offset:4 sc1
            buffer_atomic_add v1, off, s[{SD}:{SD+3}], 0 offset:8 sc1
            buffer_atomic_umax v2, off, s[{SD}:{SD+3}], 0 offset:12 sc1
            buffer_atomic_add v2, off, s[{SD}:{SD+3}], 0 offset:16 sc1
            buffer_atomic_add v3, off, s[{SD}:{SD+3}], 0 offset:20 sc1
            buffer_atomic_add v4, off, s[{SD}:{SD+3}], 0 offset:24 sc1
            s_endpgm
            """)
        stamp_store(e, vST, sW, 0)
        if o["stamp"] == 2:
            e(f"""
            s_mov_b64 exec, -1
            s_lshl_b32 s3, s2, 2
            s_add_u32 s3, s3, s{sW}
            s_lshl_b32 s3, s3, 9
            s_add_u32 s3, s3, {STAMP_OFF + (1 << 20)}
            v_lshlrev_b32 v8, 2, v{vLane}
            buffer_store_dword v254, v8, s[{SW}:{SW+3}], s3 offen
            """)
    e("L_end:\ns_endpgm\nL_idle:")
    publish("b")
    e("s_endpgm")

    vDK0, vDK1, vDV0, vDV1, vPG, vB, vC, vSt, vM = 1, 2, 3, 4, 5, 6, 7, 8, 9
    sLD, sKD, sVD, sPK, sPV, sHF = 9, 10, 11, 12, 13, 15
    e("L_loader:")
    def lst(i):
        return f"s_memrealtime s[92:93]\ns_waitcnt lgkmcnt(0)\nv_writelane_b32 v20, s92, {i}\n" if o["stamp"] == 3 else ""
    if o["prio"]: e("s_setprio 1")
    srd(e, SB, 22, 8 * 512 * 4)
    if o["tl"]:
        e(f"""
        s_and_b32 s3, s{sW}, 3
        s_lshl_b32 s3, s3, 12
        s_add_u32 m0, s3, {2*VR}
        v_lshlrev_b32 v1, 4, v{vLane}
        """)
        for k in range(4): e(f"buffer_load_dwordx4 v1, s[{SB}:{SB+3}], s3 offen offset:{1024*k} lds")
    srd(e, SK, 18, KV_BYTES); srd(e, SV, 20, KV_BYTES)
    DS = [int(c) for c in str(o["D"])] if o["D"] else [NS - 1] * 8
    tab = sum(d << (4 * i) for i, d in enumerate(DS))
    sD = 14
    e(f"""
    s_lshr_b32 s{sT0}, s18, 8
    s_add_u32 s{sT0}, s{sT0}, s{sH}
    s_and_b32 s{sT0}, s{sT0}, 7
    s_lshl_b32 s{sT0}, s{sT0}, 2
    s_lshr_b32 s{sD}, {tab:#x}, s{sT0}
    s_and_b32 s{sD}, s{sD}, 15
    """)
    e(f"""
    s_and_b32 s{sT0}, s{sW}, 1
    s_lshl_b32 s{sT0}, s{sT0}, 3
    s_lshl_b32 s{sT1}, s{sH}, 8
    v_lshrrev_b32 v{vT}, 4, v{vLane}
    v_add_u32 v{vT2}, s{sT0}, v{vT}
    v_and_b32 v{vA}, 15, v{vLane}
    v_xor_b32 v{vM}, v{vA}, v{vT2}
    v_lshlrev_b32 v{vM}, 4, v{vM}
    v_lshl_add_u32 v{vM}, v{vT2}, 11, v{vM}
    v_add_u32 v{vDK0}, s{sT1}, v{vM}
    v_xor_b32 v{vDK1}, 64, v{vDK0}
    v_add_u32 v{vDK1}, {8192-1024}, v{vDK1}
    v_lshlrev_b32 v{vT}, 1, v{vT}
    v_xor_b32 v{vT}, s{sT0}, v{vT}
    v_xor_b32 v{vM}, v{vA}, v{vT}
    v_lshlrev_b32 v{vM}, 4, v{vM}
    v_lshl_add_u32 v{vM}, v{vT2}, 11, v{vM}
    v_add_u32 v{vDV0}, s{sT1}, v{vM}
    v_xor_b32 v{vDV1}, 128, v{vDV0}
    v_add_u32 v{vDV1}, {8192-1024}, v{vDV1}
    s_and_b32 s{sW}, s{sW}, 3
    s_lshl_b32 s{sKD}, s{sW}, 11
    s_add_u32 s{sVD}, s{sKD}, {VR + (NS-1)*8192}
    s_waitcnt lgkmcnt(0)
    {lst(58)}
    """)
    batch_tables(e)
    wg_range(e, o, sJ, sLO, sNT, sT0, sT1)
    e(f"""
    s_cmp_eq_u32 s{sNT}, 0
    s_cbranch_scc1 L_lidle
    s_lshr_b32 s{sHF}, s{sW}, 1
    s_mov_b32 s{sLD}, 0
    s_mov_b32 s{sPK}, {OOB:#x}
    """)
    def plist(vD, off):
        e(f"""
        v_add_u32 v{vM}, {off}, v{vLane}
        v_add_u32 v{vT}, s{sLO}, v{vM}
        v_mov_b32 v{vB}, 0
        v_mov_b32 v{vC}, s{SC}
        v_mov_b32 v{vSt}, 0
        """)
        for b in range(1, 8):
            e(f"v_cmpx_le_u32 vcc, s{SS+b}, v{vT}\nv_mov_b32 v{vC}, s{SC+b}\nv_mov_b32 v{vSt}, s{SS+b}\nv_mov_b32 v{vB}, {b*2048}")
        e(f"""
        s_mov_b64 exec, -1
        v_sub_u32 v{vT}, v{vT}, v{vSt}
        v_lshl_add_u32 v{vT}, v{vT}, 1, s{sHF}
        v_lshl_add_u32 v{vT2}, v{vT}, 2, v{vB}
        """)
        if o["tl"]:
            e(f"v_min_u32 v{vT2}, 16380, v{vT2}")
            if off == 0: e(lst(59) + "s_waitcnt vmcnt(0)\n" + lst(60) + "s_barrier\n" + lst(61))
            e(f"ds_read_b32 v{vD}, v{vT2} offset:{2*VR}" if 2 * VR < 65536 else f"v_add_u32 v{vT2}, {2*VR}, v{vT2}\nds_read_b32 v{vD}, v{vT2}")
        else:
            e(f"buffer_load_dword v{vD}, v{vT2}, s[{SB}:{SB+3}], 0 offen")
        e(f"""
        v_lshlrev_b32 v{vT}, 4, v{vT}
        v_cmp_lt_u32 s[94:95], v{vT}, v{vC}
        v_cmp_gt_u32 vcc, s{sNT}, v{vM}
        v_mov_b32 v{vT}, {OOB:#x}
        s_and_b64 s[94:95], s[94:95], vcc
        s_waitcnt {"lgkmcnt(0)" if o["tl"] else "vmcnt(0)"}
        v_lshlrev_b32 v{vD}, 15, v{vD}
        v_cndmask_b32 v{vD}, v{vT}, v{vD}, s[94:95]
        """)
    vPG2 = 10
    plist(vPG, 0)
    if not o["tl"]: plist(vPG2, 64)
    def fetch(first=False):
        e(f"""
        s_mov_b32 s{sPV}, s{sPK}
        v_readlane_b32 s{sPK}, v{vPG}, s{sLD}
        v_readlane_b32 s3, v{vPG2}, s{sLD}
        s_cmp_lt_u32 s{sLD}, 64
        s_cselect_b32 s{sPK}, s{sPK}, s3
        s_add_u32 s{sLD}, s{sLD}, 1
        """)
    def issue(first=False):
        e(f"""
        s_mov_b32 m0, s{sKD}
        s_add_u32 s{sKD}, s{sKD}, 8192
        buffer_load_dwordx4 v{vDK0}, s[{SK}:{SK+3}], s{sPK} offen{nt} lds
        buffer_load_dwordx4 v{vDK1}, s[{SK}:{SK+3}], s{sPK} offen offset:1024{nt} lds
        s_mov_b32 m0, s{sVD}
        s_add_u32 s{sVD}, s{sVD}, 8192
        """)
        if not first:
            e(f"""
            buffer_load_dwordx4 v{vDV0}, s[{SV}:{SV+3}], s{sPV} offen{nt} lds
            buffer_load_dwordx4 v{vDV1}, s[{SV}:{SV+3}], s{sPV} offen offset:1024{nt} lds
            """)
        e(f"""
        s_cmp_ge_u32 s{sKD}, {VR}
        s_cselect_b32 s{sT0}, {VR}, 0
        s_sub_u32 s{sKD}, s{sKD}, s{sT0}
        s_cmp_ge_u32 s{sVD}, {2*VR}
        s_cselect_b32 s{sT0}, {VR}, 0
        s_sub_u32 s{sVD}, s{sVD}, s{sT0}
        """)
    for t in range(max(DS)):
        fetch(); e("s_nop 1"); issue(t == 0)
        if t + 1 in DS and t + 1 != max(DS): e(f"s_cmp_eq_u32 s{sD}, {t+1}\ns_cbranch_scc1 L_pre{t+1}")
    for D in sorted(set(DS), reverse=True):
        e(f"L_pre{D}:")
        e(lst(62))
        if o["tl"]: plist(vPG2, 64)
        e(f"s_add_u32 s{sNT}, s{sNT}, {D+1}")
        fetch()
        e(f"L_ld{D}:\ns_waitcnt vmcnt({4*(D-1)})\ns_barrier")
        issue()
        if o["stamp"] == 3:
            e(f"s_memrealtime s[92:93]\ns_memtime s[94:95]\ns_sub_u32 s{sT0}, s{sLD}, {D+1}\ns_mov_b32 m0, s{sT0}\ns_waitcnt lgkmcnt(0)\nv_writelane_b32 v20, s92, m0\nv_writelane_b32 v21, s94, m0")
        fetch()
        e(f"s_cmp_le_u32 s{sLD}, s{sNT}\ns_cbranch_scc1 L_ld{D}\ns_branch L_ldone")
    e("L_ldone:")
    if FU:
        srd(e, SW, 30, 32 << 20); srd(e, SQ, 28, 256)
        e(f"s_mov_b32 s{sT0}, 0\ns_mov_b32 s{sKD}, 0\ns_mov_b32 s{sVD}, s{SS+1}")
        for b in range(1, 8):
            e(f"s_cmp_le_u32 s{SS+b}, s{sLO}\ns_cselect_b32 s{sT0}, {b}, s{sT0}\ns_cselect_b32 s{sKD}, s{SS+b}, s{sKD}\ns_cselect_b32 s{sVD}, s{SS+b+1}, s{sVD}")
        e(f"""
        s_cmp_lt_u32 s{sKD}, s{sLO}
        s_cbranch_scc0 L_lend
        s_add_u32 s{sLO}, s{sLO}, s{sNT}
        s_sub_u32 s{sLO}, s{sLO}, s{sD}
        s_sub_u32 s{sLO}, s{sLO}, 1
        s_cmp_lt_u32 s{sVD}, s{sLO}
        s_cbranch_scc0 L_lend
        s_mul_i32 s3, s{sW}, 8704
        s_add_u32 s3, s3, {2*VR}
        v_lshl_add_u32 v1, v{vLane}, 4, s3
        v_lshl_add_u32 v2, v{vLane}, 3, s3
        """)
        for c in range(8): e(f"ds_read_b128 v[{32+4*c}:{35+4*c}], v1 offset:{1024*c}")
        e(f"""
        ds_read_b64 v[30:31], v2 offset:8192
        s_lshl_b32 s{sPK}, s{sH}, 5
        buffer_load_dword v3, off, s[{SQ}:{SQ+3}], s{sPK} sc1
        s_mul_i32 s3, s{sH}, {NSLOT_H}
        s_add_u32 s{sT0}, s{sT0}, s3
        s_add_u32 s{sT0}, s{sT0}, s{sJ}
        s_lshl_b32 s{sT0}, s{sT0}, 2
        s_add_u32 s{sT0}, s{sT0}, s{sW}
        s_lshl_b32 s{sPV}, s{sT0}, {FS}
        s_add_u32 s{sPV}, s{sPV}, {FLAG_OFF}
        s_lshl_b32 s{sT1}, s{sT0}, 9
        s_add_u32 s{sT1}, s{sT1}, {ML_OFF}
        s_lshl_b32 s{sT0}, s{sT0}, 13
        s_add_u32 s{sKD}, s{sT0}, 4096
        v_lshlrev_b32 v1, 4, v{vLane}
        v_lshlrev_b32 v2, 3, v{vLane}
        """)
        for c in range(8):
            e(f"s_waitcnt lgkmcnt({8-c})\nbuffer_store_dwordx4 v[{32+4*c}:{35+4*c}], v1, s[{SW}:{SW+3}], s{sT0 if c<4 else sKD} offen offset:{1024*(c&3)}{sc}")
        e(f"""
        s_waitcnt lgkmcnt(0)
        buffer_store_dwordx2 v[30:31], v2, s[{SW}:{SW+3}], s{sT1} offen{sc}
        s_mov_b32 s{sVD}, {POLL:#x}
        v_mov_b32 v4, 1
        L_lgo:
        s_waitcnt vmcnt(0)
        v_readfirstlane_b32 s3, v3
        s_cmp_lg_u32 s3, 0
        s_cbranch_scc1 L_lgo_ok
        buffer_load_dword v3, off, s[{SQ}:{SQ+3}], s{sPK} sc1
        s_sub_u32 s{sVD}, s{sVD}, 1
        s_cbranch_scc0 L_lgo
        L_lgo_ok:
        s_mov_b64 exec, 1
        buffer_store_dword v4, off, s[{SW}:{SW+3}], s{sPV} sc1
        s_mov_b64 exec, -1
        L_lend:
        """)
    if o["stamp"] == 3:
        srd(e, SW, 30, 32 << 20)
        e(f"""
        s_lshl_b32 s3, s2, 2
        s_add_u32 s3, s3, s{sW}
        s_lshl_b32 s3, s3, 9
        s_add_u32 s3, s3, {STAMP_OFF + (1 << 20)}
        v_lshlrev_b32 v8, 2, v{vLane}
        buffer_store_dword v20, v8, s[{SW}:{SW+3}], s3 offen
        buffer_store_dword v21, v8, s[{SW}:{SW+3}], s3 offen offset:256
        """)
    e("s_endpgm\nL_lidle:\ns_waitcnt vmcnt(0)\ns_endpgm")
    return e.text(), NS * 16384 + (4 * 8704 if FU else 0)

def build2(**kw):
    o = dict(DEF2); o.update(kw)
    k1, lds = main_kernel2(o)
    hdr = '.amdgcn_target "amdgcn-amd-amdhsa--gfx950"\n.text\n'
    if o["fuse"] or o["single"]:
        return f"; @launch {'kernel=' + NAME + '_kernel ' if o['single'] == 2 else ''}grid=(256,1,1) block=(512,1,1) lds={lds}\n" + hdr + k1 + '.section .rodata,"a"\n' + desc(NAME + "_kernel", 256, 256)
    s = f"; @launch kernel={NAME}_kernel grid=(256,1,1) block=(512,1,1) lds={lds}\n"
    s += "; @launch kernel=combine_kernel grid=(256,1,1) block=(256,1,1) lds=0\n"
    return s + hdr + k1 + combine_kernel(o) + '.section .rodata,"a"\n' + desc(NAME + "_kernel", 256, 256) + desc("combine_kernel", 104, 104)

if __name__ == "__main__":
    kw = {}
    for a in sys.argv[2:]:
        k, v = a.split("="); kw[k] = int(v)
    open(sys.argv[1], "w").write(build2(**kw))
```

```python
import sys, struct, math

NAME = "standalone__paged_block_table_kv_pagedattention__sampling"
DEF = dict(NS=9, nt=1, hmap=0, compute=1, stamp=0, exactwait=1, empty=0, single=0)

def f2u(x):
    return struct.unpack("<I", struct.pack("<f", x))[0]

CSCALE = f2u(128 ** -0.5 * math.log2(math.e))
THR = f2u(8.0)
NEGINF = 0xFF800000
OOB = 0x80000000
KV_BYTES = 4100 * 32768
Q_BYTES = 8 * 32 * 32 * 128 * 2
NSLOT_H = 44
ML_OFF = 8 * NSLOT_H * 32768
WS_USED = ML_OFF + 8 * NSLOT_H * 2048
STAMP_OFF = 16 << 20

class E:
    def __init__(self):
        self.l = []
    def __call__(self, s):
        for x in s.strip("\n").split("\n"):
            x = x.strip()
            if x:
                self.l.append(("" if x.endswith(":") else "    ") + x)
    def text(self):
        return "\n".join(self.l) + "\n"

def srd(e, d, p, nbytes):
    e(f"s_mov_b32 s{d}, s{p}\ns_and_b32 s{d+1}, s{p+1}, 0xffff\ns_mov_b32 s{d+2}, {nbytes:#x}\ns_mov_b32 s{d+3}, 0x20000")

SQ, SK, SV, SW, SB, SO = 36, 40, 44, 48, 52, 64
SCL = 56
SC = 68
SS = 76

def batch_tables(e):
    e(f"s_mov_b32 s{SS}, 0")
    for b in range(8):
        e(f"""
        s_sub_u32 s{SC+b}, 0, s{SCL+b}
        s_max_u32 s{SC+b}, s{SC+b}, 0xffffe000
        s_ashr_i32 s3, s{SC+b}, 5
        s_sub_u32 s{SC+b}, 0, s{SC+b}
        s_sub_u32 s{SS+b+1}, s{SS+b}, s3
        """)

def counts(o):
    c = str(o.get("cnt") or "32" * 8)
    r = [int(c[2*i:2*i+2]) for i in range(8)]
    assert sum(r) == 256
    return r

def magic_of_class(e, o, sC, sM):
    cn = counts(o)
    e(f"s_mov_b32 s{sM}, {-(-(1 << 17) // cn[0])}")
    for c in range(1, 8):
        if cn[c] != cn[0]:
            e(f"s_cmp_eq_u32 s{sC}, {c}\ns_cselect_b32 s{sM}, {-(-(1 << 17) // cn[c])}, s{sM}")

def stamp_store(e, v, sw, off):
    e(f"""
    s_lshl_b32 s3, s2, 2
    s_add_u32 s3, s3, s{sw}
    s_lshl_b32 s3, s3, 5
    s_add_u32 s3, s3, {STAMP_OFF + off}
    v_mbcnt_lo_u32_b32 v8, -1, 0
    v_lshlrev_b32 v8, 2, v8
    s_mov_b64 exec, 0xff
    buffer_store_dword v{v}, v8, s[{SW}:{SW+3}], s3 offen
    """)

def interleave(e, mf, fill):
    for m, f in zip(mf, fill):
        e(m)
        for x in f:
            e(x)

def main_kernel(o):
    NS = o["NS"]; nt = " nt" if o["nt"] else ""
    e = E()
    vO, vS, vX, vK, vV, vP = 0, 64, 80, 96, 128, 160
    vKA, vVA = 168, 176
    vDK0, vDK1, vDV0, vDV1 = 180, 181, 182, 183
    vPG, vB, vC, vST, vZ = 184, 185, 186, 187, 188
    vM, vL, vT, vT2, vAL = 189, 190, 192, 193, 194
    vLane, vQA, vWO, vWM, vTok, vNI = 195, 196, 197, 198, 199, 200
    vML = 202
    sH, sJ, sW, sLO, sNT = 4, 5, 6, 7, 8
    sI, sE, sMK, sREM, sSC = 9, 10, 11, 12, 13
    sLD, sDS, sPG, sDEL, sRS = 14, 15, 32, 33, 34
    sFL, sSEG, sBB, sXW, sWB = 35, 85, 86, 87, 88
    sTHR, sT0, sT1 = 89, 90, 91
    WN = 4 * (NS - 3)
    EXTRA = 17

    e(f"""
    .globl {NAME}_kernel
    .p2align 8
    .type {NAME}_kernel,@function
    {NAME}_kernel:
    s_cmp_ge_u32 s2, {0 if o["empty"] else 256}
    s_cbranch_scc1 L_end
    s_load_dwordx16 s[16:31], s[0:1], 0
    """)
    def stamp(i):
        if o["stamp"]:
            e(f"s_memrealtime s[92:93]\ns_waitcnt lgkmcnt(0)\nv_writelane_b32 v204, s92, {i}")
    def cstamp(i):
        if o["stamp"]:
            e(f"s_memtime s[92:93]\ns_waitcnt lgkmcnt(0)\nv_writelane_b32 v204, s92, {i}")
    stamp(0)
    cstamp(6)
    if o["hmap"] == 0:
        e(f"s_and_b32 s{sH}, s2, 7\ns_lshr_b32 s{sJ}, s2, 3")
    else:
        e(f"s_lshr_b32 s{sH}, s2, 5\ns_and_b32 s{sJ}, s2, 31")
    e(f"""
    v_lshrrev_b32 v{vT}, 6, v0
    v_and_b32 v{vLane}, 63, v0
    v_readfirstlane_b32 s{sW}, v{vT}
    s_waitcnt lgkmcnt(0)
    s_load_dwordx8 s[{SCL}:{SCL+7}], s[24:25], 0
    """)
    srd(e, SQ, 16, Q_BYTES); srd(e, SK, 18, KV_BYTES); srd(e, SV, 20, KV_BYTES)
    srd(e, SB, 22, 8 * 512 * 4); srd(e, SW, 30, 32 << 20)
    e(f"""
    v_and_b32 v{vT}, 31, v{vLane}
    v_lshrrev_b32 v{vT2}, 5, v{vLane}
    v_lshlrev_b32 v{vQA}, 8, v{vT}
    v_lshl_add_u32 v{vQA}, v{vT2}, 4, v{vQA}
    v_lshlrev_b32 v{vTok}, 2, v{vT2}
    v_and_b32 v{vAL}, 15, v{vLane}
    v_xor_b32 v{vAL}, v{vAL}, v{vT2}
    v_lshlrev_b32 v{vAL}, 4, v{vAL}
    v_lshl_add_u32 v{vKA}, v{vT}, 8, v{vAL}
    """)
    for ks in range(1, 8):
        e(f"v_xor_b32 v{vKA+ks}, {ks<<5}, v{vKA}")
    e(f"""
    v_bfe_u32 v{vT}, v{vLane}, 2, 2
    v_lshl_add_u32 v{vAL}, v{vT2}, 2, v{vT}
    v_lshlrev_b32 v{vAL}, 8, v{vAL}
    v_lshl_add_u32 v{vAL}, v{vT}, 6, v{vAL}
    v_bfe_u32 v{vT}, v{vLane}, 4, 1
    v_lshl_add_u32 v{vAL}, v{vT}, 5, v{vAL}
    v_and_b32 v{vT}, 3, v{vLane}
    v_lshl_add_u32 v{vAL}, v{vT}, 3, v{vAL}
    v_add_u32 v{vVA}, {8192 + (NS-1)*16384}, v{vAL}
    """)
    for db in range(1, 4):
        e(f"v_xor_b32 v{vVA+db}, {db<<6}, v{vVA}")
    e(f"""
    s_and_b32 s{sT0}, s{sW}, 1
    s_lshl_b32 s{sT0}, s{sT0}, 3
    s_lshl_b32 s{sT1}, s{sH}, 8
    v_lshrrev_b32 v{vT}, 4, v{vLane}
    v_add_u32 v{vT2}, s{sT0}, v{vT}
    v_and_b32 v{vAL}, 15, v{vLane}
    v_xor_b32 v{vM}, v{vAL}, v{vT2}
    v_lshlrev_b32 v{vM}, 4, v{vM}
    v_lshl_add_u32 v{vM}, v{vT2}, 11, v{vM}
    v_add_u32 v{vDK0}, s{sT1}, v{vM}
    v_xor_b32 v{vDK1}, 64, v{vDK0}
    v_add_u32 v{vDK1}, {8192-1024}, v{vDK1}
    v_lshlrev_b32 v{vT}, 2, v{vT}
    v_xor_b32 v{vM}, v{vAL}, v{vT}
    v_lshlrev_b32 v{vM}, 4, v{vM}
    v_lshl_add_u32 v{vM}, v{vT2}, 11, v{vM}
    v_add_u32 v{vDV0}, s{sT1}, v{vM}
    v_add_u32 v{vDV1}, {8192-1024}, v{vDV0}
    s_lshl_b32 s{sWB}, s{sW}, 11
    s_lshl_b32 s{sT0}, s{sW}, 13
    v_lshlrev_b32 v{vWO}, 4, v{vLane}
    v_add_u32 v{vWO}, s{sT0}, v{vWO}
    s_lshl_b32 s{sT0}, s{sW}, 9
    s_add_u32 s{sT0}, s{sT0}, {ML_OFF}
    v_lshlrev_b32 v{vWM}, 3, v{vLane}
    v_add_u32 v{vWM}, s{sT0}, v{vWM}
    v_mov_b32 v{vNI}, {NEGINF:#x}
    s_mov_b32 s{sTHR}, {THR:#x}
    s_mov_b32 s96, 16384
    s_waitcnt lgkmcnt(0)
    """)
    stamp(1)
    batch_tables(e)
    e(f"""
    s_mul_i32 s{sLO}, s{sJ}, s{SS+8}
    s_add_u32 s{sNT}, s{sLO}, s{SS+8}
    s_lshr_b32 s{sLO}, s{sLO}, 5
    s_lshr_b32 s{sNT}, s{sNT}, 5
    s_sub_u32 s{sNT}, s{sNT}, s{sLO}
    s_cmp_eq_u32 s{sNT}, 0
    s_cbranch_scc1 L_end
    v_add_u32 v{vT}, s{sLO}, v{vLane}
    v_mov_b32 v{vB}, 0
    v_mov_b32 v{vC}, s{SC}
    v_mov_b32 v{vST}, 0
    v_mov_b32 v{vZ}, s{SCL}
    """)
    for b in range(1, 8):
        e(f"""
        v_cmp_le_u32 vcc, s{SS+b}, v{vT}
        v_mov_b32 v{vT2}, s{SC+b}
        v_mov_b32 v{vAL}, s{SS+b}
        v_mov_b32 v{vM}, s{SCL+b}
        v_cndmask_b32 v{vC}, v{vC}, v{vT2}, vcc
        v_cndmask_b32 v{vST}, v{vST}, v{vAL}, vcc
        v_cndmask_b32 v{vZ}, v{vZ}, v{vM}, vcc
        v_addc_co_u32 v{vB}, vcc, 0, v{vB}, vcc
        """)
    e(f"""
    s_lshr_b32 s{sT0}, s{sW}, 1
    v_sub_u32 v{vT}, v{vT}, v{vST}
    v_lshl_add_u32 v{vT}, v{vT}, 1, s{sT0}
    v_lshl_add_u32 v{vT2}, v{vB}, 9, v{vT}
    v_lshlrev_b32 v{vT2}, 2, v{vT2}
    buffer_load_dword v{vPG}, v{vT2}, s[{SB}:{SB+3}], 0 offen
    v_lshlrev_b32 v{vT}, 4, v{vT}
    v_cmp_lt_u32 s[92+2:92+3], v{vT}, v{vC}
    v_cmp_gt_u32 vcc, s{sNT}, v{vLane}
    v_mov_b32 v{vM}, {CSCALE:#x}
    s_and_b64 s[94:95], s[94:95], vcc
    v_cmp_lt_i32 vcc, 0, v{vZ}
    s_mov_b32 s{sI}, 0
    s_mov_b32 s{sSEG}, 0
    v_cndmask_b32 v{vZ}, 0, v{vM}, vcc
    """.replace("s[92+2:92+3]", "s[94:95]"))

    def seg_params():
        e(f"""
        v_readlane_b32 s{sBB}, v{vB}, s{sI}
        v_readlane_b32 s{sREM}, v{vC}, s{sI}
        v_readlane_b32 s{sMK}, v{vST}, s{sI}
        v_readlane_b32 s{sSC}, v{vZ}, s{sI}
        s_add_u32 s{sT0}, s{sREM}, 31
        s_lshr_b32 s{sT0}, s{sT0}, 5
        s_add_u32 s{sMK}, s{sMK}, s{sT0}
        s_sub_u32 s{sMK}, s{sMK}, s{sLO}
        s_min_u32 s{sE}, s{sMK}, s{sNT}
        s_sub_u32 s{sMK}, s{sMK}, 1
        s_sub_u32 s{sT0}, s{sT0}, 1
        s_lshl_b32 s{sT0}, s{sT0}, 5
        s_sub_u32 s{sREM}, s{sREM}, s{sT0}
        """)
    def q_load(dst, boff):
        e(f"""
        s_add_u32 s{sT0}, s{sBB}, {boff}
        s_lshl_b32 s{sT0}, s{sT0}, 3
        s_add_u32 s{sT0}, s{sT0}, s{sH}
        s_lshl_b32 s{sT0}, s{sT0}, 2
        s_add_u32 s{sT0}, s{sT0}, s{sW}
        s_lshl_b32 s{sT0}, s{sT0}, 13
        """)
        if boff:
            e(f"s_cmp_lt_u32 s{sE}, s{sNT}\ns_cselect_b32 s{sT0}, s{sT0}, {OOB:#x}")
        for ks in range(8):
            e(f"buffer_load_dwordx4 a[{dst+4*ks}:{dst+4*ks+3}], v{vQA}, s[{SQ}:{SQ+3}], s{sT0} offen offset:{32*ks}")
    e("s_nop 1")
    seg_params()
    q_load(0, 0)
    q_load(32, 1)
    e(f"""
    s_waitcnt vmcnt(16)
    v_lshlrev_b32 v{vPG}, 15, v{vPG}
    v_mov_b32 v{vT}, {OOB:#x}
    v_cndmask_b32 v{vPG}, v{vT}, v{vPG}, s[94:95]
    s_mov_b32 s{sLD}, 0
    s_mov_b32 s{sDS}, s{sWB}
    s_mov_b32 s{sRS}, 0
    s_mov_b32 s{sXW}, 0
    s_mov_b32 s{sFL}, 0
    """)
    def next_page():
        return [f"v_readlane_b32 s{sPG}, v{vPG}, s{sLD}",
                f"s_cmp_lt_u32 s{sLD}, 64",
                f"s_cselect_b32 s{sPG}, s{sPG}, {OOB:#x}",
                f"s_add_u32 s{sLD}, s{sLD}, 1"]
    def dma():
        return [f"s_mov_b32 m0, s{sDS}",
                f"s_add_u32 s{sT1}, s{sDS}, 8192",
                f"buffer_load_dwordx4 v{vDK0}, s[{SK}:{SK+3}], s{sPG} offen{nt} lds",
                f"buffer_load_dwordx4 v{vDK1}, s[{SK}:{SK+3}], s{sPG} offen offset:1024{nt} lds",
                f"s_mov_b32 m0, s{sT1}",
                f"s_add_u32 s{sDS}, s{sDS}, 16384",
                f"buffer_load_dwordx4 v{vDV0}, s[{SV}:{SV+3}], s{sPG} offen{nt} lds",
                f"buffer_load_dwordx4 v{vDV1}, s[{SV}:{SV+3}], s{sPG} offen offset:1024{nt} lds",
                f"s_cmp_ge_u32 s{sDS}, {NS*16384}",
                f"s_cselect_b32 s{sT1}, {NS*16384}, 0",
                f"s_sub_u32 s{sDS}, s{sDS}, s{sT1}"]
    stamp(2)
    for t in range(NS - 2):
        for x in next_page(): e(x)
        e("s_nop 2")
        for x in dma(): e(x)
    for x in next_page(): e(x)

    def sync(tag):
        if o["exactwait"]:
            e(f"""
            s_cmp_eq_u32 s{sXW}, 0
            s_cbranch_scc1 L_w0_{tag}
            s_sub_u32 s{sXW}, s{sXW}, 1
            s_waitcnt vmcnt({WN+EXTRA})
            s_branch L_w1_{tag}
            L_w0_{tag}:
            s_waitcnt vmcnt({WN})
            L_w1_{tag}:
            """)
        else:
            e(f"s_waitcnt vmcnt({WN})")
        e("s_barrier")
    def kread(ks):
        return f"ds_read_b128 v[{vK+4*ks}:{vK+4*ks+3}], v{vKA+ks}"
    def vread(kk, db, u):
        r = vV + 16 * kk + 4 * db + 2 * u
        return f"ds_read_b64_tr_b16 v[{r}:{r+1}], v{vVA+db} offset:{4096*kk+2048*u}"
    def qk(ks):
        c = "0" if ks == 0 else f"v[{vS}:{vS+15}]"
        return f"v_mfma_f32_32x32x16_bf16 v[{vS}:{vS+15}], v[{vK+4*ks}:{vK+4*ks+3}], a[{4*ks}:{4*ks+3}], {c}"
    def pv(kk, db):
        a = vV + 16 * kk + 4 * db
        return f"v_mfma_f32_32x32x16_bf16 v[{vO+16*db}:{vO+16*db+15}], v[{a}:{a+3}], v[{vP+4*kk}:{vP+4*kk+3}], v[{vO+16*db}:{vO+16*db+15}]"
    EX = lambda i: f"v_exp_f32 v{vX+i}, v{vX+i}"
    AD = lambda i: f"v_add_f32 v{vL}, v{vL}, v{vX+i}"
    CV = lambda m: f"v_cvt_pk_bf16_f32 v{vP+m}, v{vX+2*m}, v{vX+2*m+1}"
    FM = lambda i: f"v_fma_f32 v{vX+i}, v{vS+i}, s{sSC}, -v{vM}"
    def maxops():
        r = [f"v_max3_f32 v{vT}, v{vS}, v{vS+1}, v{vS+2}"]
        for i in range(3, 15, 2):
            r.append(f"v_max3_f32 v{vT}, v{vT}, v{vS+i}, v{vS+i+1}")
        r.append(f"v_max_f32 v{vT}, v{vT}, v{vS+15}")
        return r
    def slot_delta():
        return [f"s_add_u32 s{sRS}, s{sRS}, 1",
                f"s_cmp_eq_u32 s{sRS}, {NS}",
                f"s_cselect_b32 s{sRS}, 0, s{sRS}"]
    def kadv():
        r = [f"s_cmp_eq_u32 s{sRS}, {NS-1}",
             f"s_cselect_b32 s{sDEL}, {(-(NS-1)*16384) & 0xffffffff:#x}, s96"]
        return r + [f"v_add_u32 v{vKA+i}, s{sDEL}, v{vKA+i}" for i in range(8)]
    def vadv():
        r = [f"s_cmp_eq_u32 s{sRS}, 0",
             f"s_cselect_b32 s{sDEL}, {(-(NS-1)*16384) & 0xffffffff:#x}, s96"]
        return r + [f"v_add_u32 v{vVA+i}, s{sDEL}, v{vVA+i}" for i in range(4)]
    def mask_block():
        for r in range(16):
            tok = (r & 3) + 8 * (r >> 2)
            e(f"""
            v_add_u32 v{vT2}, {tok}, v{vTok}
            v_cmp_gt_u32 vcc, s{sREM}, v{vT2}
            s_nop 1
            v_cndmask_b32 v{vS+r}, v{vNI}, v{vS+r}, vcc
            """)
    def fullmax():
        e(f"""
        v_mov_b32 v{vT2}, v{vT}
        s_nop 1
        v_permlane32_swap_b32 v{vT}, v{vT2}
        v_max_f32 v{vT}, v{vT}, v{vT2}
        v_mul_f32 v{vT}, s{sSC}, v{vT}
        """)

    e("L_seg:")
    sync("f")
    if o["stamp"]:
        e(f"s_cmp_lg_u32 s{sI}, 0\ns_cbranch_scc1 L_nost")
        stamp(3)
        e("L_nost:")
    for ks in range(8): e(kread(ks))
    for x in dma(): e(x)
    for i in range(64): e(f"v_mov_b32 v{vO+i}, 0")
    e(f"v_mov_b32 v{vL}, 0")
    for ks in range(8):
        e(f"s_waitcnt lgkmcnt({7-ks})")
        e(qk(ks))
    for x in kadv() + vadv() + slot_delta() + next_page(): e(x)
    e(f"s_cmp_lg_u32 s{sI}, s{sMK}\ns_cbranch_scc1 L_f_nomask")
    mask_block()
    e("L_f_nomask:")
    for x in maxops(): e(x)
    fullmax()
    e(f"v_mov_b32 v{vM}, v{vT}")
    for i in range(16): e(FM(i))
    e(f"""
    s_add_u32 s{sI}, s{sI}, 1
    s_cmp_ge_u32 s{sI}, s{sE}
    s_cbranch_scc1 L_last
    .p2align 3
    L_loop:
    """)
    sync("l")
    if o["stamp"] == 2:
        e(f"s_memrealtime s[92:93]\ns_memtime s[94:95]\ns_mov_b32 m0, s{sI}\ns_waitcnt lgkmcnt(0)\nv_writelane_b32 v205, s92, m0\nv_writelane_b32 v206, s94, m0")
    if o["compute"]:
        d = dma()
        for ks in range(8): e(kread(ks))
        for x in d[:4]: e(x)
        e(EX(0)); e(EX(1))
        for x in d[4:]: e(x)
        e(EX(2)); e(EX(3)); e(AD(0)); e(AD(1)); e(CV(0))
        vr = [vread(kk, db, u) for kk in range(2) for db in range(4) for u in range(2)]
        mf, fl = [], []
        for ks in range(8):
            nv = min(2 * ks, 8)
            mf.append(f"s_waitcnt lgkmcnt({7-ks+nv})\n" + qk(ks))
        fl.append([vr[0], vr[1], EX(4), AD(2), EX(5), AD(3), CV(1)])
        fl.append([vr[2], vr[3], EX(6), AD(4), EX(7), AD(5), CV(2)])
        fl.append([vr[4], vr[5], EX(8), AD(6), EX(9), AD(7), CV(3)])
        fl.append([vr[6], vr[7], EX(10), AD(8), EX(11), AD(9), CV(4)])
        fl.append([EX(12), AD(10), EX(13), AD(11), CV(5)])
        fl.append([EX(14), AD(12), EX(15), AD(13), CV(6)])
        fl.append([vr[8], vr[9], vr[10], vr[11], AD(14), AD(15), CV(7)])
        fl.append([vr[12], vr[13], vr[14], vr[15]])
        interleave(e, mf, fl)
        ka, va, mx = kadv(), vadv(), maxops()
        e("s_waitcnt lgkmcnt(14)"); e(pv(0, 0))
        for x in ka[:6]: e(x)
        e("s_waitcnt lgkmcnt(12)"); e(pv(0, 1))
        for x in ka[6:]: e(x)
        e(f"s_cmp_eq_u32 s{sI}, s{sMK}\ns_cbranch_scc1 L_mask\nL_mask_ret:")
        e("s_waitcnt lgkmcnt(10)"); e(pv(0, 2))
        for x in mx[:5]: e(x)
        e("s_waitcnt lgkmcnt(8)"); e(pv(0, 3))
        for x in mx[5:]: e(x)
        e(f"v_fma_f32 v{vT2}, v{vT}, s{sSC}, -v{vM}\nv_cmp_lt_f32 vcc, s{sTHR}, v{vT2}")
        e("s_waitcnt lgkmcnt(6)"); e(pv(1, 0))
        e("s_cbranch_vccnz L_newmax\nL_newmax_ret:")
        for i in range(0, 5): e(FM(i))
        e("s_waitcnt lgkmcnt(4)"); e(pv(1, 1))
        for i in range(5, 10): e(FM(i))
        e("s_waitcnt lgkmcnt(2)"); e(pv(1, 2))
        for i in range(10, 16): e(FM(i))
        e("s_waitcnt lgkmcnt(0)"); e(pv(1, 3))
        for x in va + slot_delta() + next_page(): e(x)
        e(f"s_cmp_lg_u32 s{sFL}, 0\ns_cbranch_scc1 L_rescale\nL_rescale_ret:")
    else:
        for x in dma() + next_page(): e(x)
        e("s_nop 4\nL_mask_ret:\nL_newmax_ret:\nL_rescale_ret:")
    e(f"""
    s_add_u32 s{sI}, s{sI}, 1
    s_cmp_lt_u32 s{sI}, s{sE}
    s_cbranch_scc1 L_loop
    L_last:
    """)
    vr = [vread(kk, db, u) for kk in range(2) for db in range(4) for u in range(2)]
    for x in vr[:8]: e(x)
    for i in range(16): e(EX(i))
    for x in vr[8:]: e(x)
    for i in range(16): e(AD(i))
    for m in range(8): e(CV(m))
    e("s_waitcnt lgkmcnt(0)")
    for kk in range(2):
        for db in range(4): e(pv(kk, db))
    stamp(4)
    e(f"""
    v_mov_b32 v{vT2}, v{vL}
    s_add_u32 s{sT0}, s{sJ}, s{sBB}
    s_mul_i32 s{sT1}, s{sH}, {NSLOT_H}
    v_permlane32_swap_b32 v{vL}, v{vT2}
    s_add_u32 s{sT0}, s{sT0}, s{sT1}
    v_add_f32 v{vML+1}, v{vL}, v{vT2}
    v_mov_b32 v{vML}, v{vM}
    s_lshl_b32 s{sT1}, s{sT0}, 11
    s_lshl_b32 s{sT0}, s{sT0}, 15
    buffer_store_dwordx2 v[{vML}:{vML+1}], v{vWM}, s[{SW}:{SW+3}], s{sT1} offen
    s_add_u32 s{sT1}, s{sT0}, 4096
    s_nop 7
    """)
    for q in range(8):
        for n in range(4):
            e(f"v_cvt_pk_bf16_f32 v{vK+4*q+n}, v{vO+8*q+2*n}, v{vO+8*q+2*n+1}")
        e(f"buffer_store_dwordx4 v[{vK+4*q}:{vK+4*q+3}], v{vWO}, s[{SW}:{SW+3}], s{sT0 if q<4 else sT1} offen offset:{1024*(q&3)}")
    e(f"""
    s_cmp_ge_u32 s{sI}, s{sNT}
    s_cbranch_scc1 L_done
    s_cmp_eq_u32 s{sSEG}, 0
    s_cbranch_scc1 L_qready
    s_waitcnt vmcnt(0)
    L_qready:
    s_mov_b32 s{sSEG}, 1
    """)
    for i in range(32): e(f"v_accvgpr_mov_b32 a{i}, a{32+i}")
    seg_params()
    q_load(32, 1)
    e(f"s_mov_b32 s{sXW}, {NS-2}\ns_branch L_seg")
    e("L_mask:")
    mask_block()
    e("s_branch L_mask_ret\nL_newmax:")
    fullmax()
    e(f"""
    v_max_f32 v{vT}, v{vT}, v{vM}
    v_sub_f32 v{vAL}, v{vM}, v{vT}
    v_exp_f32 v{vAL}, v{vAL}
    v_mov_b32 v{vM}, v{vT}
    s_mov_b32 s{sFL}, 1
    v_mul_f32 v{vL}, v{vL}, v{vAL}
    s_branch L_newmax_ret
    L_rescale:
    s_mov_b32 s{sFL}, 0
    s_nop 7
    """)
    for i in range(64): e(f"v_mul_f32 v{vO+i}, v{vO+i}, v{vAL}")
    e("s_branch L_rescale_ret\nL_done:")
    if o["stamp"]:
        e("s_waitcnt vmcnt(0)")
        stamp(5)
        cstamp(7)
        stamp_store(e, 204, sW, 0)
        if o["stamp"] == 2:
            e(f"""
            s_mov_b64 exec, -1
            s_lshl_b32 s3, s2, 2
            s_add_u32 s3, s3, s{sW}
            s_lshl_b32 s3, s3, 9
            s_add_u32 s3, s3, {STAMP_OFF + (1 << 20)}
            v_lshlrev_b32 v8, 2, v{vLane}
            buffer_store_dword v205, v8, s[{SW}:{SW+3}], s3 offen
            buffer_store_dword v206, v8, s[{SW}:{SW+3}], s3 offen offset:256
            """)
    e("L_end:\ns_endpgm")
    return e.text(), NS * 16384

def combine_kernel(o):
    e = E()
    sH, sB, sG, sD, sT0, sT1, sJ, sJE, sLO = 4, 5, 6, 7, 8, 9, 10, 12, 11
    sA, sZ = 14, 15
    CH = o.get('CH', 6)
    vAcc, vM, vL, vOA, vMA, vT, vW, vAL, vOut = 0, 16, 17, 18, 19, 20, 21, 22, 23
    vD, vML = 24, 24 + 8 * CH
    e(f"""
    .globl combine_kernel
    .p2align 8
    .type combine_kernel,@function
    combine_kernel:
    s_cmp_ge_u32 s2, {0 if o["empty"] else 256}
    s_cbranch_scc1 C_end
    s_load_dwordx16 s[16:31], s[0:1], 0
    """)
    def stamp(i):
        if o["stamp"]:
            e(f"s_memrealtime s[92:93]\ns_waitcnt lgkmcnt(0)\nv_writelane_b32 v103, s92, {i}")
    stamp(0)
    e(f"""
    s_and_b32 s{sH}, s2, 7
    s_bfe_u32 s{sB}, s2, 0x30003
    s_lshr_b32 s{sG}, s2, 6
    v_lshrrev_b32 v{vT}, 6, v0
    v_and_b32 v{vW}, 63, v0
    v_readfirstlane_b32 s{sD}, v{vT}
    s_waitcnt lgkmcnt(0)
    s_load_dwordx8 s[{SCL}:{SCL+7}], s[24:25], 0
    """)
    srd(e, SW, 30, 32 << 20); srd(e, SO, 26, Q_BYTES)
    l16 = o.get("lay", 32) == 16
    if l16:
        ma = f"""s_lshr_b32 s{sJ}, s{sD}, 1
        s_lshl_b32 s{sJ}, s{sJ}, 7
        s_add_u32 s{sT0}, s{sT0}, s{sJ}
        v_and_b32 v{vT}, 15, v{vW}
        v_lshlrev_b32 v{vMA}, 3, v{vT}"""
        oa = f"""s_lshr_b32 s{sT1}, s{sD}, 1
        s_lshl_b32 s{sT1}, s{sT1}, 12
        s_add_u32 s{sT0}, s{sT0}, s{sT1}
        s_and_b32 s{sT1}, s{sD}, 1
        s_lshl_b32 s{sT1}, s{sT1}, 7
        s_add_u32 s{sT0}, s{sT0}, s{sT1}
        v_and_b32 v{vT}, 15, v{vW}
        v_lshlrev_b32 v{vOut}, 8, v{vT}
        v_bfe_u32 v{vT}, v{vW}, 4, 1
        v_lshl_add_u32 v{vOut}, v{vT}, 5, v{vOut}
        v_lshrrev_b32 v{vT}, 5, v{vW}
        v_lshl_add_u32 v{vOut}, v{vT}, 4, v{vOut}"""
    else:
        ma = f"v_lshlrev_b32 v{vMA}, 3, v{vW}"
        oa = f"""s_lshl_b32 s{sT1}, s{sD}, 6
        s_add_u32 s{sT0}, s{sT0}, s{sT1}
        v_and_b32 v{vT}, 31, v{vW}
        v_lshlrev_b32 v{vOut}, 8, v{vT}
        v_lshrrev_b32 v{vT}, 5, v{vW}
        v_lshl_add_u32 v{vOut}, v{vT}, 4, v{vOut}"""
    e(f"""
    s_lshl_b32 s{sT0}, s{sG}, 13
    s_lshl_b32 s{sT1}, s{sD}, 11
    s_add_u32 s{sT0}, s{sT0}, s{sT1}
    v_lshlrev_b32 v{vOA}, 4, v{vW}
    v_add_u32 v{vOA}, s{sT0}, v{vOA}
    s_lshl_b32 s{sT0}, s{sG}, 9
    s_add_u32 s{sT0}, s{sT0}, {ML_OFF}
    {ma}
    v_add_u32 v{vMA}, s{sT0}, v{vMA}
    s_lshl_b32 s{sT0}, s{sB}, 3
    s_add_u32 s{sT0}, s{sT0}, s{sH}
    s_lshl_b32 s{sT0}, s{sT0}, 2
    s_add_u32 s{sT0}, s{sT0}, s{sG}
    s_lshl_b32 s{sT0}, s{sT0}, 13
    {oa}
    v_add_u32 v{vOut}, s{sT0}, v{vOut}
    v_mov_b32 v{vM}, {NEGINF:#x}
    v_mov_b32 v{vL}, 0
    """)
    for i in range(16): e(f"v_mov_b32 v{vAcc+i}, 0")
    e("s_waitcnt lgkmcnt(0)")
    batch_tables(e)
    e(f"s_mov_b32 s{sA}, s{SS}\ns_mov_b32 s{sZ}, s{SS+1}")
    for b in range(1, 8):
        e(f"s_cmp_eq_u32 s{sB}, {b}\ns_cselect_b32 s{sA}, s{SS+b}, s{sA}\ns_cselect_b32 s{sZ}, s{SS+b+1}, s{sZ}")
    P = o.get("pad", 0)
    e(f"""
    s_lshr_b32 s{sT0}, s18, 8
    s_add_u32 s{sT0}, s{sT0}, s{sH}
    s_and_b32 s{sT0}, s{sT0}, 7
    """)
    magic_of_class(e, o, sT0, sT1)
    e(f"""
    s_add_u32 s{sT0}, s{SS+8}, {7*P}
    s_mul_i32 s{sT0}, s{sT0}, s{sT1}
    v_mul_lo_u32 v{vT}, s{sT0}, v{vW}
    v_add_u32 v{vAL}, s{sT0}, v{vT}
    v_lshrrev_b32 v{vT}, 17, v{vT}
    v_lshrrev_b32 v{vAL}, 17, v{vAL}
    """)
    if P:
        for b in range(1, 8):
            for r in (vT, vAL):
                e(f"v_subrev_u32 v{vD}, s{SS+b}, v{r}\nv_med3_i32 v{vD}, v{vD}, 0, {P}\nv_sub_u32 v{r}, v{r}, v{vD}")
    e(f"""
    v_max_u32 v{vT}, s{sA}, v{vT}
    v_min_u32 v{vAL}, s{sZ}, v{vAL}
    v_cmp_lt_u32 vcc, v{vT}, v{vAL}
    s_mul_i32 s{sLO}, s{sH}, {NSLOT_H}
    s_add_u32 s{sLO}, s{sLO}, s{sB}
    s_nop 1
    s_mov_b64 s[{sJE}:{sJE+1}], vcc
    C_chunk:
    """)
    for c in range(CH):
        e(f"""
        s_ff1_i32_b64 s{sJ}, s[{sJE}:{sJE+1}]
        s_cmp_lg_u64 s[{sJE}:{sJE+1}], 0
        s_cselect_b32 s{85+c}, 0, {NEGINF:#x}
        s_bitset0_b64 s[{sJE}:{sJE+1}], s{sJ}
        s_add_u32 s{sJ}, s{sJ}, s{sLO}
        s_cmp_eq_u32 s{85+c}, 0
        s_cselect_b32 s{sJ}, s{sJ}, 0x8000
        s_lshl_b32 s{sT0}, s{sJ}, 11
        s_lshl_b32 s{sT1}, s{sJ}, 15
        buffer_load_dwordx2 v[{vML+2*c}:{vML+2*c+1}], v{vMA}, s[{SW}:{SW+3}], s{sT0} offen
        buffer_load_dwordx4 v[{vD+8*c}:{vD+8*c+3}], v{vOA}, s[{SW}:{SW+3}], s{sT1} offen
        buffer_load_dwordx4 v[{vD+8*c+4}:{vD+8*c+7}], v{vOA}, s[{SW}:{SW+3}], s{sT1} offen offset:1024
        """)
    for c in range(CH):
        m, l = vML + 2 * c, vML + 2 * c + 1
        e(f"""
        s_waitcnt vmcnt({3*(CH-1-c)})
        v_add_f32 v{m}, s{85+c}, v{m}
        v_max_f32 v{vT}, v{vM}, v{m}
        v_sub_f32 v{vAL}, v{vM}, v{vT}
        v_sub_f32 v{vW}, v{m}, v{vT}
        v_exp_f32 v{vAL}, v{vAL}
        v_exp_f32 v{vW}, v{vW}
        v_mov_b32 v{vM}, v{vT}
        v_mul_f32 v{vL}, v{vL}, v{vAL}
        v_fmac_f32 v{vL}, v{l}, v{vW}
        """)
        for n in range(8):
            r = vD + 8 * c + n
            e(f"""
            v_lshlrev_b32 v{vT}, 16, v{r}
            v_and_b32 v{r}, 0xffff0000, v{r}
            v_mul_f32 v{vAcc+2*n}, v{vAcc+2*n}, v{vAL}
            v_mul_f32 v{vAcc+2*n+1}, v{vAcc+2*n+1}, v{vAL}
            v_fmac_f32 v{vAcc+2*n}, v{vT}, v{vW}
            v_fmac_f32 v{vAcc+2*n+1}, v{r}, v{vW}
            """)
    e(f"""
    s_cmp_lg_u64 s[{sJE}:{sJE+1}], 0
    s_cbranch_scc1 C_chunk
    v_rcp_f32 v{vL}, v{vL}
    s_nop 0
    """)
    for i in range(16): e(f"v_mul_f32 v{vAcc+i}, v{vAcc+i}, v{vL}")
    for n in range(8): e(f"v_cvt_pk_bf16_f32 v{vD+n}, v{vAcc+2*n}, v{vAcc+2*n+1}")
    e("s_nop 1")
    for p in range(2):
        r = vD + 4 * p
        sw = "v_permlane16_swap_b32" if l16 else "v_permlane32_swap_b32"
        e(f"{sw} v{r}, v{r+2}\n{sw} v{r+1}, v{r+3}")
    for p in range(2):
        r = vD + 4 * p
        e(f"buffer_store_dwordx4 v[{r}:{r+3}], v{vOut}, s[{SO}:{SO+3}], 0 offen offset:{(64 if l16 else 32)*p}")
    if o["stamp"]:
        e("s_waitcnt vmcnt(0)")
        stamp(5)
        stamp_store(e, 103, sD, 32768)
    e("C_end:\ns_endpgm")
    return e.text()

def desc(name, nv, acc):
    return f""".p2align 6
.amdhsa_kernel {name}
  .amdhsa_next_free_vgpr {nv}
  .amdhsa_next_free_sgpr 102
  .amdhsa_accum_offset {acc}
  .amdhsa_group_segment_fixed_size 0
  .amdhsa_kernarg_size 64
  .amdhsa_user_sgpr_count 2
  .amdhsa_user_sgpr_kernarg_segment_ptr 1
  .amdhsa_system_sgpr_workgroup_id_x 1
.end_amdhsa_kernel
"""

def build(**kw):
    o = dict(DEF); o.update(kw)
    k1, lds = main_kernel(o)
    k2 = combine_kernel(o)
    s = f"; @launch kernel={NAME}_kernel grid=(256,1,1) block=(256,1,1) lds={lds}\n"
    if not o["single"]:
        s += "; @launch kernel=combine_kernel grid=(256,1,1) block=(256,1,1) lds=0\n"
    s += '.amdgcn_target "amdgcn-amd-amdhsa--gfx950"\n.text\n' + k1 + k2
    s += '.section .rodata,"a"\n' + desc(NAME + "_kernel", 208 + 64, 208) + desc("combine_kernel", 104, 104)
    return s

if __name__ == "__main__":
    kw = {}
    for a in sys.argv[2:]:
        k, v = a.split("="); kw[k] = int(v)
    open(sys.argv[1], "w").write(build(**kw))
```

```python
import sys
from gen import *
import gen

DEF2 = dict(NS=4, nt=1, hmap=0, compute=1, stamp=0, pad=0, prio=1, empty=0, single=0, warm=0, cm=7, lay=16, D=0, cnt=0, fuse=1, tk=3, ss=1, nopoll=0, rot=1, xt=0, wm=0, tl=1, inc=1, os=0, lf=0, sm=0, sp=0, pf=0)
GUARD = f2u(1024.0)
FLAG_OFF = 14 << 20
FS = 6
POLL = 0x100000

def wg_range(e, o, sJ, sLO, sNT, t0, t1):
    P = o["pad"]
    e(f"""
    s_add_u32 s{t0}, s{SS+8}, {7*P}
    s_mul_i32 s{t0}, s{t0}, s35
    s_mul_i32 s{sLO}, s{sJ}, s{t0}
    s_add_u32 s{sNT}, s{sLO}, s{t0}
    s_lshr_b32 s{sLO}, s{sLO}, 17
    s_lshr_b32 s{sNT}, s{sNT}, 17
    """)
    if P:
        for b in range(1, 8):
            for r in (sLO, sNT):
                if P == 1:
                    e(f"s_cmp_gt_u32 s{r}, s{SS+b}\ns_subb_u32 s{r}, s{r}, 0")
                    continue
                e(f"""
                s_sub_i32 s{t0}, s{r}, s{SS+b}
                s_max_i32 s{t0}, s{t0}, 0
                s_min_i32 s{t0}, s{t0}, {P}
                s_sub_u32 s{r}, s{r}, s{t0}
                """)
    e(f"s_sub_u32 s{sNT}, s{sNT}, s{sLO}")

def main_kernel2(o):
    NS = o["NS"]; nt = ["", " nt", " sc0", " sc1", " sc0 sc1", " sc0 nt", " sc1 nt", " sc0 sc1 nt"][o["nt"]]
    e = E()
    vO, vS, vNM, vQ, vQn, vK, vV, vP, vE, vKA, vVA = 0, (64, 80), 96, 104, 136, 168, 184, 216, 224, 228, 232
    vL, vLS, vT, vT2, vA, vLane, vU, vU2, vST = 240, 244, 248, 249, 250, 251, 252, 253, 255
    sH, sJ, sW, sLO, sNT = 4, 5, 6, 7, 8
    sI, sE, sMK, sREM, sSC = 9, 10, 11, 12, 13
    sBB, sG, sT0, sT1, sSEG = 14, 15, 32, 33, 34
    VR = NS * 8192
    FU = o["fuse"]
    SD = SK
    sMS, sNF, sTI, sPD, sCA, sKK, sTM, sSL = 86, 88, 89, 90, 91, 85, 96, 97
    vTK = 254
    sc = ["", " sc1", " sc1 nt", " sc0 sc1", " nt"][o["ss"]] if FU else ""
    def stamp(i, clk=False):
        if o["stamp"]:
            e(f"{'s_memtime' if clk else 's_memrealtime'} s[92:93]\ns_waitcnt lgkmcnt(0)\nv_writelane_b32 v{vST}, s92, {i}")
    e(f"""
    .globl {NAME}_kernel
    .p2align 8
    .type {NAME}_kernel,@function
    {NAME}_kernel:
    s_cmp_ge_u32 s2, {0 if o["empty"] else 256}
    s_cbranch_scc1 L_end
    s_load_dwordx16 s[16:31], s[0:1], 0
    """)
    stamp(0); stamp(6, True)
    if o["xt"] == 1:
        e(f"s_getreg_b32 s3, hwreg(HW_REG_XCC_ID, 0, 4)\ns_and_b32 s4, s2, 7\ns_cmp_eq_u32 s3, s4\ns_cbranch_scc1 L_xt\ns_mov_b32 s3, 8000\nL_xl:\ns_sub_u32 s3, s3, 1\ns_cbranch_scc0 L_xl\nL_xt:")
    cn = counts(o); base = min(cn)
    ex = [(c, k) for k in range(max(cn) - base) for c in range(8) if cn[c] - base > k]
    e(f"s_and_b32 s{sH}, s2, 7\ns_lshr_b32 s{sJ}, s2, 3")
    if ex:
        assert len(ex) <= 16
        tb = sum((c | (k << 3)) << (8 * i) for i, (c, k) in enumerate(ex))
        e(f"""
        s_mov_b32 s8, {tb & 0xffffffff:#x}
        s_mov_b32 s9, {(tb >> 32) & 0xffffffff:#x}
        s_mov_b32 s10, {(tb >> 64) & 0xffffffff:#x}
        s_mov_b32 s11, {(tb >> 96) & 0xffffffff:#x}
        s_sub_u32 s3, s2, {8*base}
        s_bitcmp1_b32 s3, 3
        s_cselect_b64 s[8:9], s[10:11], s[8:9]
        s_lshl_b32 s3, s3, 3
        s_lshr_b64 s[8:9], s[8:9], s3
        s_bfe_u32 s9, s8, 0x50003
        s_add_u32 s9, s9, {base}
        s_and_b32 s8, s8, 7
        s_cmp_ge_u32 s2, {8*base}
        s_cselect_b32 s{sH}, s8, s{sH}
        s_cselect_b32 s{sJ}, s9, s{sJ}
        """)
    magic_of_class(e, o, sH, 35)
    e(f"""
    v_lshrrev_b32 v{vT}, 6, v0
    v_and_b32 v{vLane}, 63, v0
    v_readfirstlane_b32 s{sW}, v{vT}
    s_waitcnt lgkmcnt(0)
    s_lshr_b32 s3, s18, 8
    s_sub_u32 s{sH}, s{sH}, s3
    s_and_b32 s{sH}, s{sH}, 7
    s_load_dwordx8 s[{SCL}:{SCL+7}], s[24:25], 0
    s_cmp_ge_u32 s{sW}, 4
    s_cbranch_scc1 L_loader
    """)
    if o["wm"]:
        e(f"s_cmp_ge_u32 s{sW}, 2\ns_cbranch_scc1 L_nowm\ns_cmp_eq_u32 s{sW}, 0\ns_cselect_b64 s[{SV}:{SV+1}], s[18:19], s[20:21]")
        e(f"s_and_b32 s{SV+1}, s{SV+1}, 0xffff\ns_mov_b32 s{SV+2}, {KV_BYTES:#x}\ns_mov_b32 s{SV+3}, 0x20000")
        e(f"v_lshlrev_b32 v12, 21, v{vLane}\ns_lshl_b32 s3, s2, 12\nbuffer_load_dword v13, v12, s[{SV}:{SV+3}], s3 offen\nL_nowm:")
    srd(e, SQ, 16, Q_BYTES); srd(e, SW, 30, 32 << 20)
    if FU:
        srd(e, SD, 28, 256); srd(e, SO, 26, Q_BYTES)
        e(f"""
        s_lshl_b32 s{sCA}, s{sH}, 5
        s_mul_i32 s{sSL}, s{sH}, {NSLOT_H}
        v_mov_b32 v{vTK}, 0
        s_or_b32 s3, s{sJ}, s{sW}
        s_cbranch_scc1 L_noclr
        s_lshl_b32 s3, s{sSL}, {FS+2}
        s_add_u32 s3, s3, {FLAG_OFF}
        v_lshlrev_b32 v1, {FS}, v{vLane}
        v_add_u32 v2, {64 << FS}, v1
        v_add_u32 v3, {(4*NSLOT_H - 64) << FS}, v1
        buffer_store_dword v{vTK}, v1, s[{SW}:{SW+3}], s3 offen sc1
        buffer_store_dword v{vTK}, v2, s[{SW}:{SW+3}], s3 offen sc1
        buffer_store_dword v{vTK}, v3, s[{SW}:{SW+3}], s3 offen sc1
        L_noclr:
        """)
    e(f"""
    v_and_b32 v{vT}, 15, v{vLane}
    v_lshrrev_b32 v{vT2}, 4, v{vLane}
    v_xor_b32 v{vA}, v{vT}, v{vT2}
    v_lshlrev_b32 v{vA}, 4, v{vA}
    v_lshl_add_u32 v{vKA}, v{vT}, 8, v{vA}
    """)
    for k4 in range(1, 4):
        e(f"v_xor_b32 v{vKA+k4}, {k4<<6}, v{vKA}")
    e(f"""
    v_lshrrev_b32 v{vT}, 2, v{vLane}
    v_lshrrev_b32 v{vT2}, 5, v{vLane}
    v_lshlrev_b32 v{vT2}, 2, v{vT2}
    v_xor_b32 v{vT2}, v{vT2}, v{vT}
    v_and_b32 v{vT2}, 7, v{vT2}
    v_lshlrev_b32 v{vA}, 8, v{vT}
    v_lshl_add_u32 v{vA}, v{vT2}, 5, v{vA}
    v_and_b32 v{vT}, 3, v{vLane}
    v_lshl_add_u32 v{vA}, v{vT}, 3, v{vA}
    v_add_u32 v{vVA}, {VR}, v{vA}
    """)
    for db in range(1, 8):
        e(f"v_xor_b32 v{vVA+db}, {db<<5}, v{vVA}")
    e(f"s_mov_b32 s{sG}, {GUARD:#x}\ns_waitcnt lgkmcnt(0)")
    stamp(1)
    batch_tables(e)
    wg_range(e, o, sJ, sLO, sNT, sT0, sT1)
    e(f"""
    s_cmp_eq_u32 s{sNT}, 0
    s_cbranch_scc1 L_idle
    s_mov_b32 s{sBB}, 0
    """)
    for b in range(1, 8):
        e(f"s_cmp_le_u32 s{SS+b}, s{sLO}\ns_cselect_b32 s{sBB}, {b}, s{sBB}")
    def seg_params():
        e(f"""
        s_mov_b32 m0, s{sBB}
        s_nop 0
        s_movrels_b32 s{sREM}, s{SC}
        s_movrels_b32 s{sMK}, s{SS+1}
        s_movrels_b32 s{sSC}, s{SCL}
        s_sub_u32 s{sMK}, s{sMK}, s{sLO}
        s_min_u32 s{sE}, s{sMK}, s{sNT}
        s_sub_u32 s{sMK}, s{sMK}, 1
        s_sub_u32 s{sREM}, s{sREM}, 1
        s_and_b32 s{sREM}, s{sREM}, 31
        s_add_u32 s{sREM}, s{sREM}, 1
        s_cmp_gt_i32 s{sSC}, 0
        s_cselect_b32 s{sSC}, {CSCALE:#x}, 0
        """)
    def q_load(boff):
        e(f"""
        s_add_u32 s{sT0}, s{sBB}, {boff}
        s_lshl_b32 s{sT0}, s{sT0}, 3
        s_add_u32 s{sT0}, s{sT0}, s{sH}
        s_lshl_b32 s{sT0}, s{sT0}, 2
        s_add_u32 s{sT0}, s{sT0}, s{sW}
        s_lshl_b32 s{sT0}, s{sT0}, 13
        v_and_b32 v{vT}, 15, v{vLane}
        v_lshrrev_b32 v{vT2}, 4, v{vLane}
        v_lshlrev_b32 v{vT}, 8, v{vT}
        v_lshl_add_u32 v{vT}, v{vT2}, 4, v{vT}
        v_add_u32 v{vT2}, 4096, v{vT}
        """)
        if boff:
            e(f"s_cmp_lt_u32 s{sE}, s{sNT}\ns_cselect_b32 s{sT0}, s{sT0}, {OOB:#x}")
        for ks in range(8):
            e(f"buffer_load_dwordx4 v[{vQn+4*ks}:{vQn+4*ks+3}], v{vT2 if ks >= 4 else vT}, s[{SQ}:{SQ+3}], s{sT0} offen offset:{64*(ks&3)}")
    def q_scale():
        for i in range(32):
            a, b = vE + 2 * (i & 1), vE + 2 * (i & 1) + 1
            e(f"""
            v_lshlrev_b32 v{a}, 16, v{vQn+i}
            v_and_b32 v{b}, 0xffff0000, v{vQn+i}
            v_mul_f32 v{a}, s{sSC}, v{a}
            v_mul_f32 v{b}, s{sSC}, v{b}
            v_cvt_pk_bf16_f32 v{vQ+i}, v{a}, v{b}
            """)
    seg_params()
    q_load(0)
    if o["tl"]: e("s_barrier")
    if FU:
        P = o["pad"]
        e(f"""
        s_add_u32 s{sT0}, s{sLO}, s{sNT}
        s_mov_b32 s{sMS}, 0
        s_mov_b32 s{sMS+1}, s{SS+1}
        """)
        for b in range(1, 8):
            e(f"s_cmp_lt_u32 s{SS+b}, s{sT0}\ns_cselect_b32 s{sMS}, s{SS+b}, s{sMS}\ns_cselect_b32 s{sMS+1}, s{SS+b+1}, s{sMS+1}")
        e(f"""
        s_add_u32 s{sT0}, s{SS+8}, {7*P}
        s_mul_i32 s{sT0}, s{sT0}, s35
        v_mul_lo_u32 v1, s{sT0}, v{vLane}
        v_add_u32 v2, s{sT0}, v1
        v_lshrrev_b32 v1, 17, v1
        v_lshrrev_b32 v2, 17, v2
        """)
        for b in range(1, 8) if P else ():
            for r in (1, 2):
                e(f"v_subrev_u32 v3, s{SS+b}, v{r}\nv_med3_i32 v3, v3, 0, {P}\nv_sub_u32 v{r}, v{r}, v3")
        e(f"""
        v_cmp_ge_u32 s[94:95], s{sMS+1}, v2
        v_max_u32 v1, s{sMS}, v1
        v_min_u32 v2, s{sMS+1}, v2
        v_cmp_lt_u32 vcc, v1, v2
        s_and_b32 s{sTI}, s{sJ}, 15
        s_add_u32 s{sTI}, s{sTI}, {o["tk"]}
        s_mov_b32 s{sPD}, -1
        s_mov_b64 s[{sMS}:{sMS+1}], vcc
        s_and_b64 s[94:95], s[94:95], vcc
        s_bcnt1_i32_b64 s{sT0}, s[94:95]
        s_bfm_b64 s[98:99], s{sJ}, 0
        s_and_b64 s[94:95], s[94:95], s[98:99]
        s_bcnt1_i32_b64 s{sT1}, s[94:95]
        s_mov_b32 s{sNF}, {"s%d" % sW if o["rot"] else 0}
        s_cmp_ge_u32 s{sNF}, s{sT0}
        s_cselect_b32 s3, s{sT0}, 0
        s_sub_u32 s{sNF}, s{sNF}, s3
        s_cmp_ge_u32 s{sNF}, s{sT0}
        s_cselect_b32 s3, s{sT0}, 0
        s_sub_u32 s{sNF}, s{sNF}, s3
        s_cmp_ge_u32 s{sNF}, s{sT0}
        s_cselect_b32 s3, s{sT0}, 0
        s_sub_u32 s{sNF}, s{sNF}, s3
        s_bitset0_b64 s[{sMS}:{sMS+1}], s{sJ}
        """)
        if o["sp"]:
            e(f"s_mov_b32 s98, s{sNF}\ns_mov_b32 s{sNF}, 0")
            for k in range(4):
                e(f"s_cmp_eq_u32 s98, s{sT1}\ns_cselect_b32 s3, {1<<k}, 0\ns_or_b32 s{sNF}, s{sNF}, s3")
                if k < 3: e(f"s_add_u32 s98, s98, 1\ns_cmp_ge_u32 s98, s{sT0}\ns_cselect_b32 s98, 0, s98")
        else:
            e(f"s_sub_u32 s{sNF}, s{sNF}, s{sT1}")
    def ticket():
        e(f"buffer_load_dword v{vTK}, off, s[{SD}:{SD+3}], s{sCA} sc1\ns_mov_b32 s{sTI}, 0x7fffffff")
    def go(tag):
        e(f"""
        s_mov_b32 s{sTM}, {POLL:#x}
        L_go{tag}:
        v_readfirstlane_b32 s3, v{vTK}
        s_cmp_lg_u32 s3, 0
        s_cbranch_scc1 L_go{tag}_ok
        buffer_load_dword v{vTK}, off, s[{SD}:{SD+3}], s{sCA} sc1
        s_sub_u32 s{sTM}, s{sTM}, 1
        s_waitcnt vmcnt(0)
        s_cbranch_scc0 L_go{tag}
        L_go{tag}_ok:
        """)
    def signal(sA):
        e(f"""
        v_mov_b32 v{vA}, 1
        s_mov_b64 exec, 1
        buffer_store_dword v{vA}, off, s[{SW}:{SW+3}], s{sA} sc1
        s_mov_b64 exec, -1
        """)
    e(f"s_mov_b32 s{sI}, 0\ns_mov_b32 s{sSEG}, 15\ns_waitcnt vmcnt(0)")
    def publish(tag):
        if FU: e(f"""
        s_or_b32 s3, s{sJ}, s{sW}
        s_cbranch_scc1 L_nopub{tag}
        v_mov_b32 v4, 1
        s_mov_b64 exec, 1
        s_waitcnt vmcnt(0)
        buffer_store_dword v4, off, s[{SD}:{SD+3}], s{sCA} sc1
        s_mov_b64 exec, -1
        L_nopub{tag}:
        """)
    publish("a")
    q_scale()
    q_load(1)
    stamp(2)
    e("s_barrier")
    stamp(3)
    e("s_branch L_first")

    def kread(j, slot, base=vKA):
        r = vK + 4 * (j & 3)
        return f"ds_read_b128 v[{r}:{r+3}], v{base+(j&3)} offset:{slot*8192+4096*(j>>2)}"
    def vread(db, u, slot, base=vVA):
        r = vV + 4 * db + 2 * u
        return f"ds_read_b64_tr_b16 v[{r}:{r+1}], v{base+db} offset:{slot*8192+4096*u}"
    R4 = lambda r: f"v[{r}:{r+3}]"
    R2 = lambda r: f"v[{r}:{r+1}]"
    SI = lambda S, qb, i: S + 8 * (i >> 2) + 4 * qb + (i & 3)
    def qk(j, qb, S, zero=False):
        d = S + 8 * (j >> 2) + 4 * qb
        c = R4(d) if j & 3 else ("0" if zero else R4(vNM + 4 * qb))
        return f"v_mfma_f32_16x16x32_bf16 {R4(d)}, {R4(vK+4*(j&3))}, {R4(vQ+16*qb+4*(j&3))}, {c}"
    def pv(db, qb):
        d = vO + 8 * db + 4 * qb
        return f"v_mfma_f32_16x16x32_bf16 {R4(d)}, {R4(vV+4*db)}, {R4(vP+4*qb)}, {R4(d)}"
    def soft(S, qb):
        EX = lambda i: f"v_exp_f32 v{vE+(i&3)}, v{SI(S, qb, i)}"
        CV = lambda m: f"v_cvt_pk_bf16_f32 v{vP+4*qb+m}, v{vE+((2*m)&3)}, v{vE+((2*m+1)&3)}"
        LS = R2(vLS + 2 * qb)
        return [EX(0), EX(1), EX(2), EX(3), CV(0), f"v_pk_add_f32 {LS}, {R2(vE)}, {R2(vE+2)}", CV(1),
                EX(4), EX(5), EX(6), f"v_pk_add_f32 {LS}, {LS}, {R2(vE)}", EX(7), CV(2),
                f"v_pk_add_f32 {LS}, {LS}, {R2(vE+2)}", CV(3)]
    def guard():
        return [f"v_max3_f32 v{vT}, v{vLS}, v{vLS+1}, v{vLS+2}", f"v_max_f32 v{vT}, v{vT}, v{vLS+3}", f"v_cmp_lt_f32 vcc, s{sG}, v{vT}"]
    def lacc():
        return [f"v_pk_add_f32 {R2(vL+2*q)}, {R2(vL+2*q)}, {R2(vLS+2*q)}" for q in range(2)]
    def mask_block(S):
        e(f"s_nop 7\nv_lshrrev_b32 v{vA}, 4, v{vLane}\nv_lshlrev_b32 v{vA}, 2, v{vA}\nv_mov_b32 v{vT}, {NEGINF:#x}")
        for i in range(8):
            e(f"""
            v_add_u32 v{vT2}, {(i & 3) + 16 * (i >> 2)}, v{vA}
            v_cmp_gt_u32 vcc, s{sREM}, v{vT2}
            s_nop 1
            v_cndmask_b32 v{SI(S, 0, i)}, v{vT}, v{SI(S, 0, i)}, vcc
            v_cndmask_b32 v{SI(S, 1, i)}, v{vT}, v{SI(S, 1, i)}, vcc
            """)
    def xlane(op, regs):
        tm = (vT2, vU2)
        for sw in ("v_permlane16_swap_b32", "v_permlane32_swap_b32"):
            for r, t in zip(regs, tm): e(f"v_mov_b32 v{t}, v{r}")
            e("s_nop 1")
            for r, t in zip(regs, tm): e(f"{sw} v{r}, v{t}")
            e("s_nop 1")
            for r, t in zip(regs, tm): e(f"{op} v{r}, v{r}, v{t}")
    MX = (vT, vU)
    def rowmax(S):
        for q in range(2):
            x = lambda i: SI(S, q, i)
            e(f"""
            v_max3_f32 v{MX[q]}, v{x(0)}, v{x(1)}, v{x(2)}
            v_max3_f32 v{MX[q]}, v{MX[q]}, v{x(3)}, v{x(4)}
            v_max3_f32 v{MX[q]}, v{MX[q]}, v{x(5)}, v{x(6)}
            v_max_f32 v{MX[q]}, v{MX[q]}, v{x(7)}
            """)
        xlane("v_max_f32", MX)
    def slow(So, Sn):
        e("s_nop 7")
        rowmax(So)
        AL = (vT2, vU2)
        for q in range(2): e(f"v_max_f32 v{MX[q]}, 0, v{MX[q]}\nv_exp_f32 v{AL[q]}, -v{MX[q]}")
        for q in range(2):
            for i in range(8): e(f"v_sub_f32 v{SI(So, q, i)}, v{SI(So, q, i)}, v{MX[q]}")
            for i in range(4): e(f"v_sub_f32 v{vNM+4*q+i}, v{vNM+4*q+i}, v{MX[q]}")
            if Sn is not None:
                for i in range(8): e(f"v_sub_f32 v{SI(Sn, q, i)}, v{SI(Sn, q, i)}, v{MX[q]}")
            for db in range(8):
                for i in range(4): e(f"v_mul_f32 v{vO+8*db+4*q+i}, v{vO+8*db+4*q+i}, v{AL[q]}")
            for i in range(2): e(f"v_mul_f32 v{vL+2*q+i}, v{vL+2*q+i}, v{AL[q]}")
        for q in range(2):
            for x in soft(So, q): e(x)
        e("s_nop 1")

    class Lds:
        def __init__(self): self.q = []
        def rd(self, tag, ins): e(ins); self.q.append(tag)
        def need(self, tag):
            idx = [i for i, t in enumerate(self.q) if t == tag]
            if idx:
                n = len(self.q) - 1 - idx[-1]
                assert n <= 15
                e(f"s_waitcnt lgkmcnt({n})"); self.q = self.q[idx[-1] + 1:]

    e(".p2align 6")
    mark = len(e.l)
    for p in range(NS):
        Sn, So = vS[p & 1], vS[(p + 1) & 1]
        ks_, vs_ = p, (p - 1) % NS
        e(f"L_ph{p}:\ns_barrier")
        e(f"s_cmp_ge_u32 s{sI}, s{sE}\ns_cbranch_scc1 L_bnd{p}")
        if o["compute"]:
            L = Lds()
            sb, sa = soft(So, 1), soft(Sn, 0)
            fill = [[] for _ in range(32)]
            for j in range(4): fill[2 * j + 1].append(("K", j + 4))
            for n in range(16): fill[3 + n].append(("V", n))
            rest = sb[5:] + guard()
            for n, x in enumerate(rest): fill[n + 1].append(x)
            fill[16] += [lacc()[0], f"s_cmp_eq_u32 s{sI}, s{sMK}"]
            fill[17] += [lacc()[1], f"s_cbranch_scc1 L_mask{p}\nL_mask{p}_ret:"]
            for n, x in zip((18, 19, 20, 21), sa[:4]): fill[n].append(x)
            fill[22].append(sa[5])
            fill[24] += [sa[4], sa[6]]
            for n, x in zip((24, 25, 26, 27, 27, 28, 29, 30), sa[7:]): fill[n].append(x)
            if FU: fill[25] += [f"s_cmp_ge_i32 s{sI}, s{sTI}", f"s_cbranch_scc1 L_tick{p}\nL_tick{p}_ret:"]
            fill[30].append(f"s_add_u32 s{sI}, s{sI}, 1")
            for j in range(4): L.rd(("K", j), kread(j, ks_))
            for x in sb[:5]: e(x)
            for sl in range(32):
                if sl < 16:
                    if not sl & 1: L.need(("K", sl >> 1))
                    e(qk(sl >> 1, sl & 1, Sn))
                else:
                    if sl == 16: e(f"s_cbranch_vccnz L_slow{p}\nL_slow{p}_ret:")
                    if sl < 24: L.need(("V", 2 * (sl - 16) + 1))
                    e(pv((sl - 16) & 7, (sl - 16) >> 3))
                for x in fill[sl]:
                    if isinstance(x, tuple):
                        L.rd(x, kread(x[1], ks_) if x[0] == "K" else vread(x[1] >> 1, x[1] & 1, vs_))
                    else: e(x)
        else:
            e(f"s_add_u32 s{sI}, s{sI}, 1\nL_slow{p}_ret:\nL_mask{p}_ret:")
        if p == NS - 1:
            e("s_branch L_ph0")
    drop = [x for b, xs in ((1, ["ds_read"]), (2, ["v_mfma"]), (4, ["v_exp", "v_pk_add", "v_cvt_pk"])) if not o["cm"] & b for x in xs]
    e.l[mark:] = [x for x in e.l[mark:] if not any(x.strip().startswith(d) for d in drop)]
    for p in range(NS):
        Sn, So = vS[p & 1], vS[(p + 1) & 1]
        e(f"L_slow{p}:"); slow(So, Sn); e(f"s_branch L_slow{p}_ret")
        e(f"L_mask{p}:"); mask_block(Sn); e(f"s_branch L_mask{p}_ret")
        if FU and o["compute"]: e(f"L_tick{p}:"); ticket(); e(f"s_branch L_tick{p}_ret")
        e(f"L_bnd{p}:")
        vr = [vread(db, u, (p - 1) % NS) for db in range(8) for u in range(2)]
        for x in vr[:12]: e(x)
        if So != vS[0]:
            for i in range(16): e(f"v_mov_b32 v{vS[0]+i}, v{So+i}")
        e("s_waitcnt lgkmcnt(8)")
        for x in vr[12:]: e(x)
        e("s_branch L_last")
    e("L_last:")
    if FU and o["pf"]:
        e(f"""
        s_cmp_lt_u32 s{sI}, s{sNT}
        s_cbranch_scc1 L_nopf
        s_cmp_lg_u32 s{sNF}, 0
        s_cbranch_scc1 L_nopf
        s_cmp_eq_u64 s[{sMS}:{sMS+1}], 0
        s_cbranch_scc1 L_nopf
        s_waitcnt vmcnt(0)
        v_readfirstlane_b32 s3, v{vTK}
        s_cmp_eq_u32 s3, 0
        s_cbranch_scc1 L_nopf
        s_add_u32 s3, s{sSL}, s{sBB}
        s_lshl_b32 s3, s3, 2
        s_add_u32 s3, s3, s{sW}
        s_lshl_b32 s3, s3, {FS}
        s_add_u32 s3, s3, {FLAG_OFF}
        v_lshlrev_b32 v{vK}, {FS+2}, v{vLane}
        s_mov_b64 exec, s[{sMS}:{sMS+1}]
        buffer_load_dword v237, v{vK}, s[{SW}:{SW+3}], s3 offen sc1
        s_mov_b64 exec, -1
        s_mov_b32 s{sSEG}, 0
        L_nopf:
        """)
    for x in soft(vS[0], 1) + guard(): e(x)
    e("s_nop 1\ns_cbranch_vccz L_last_ok")
    slow(vS[0], None)
    e("L_last_ok:")
    for x in lacc(): e(x)
    e("s_waitcnt lgkmcnt(0)")
    for qb in range(2):
        for db in range(8): e(pv(db, qb))
    stamp(4)
    e(f"v_add_f32 v{vT}, v{vL}, v{vL+1}\nv_add_f32 v{vU}, v{vL+2}, v{vL+3}")
    xlane("v_add_f32", MX)
    if FU:
        e(f"""
        s_add_u32 s{sPD}, s{sSL}, s{sJ}
        s_add_u32 s{sPD}, s{sPD}, s{sBB}
        s_lshl_b32 s{sPD}, s{sPD}, 2
        s_add_u32 s{sPD}, s{sPD}, s{sW}
        s_lshl_b32 s{sPD}, s{sPD}, {FS}
        s_add_u32 s{sPD}, s{sPD}, {FLAG_OFF}
        s_waitcnt vmcnt(0)
        s_cmp_lt_u32 s{sI}, s{sNT}
        s_cbranch_scc0 L_fin
        s_mov_b32 m0, s{sBB}
        s_nop 0
        s_movrels_b32 s{sT0}, s{SS}
        s_cmp_lt_u32 s{sT0}, s{sLO}
        s_cbranch_scc0 L_out
        s_mul_i32 s{sT0}, s{sW}, 8704
        s_add_u32 s{sT0}, s{sT0}, {2*VR}
        v_and_b32 v{vA}, 16, v{vLane}
        v_cmp_eq_u32 vcc, 0, v{vA}
        v_lshl_add_u32 v{vA}, v{vLane}, 3, s{sT0}
        v_lshl_add_u32 v{vE}, v{vLane}, 4, s{sT0}
        v_cndmask_b32 v{vT2}, v{vU}, v{vT}, vcc
        v_cndmask_b32 v{vT}, v{vNM+4}, v{vNM}, vcc
        v_sub_f32 v{vT}, 0, v{vT}
        ds_write_b64 v{vA}, v[{vT}:{vT+1}] offset:8192
        """)
        for c in range(8):
            q, pp = c >> 2, c & 3
            for n in range(4):
                r = vO + 8 * (2 * pp + (n >> 1)) + 4 * q + 2 * (n & 1)
                e(f"v_cvt_pk_bf16_f32 v{vV+4*c+n}, v{r}, v{r+1}")
            e(f"ds_write_b128 v{vE}, v[{vV+4*c}:{vV+4*c+3}] offset:{1024*c}")
        e(f"""
        s_branch L_next
        L_fin:
        {"s_mov_b32 s%d, s%d" % (sSEG, sNF) if o["sp"] else ""}
        s_cmp_eq_u32 s{sNF}, {15 if o["sp"] else 0}
        s_cbranch_scc1 L_merge
        L_part:
        """)
    mlr, adr = (vE, vU2) if o["sp"] else (vT, vU)
    e(f"""
    v_and_b32 v{vA}, 16, v{vLane}
    v_cmp_eq_u32 vcc, 0, v{vA}
    s_add_u32 s{sT0}, s{sJ}, s{sBB}
    s_mul_i32 s{sT1}, s{sH}, {NSLOT_H}
    s_add_u32 s{sT0}, s{sT0}, s{sT1}
    v_cndmask_b32 v{mlr+1}, v{vU}, v{vT}, vcc
    v_cndmask_b32 v{mlr}, v{vNM+4}, v{vNM}, vcc
    s_lshl_b32 s{sT0}, s{sT0}, 2
    s_add_u32 s{sT0}, s{sT0}, s{sW}
    v_sub_f32 v{mlr}, 0, v{mlr}
    s_lshl_b32 s{sT1}, s{sT0}, 9
    s_add_u32 s{sT1}, s{sT1}, {ML_OFF}
    v_lshlrev_b32 v{vA}, 3, v{vLane}
    s_lshl_b32 s{sT0}, s{sT0}, 13
    buffer_store_dwordx2 v[{mlr}:{mlr+1}], v{vA}, s[{SW}:{SW+3}], s{sT1} offen{sc}
    s_add_u32 s{sT1}, s{sT0}, 4096
    v_lshlrev_b32 v{adr}, 4, v{vLane}
    """)
    for c in range(8):
        q, pp = c >> 2, c & 3
        if o["sp"] and not c & 1: e(f"s_bitcmp1_b32 s{sNF}, {c>>1}\ns_cbranch_scc1 L_ps{c>>1}")
        for n in range(4):
            r = vO + 8 * (2 * pp + (n >> 1)) + 4 * q + 2 * (n & 1)
            e(f"v_cvt_pk_bf16_f32 v{vV+4*c+n}, v{r}, v{r+1}")
        e(f"buffer_store_dwordx4 v[{vV+4*c}:{vV+4*c+3}], v{adr}, s[{SW}:{SW+3}], s{sT0 if c<4 else sT1} offen offset:{1024*(c&3)}{sc}")
        if o["sp"] and c & 1: e(f"L_ps{c>>1}:")
    if o["sp"]: e(f"s_cmp_lg_u32 s{sNF}, 0\ns_cbranch_scc1 L_merge2")
    e(f"""
    s_cmp_ge_u32 s{sI}, s{sNT}
    s_cbranch_scc1 {"L_pdone" if FU else "L_done"}
    L_next:
    s_add_u32 s{sBB}, s{sBB}, 1
    {"" if FU else "s_waitcnt vmcnt(9)"}
    """)
    seg_params()
    q_scale()
    q_load(1)
    e(f"""
    L_first:
    s_mov_b32 s{sT0}, s{sI}
    """)
    if NS & (NS - 1):
        e(f"s_mul_i32 s{sT1}, s{sI}, {(65536 + NS - 1) // NS}\ns_lshr_b32 s{sT1}, s{sT1}, 16\ns_mul_i32 s{sT1}, s{sT1}, {NS}\ns_sub_u32 s{sT0}, s{sI}, s{sT1}")
    else:
        e(f"s_and_b32 s{sT0}, s{sI}, {NS-1}")
    e(f"s_lshl_b32 s{sT1}, s{sT0}, 13")
    for k4 in range(4): e(f"v_add_u32 v{vS[1]+k4}, s{sT1}, v{vKA+k4}")
    for j in range(4): e(kread(j, 0, vS[1]))
    for i in range(64): e(f"v_mov_b32 v{vO+i}, 0")
    for i in range(4): e(f"v_mov_b32 v{vL+i}, 0")
    for j in range(8):
        e(f"s_waitcnt lgkmcnt({min(3, 7-j)})"); e(qk(j, 0, vS[0], True)); e(qk(j, 1, vS[0], True))
        if j < 4: e(kread(j + 4, 0, vS[1]))
    e(f"s_nop 7\ns_cmp_lg_u32 s{sI}, s{sMK}\ns_cbranch_scc1 L_f_nomask")
    mask_block(vS[0])
    e("L_f_nomask:")
    rowmax(vS[0])
    for q in range(2):
        for i in range(8): e(f"v_sub_f32 v{SI(vS[0], q, i)}, v{SI(vS[0], q, i)}, v{MX[q]}")
        for i in range(4): e(f"v_sub_f32 v{vNM+4*q+i}, 0, v{MX[q]}")
    for x in soft(vS[0], 0): e(x)
    e(f"s_bitcmp0_b32 s{sT0}, 0\ns_cbranch_scc1 L_f_even")
    for i in range(8, 16): e(f"v_mov_b32 v{vS[1]+i}, v{vS[0]+i}")
    for i in range(8): e(f"v_mov_b32 v{vS[1]+i}, v{vS[0]+i}")
    e(f"L_f_even:\ns_add_u32 s{sI}, s{sI}, 1")
    for p in range(NS - 1):
        e(f"s_cmp_eq_u32 s{sT0}, {p}\ns_cbranch_scc1 L_ph{p+1}")
    e("s_branch L_ph0")
    if FU:
        BUF, vML, vM, vAL, vA2 = (64, 104, 136, 184), 168, 216, 218, 222
        LL = (vT, vU)
        vFA, vFL, sFO = 236, 237, sTI if o["sp"] else sPD
        e("L_pdone:\ns_waitcnt vmcnt(0)")
        go("b"); signal(sPD)
        e(f"""
        s_branch L_done
        L_merge:
        s_bcnt1_i32_b64 s{sKK}, s[{sMS}:{sMS+1}]
        s_cmp_eq_u32 s{sKK}, 0
        s_cbranch_scc1 L_out
        L_merge2:
        """)
        go("c")
        e(f"""
        s_add_u32 s{sSL}, s{sSL}, s{sBB}
        s_lshl_b32 s{sFO}, s{sSL}, 2
        s_add_u32 s{sFO}, s{sFO}, s{sW}
        s_lshl_b32 s{sFO}, s{sFO}, {FS}
        s_add_u32 s{sFO}, s{sFO}, {FLAG_OFF}
        v_lshlrev_b32 v{vFA}, {FS+2}, v{vLane}
        {"s_cmp_eq_u32 s%d, 0" % sSEG if o["pf"] else ""}
        {"s_cbranch_scc1 L_pfd" if o["pf"] else ""}
        s_mov_b64 exec, s[{sMS}:{sMS+1}]
        buffer_load_dword v{vFL}, v{vFA}, s[{SW}:{SW+3}], s{sFO} offen sc1
        s_mov_b64 exec, -1
        L_pfd:
        v_sub_f32 v{vM}, 0, v{vNM}
        v_sub_f32 v{vM+1}, 0, v{vNM+4}
        """)
        if o["sp"]:
            e(f"s_waitcnt vmcnt(0)\nv_mov_b32 v{vE}, 1\ns_mov_b64 exec, 1\nbuffer_store_dword v{vE}, off, s[{SW}:{SW+3}], s{sPD} sc1\ns_mov_b64 exec, -1")
        e(f"""
        v_and_b32 v{vA}, 15, v{vLane}
        v_lshlrev_b32 v{vA}, 3, v{vA}
        v_add_u32 v{vA}, {ML_OFF}, v{vA}
        v_lshlrev_b32 v{vA2}, 4, v{vLane}
        v_add_u32 v{vA2+1}, 4096, v{vA2}
        s_mov_b64 exec, s[{sMS}:{sMS+1}]
        {"s_branch L_pollc" if o["sp"] else ""}
        L_poll:
        s_waitcnt vmcnt(0)
        L_pollc:
        v_cmp_{"eq" if o["inc"] else "ne"}_u32 vcc, 1, v{vFL}
        s_sub_u32 s{sTM}, s{sTM}, 1
        s_cbranch_scc1 L_all
        s_cbranch_{"vccnz L_ready" if o["inc"] else "vccz L_all"}
        buffer_load_dword v{vFL}, v{vFA}, s[{SW}:{SW+3}], s{sFO} offen sc1
        s_branch L_poll
        L_all:
        s_mov_b32 s{sTM}, 0
        s_mov_b64 vcc, s[{sMS}:{sMS+1}]
        L_ready:
        s_mov_b64 exec, -1
        s_bcnt1_i32_b64 s{sKK}, vcc
        """)
        if o["stamp"] == 5: stamp(1)
        B16, MLR, SOF = (64, 80, 104, 120, 136, 152, 184, 200), (168, 172, 176, 180, 228, 232), (98, 99, 100, 101, 94, 95)
        def oscale(w):
            for db in range(8):
                for q in range(2):
                    for h2 in range(2):
                        r = vO + 8 * db + 4 * q + 2 * h2
                        e(f"v_pk_mul_f32 {R2(r)}, {R2(r)}, {R2(w+2*q)} op_sel_hi:[1,0]")
        def pscale(w, k):
            for db in range(4 * (k & 1), 4 * (k & 1) + 4):
                for h2 in range(2):
                    r = vO + 8 * db + 4 * (k >> 1) + 2 * h2
                    e(f"v_pk_mul_f32 {R2(r)}, {R2(r)}, {R2(w+2*(k>>1))} op_sel_hi:[1,0]")
        def uload(u):
            for k in range(4):
                e(f"buffer_load_dwordx4 {R4(B16[u&7]+4*k)}, v{vA2+(u&1)}, s[{SW}:{SW+3}], s{SOF[u>>1]} offen offset:{1024*k} sc1")
        def repoll():
            e(f"""
            s_cmp_eq_u64 s[{sMS}:{sMS+1}], 0
            s_cselect_b32 s3, {OOB:#x}, s{sFO}
            s_cselect_b64 exec, -1, s[{sMS}:{sMS+1}]
            buffer_load_dword v{vFL}, v{vFA}, s[{SW}:{SW+3}], s3 offen sc1
            s_mov_b64 exec, -1
            """)
        def merge_round(NSL, kmin):
            NU, lf = min(8, 2 * NSL), o["lf"]
            for c in range(NSL):
                e(f"""
                s_ff1_i32_b64 s{sT0}, vcc
                s_bitset0_b64 vcc, s{sT0}
                s_bitset0_b64 s[{sMS}:{sMS+1}], s{sT0}
                s_add_u32 s{sT0}, s{sT0}, s{sSL}
                s_lshl_b32 s{sT0}, s{sT0}, 2
                s_add_u32 s{sT0}, s{sT0}, s{sW}
                s_lshl_b32 s{sT1}, s{sT0}, 9
                s_lshl_b32 s{SOF[c]}, s{sT0}, 13
                """)
                if c >= kmin:
                    e(f"""
                    s_cmp_gt_i32 s{sKK}, {c}
                    s_cselect_b32 s{sT1}, s{sT1}, {OOB:#x}
                    s_cselect_b32 s{SOF[c]}, s{SOF[c]}, {OOB:#x}
                    """)
                e(f"""
                buffer_load_dwordx2 {R2(MLR[c])}, v{vA}, s[{SW}:{SW+3}], s{sT1} offen sc1
                buffer_load_dwordx2 {R2(MLR[c]+2)}, v{vA}, s[{SW}:{SW+3}], s{sT1} offen offset:128 sc1
                """)
            cell = lambda k, c: (lambda i: B16[4 * (k >> 1) + (i >> 1)] + 8 * (i & 1))(7 - c if k & 1 else c)
            if o["sp"]:
                for k in range(4):
                    e(f"s_bitcmp1_b32 s{sNF}, {k}\ns_cbranch_scc0 L_ml{NSL}_{k}")
                    for c in range(NSL):
                        for h2 in range(2):
                            e(f"buffer_load_dwordx4 {R4(cell(k, c)+4*h2)}, v{vA2+(k>>1)}, s[{SW}:{SW+3}], s{SOF[c]} offen offset:{1024*(2*(k&1)+h2)} sc1")
                    e(f"L_ml{NSL}_{k}:")
                e("s_waitcnt vmcnt(0)")
                repoll()
            else:
                if not lf: repoll()
                for u in range(NU): uload(u)
                e(f"s_waitcnt vmcnt({4*NU})")
                if lf: repoll()
            if o["stamp"] == 5: stamp(2)
            for c in range(max(1, kmin), NSL):
                e(f"s_cmp_gt_i32 s{sKK}, {c}\ns_cselect_b32 s3, 0, {NEGINF:#x}\nv_add_f32 v{MLR[c]}, s3, v{MLR[c]}\nv_add_f32 v{MLR[c]+2}, s3, v{MLR[c]+2}")
            for c in range(0, NSL, 2):
                for q in range(2):
                    if c + 1 < NSL: e(f"v_max3_f32 v{vE+q}, v{vE+q if c else vM+q}, v{MLR[c]+2*q}, v{MLR[c+1]+2*q}")
                    else: e(f"v_max_f32 v{vE+q}, v{vE+q if c else vM+q}, v{MLR[c]+2*q}")
            for q in range(2):
                e(f"v_sub_f32 v{vAL+2*q}, v{vM+q}, v{vE+q}\nv_mov_b32 v{vM+q}, v{vE+q}")
                for c in range(NSL): e(f"v_sub_f32 v{MLR[c]+2*q}, v{MLR[c]+2*q}, v{vE+q}")
            for q in range(2):
                e(f"v_exp_f32 v{vAL+2*q}, v{vAL+2*q}")
                for c in range(NSL): e(f"v_exp_f32 v{MLR[c]+2*q}, v{MLR[c]+2*q}")
            e("s_nop 0")
            for q in range(2):
                e(f"v_mul_f32 v{LL[q]}, v{LL[q]}, v{vAL+2*q}")
                for c in range(NSL): e(f"v_fmac_f32 v{LL[q]}, v{MLR[c]+2*q+1}, v{MLR[c]+2*q}")
            if o["sp"]:
                for k in range(4):
                    q = k >> 1
                    e(f"s_bitcmp1_b32 s{sNF}, {k}\ns_cbranch_scc0 L_mf{NSL}_{k}")
                    pscale(vAL, k)
                    for c in range(NSL):
                        if c >= max(1, kmin): e(f"s_cmp_gt_i32 s{sKK}, {c}\ns_cbranch_scc0 L_mf{NSL}_{k}")
                        for h2 in range(2):
                            for n in range(4):
                                r = vO + 8 * (2 * (2 * (k & 1) + h2) + (n >> 1)) + 4 * q + 2 * (n & 1)
                                x, t = cell(k, c) + 4 * h2 + n, vE + 2 * (n & 1)
                                e(f"v_lshlrev_b32 v{t}, 16, v{x}\nv_and_b32 v{t+1}, 0xffff0000, v{x}\nv_pk_fma_f32 {R2(r)}, {R2(t)}, {R2(MLR[c]+2*q)}, {R2(r)} op_sel_hi:[1,0,1]")
                    e(f"L_mf{NSL}_{k}:")
                return
            oscale(vAL)
            for u in range(2 * NSL):
                c, q = u >> 1, u & 1
                if c >= max(1, kmin) and not q: e(f"s_cmp_gt_i32 s{sKK}, {c}\ns_cbranch_scc0 L_rend")
                e(f"s_waitcnt vmcnt({min(28, 4*(2*NSL-1-u)) + (1 if lf and u < NU else 0)})")
                for pp in range(4):
                    for n in range(4):
                        r = vO + 8 * (2 * pp + (n >> 1)) + 4 * q + 2 * (n & 1)
                        x, t = B16[u & 7] + 4 * pp + n, vE + 2 * (n & 1)
                        e(f"v_lshlrev_b32 v{t}, 16, v{x}\nv_and_b32 v{t+1}, 0xffff0000, v{x}\nv_pk_fma_f32 {R2(r)}, {R2(t)}, {R2(MLR[c]+2*q)}, {R2(r)} op_sel_hi:[1,0,1]")
                if u + 8 < 2 * NSL: uload(u + 8)
        if o["sm"]:
            e(f"s_cmp_gt_i32 s{sKK}, {o['sm']}\ns_cbranch_scc1 L_rbig")
            merge_round(o["sm"], 1)
            e("s_branch L_rend\nL_rbig:")
            merge_round(6, o["sm"] + 1)
        else:
            merge_round(6, 0)
        e(f"""
        L_rend:
        s_cmp_eq_u64 s[{sMS}:{sMS+1}], 0
        s_cbranch_scc1 L_out
        s_mov_b64 exec, s[{sMS}:{sMS+1}]
        s_branch L_poll
        L_out:
        v_rcp_f32 v{vAL}, v{vT}
        v_rcp_f32 v{vAL+2}, v{vU}
        s_lshl_b32 s{sT0}, s{sBB}, 3
        s_add_u32 s{sT0}, s{sT0}, s{sH}
        s_lshl_b32 s{sT0}, s{sT0}, 2
        s_add_u32 s{sT0}, s{sT0}, s{sW}
        s_lshl_b32 s{sT0}, s{sT0}, 13
        s_add_u32 s{sT1}, s{sT0}, 4096
        v_and_b32 v{vA}, 15, v{vLane}
        v_lshlrev_b32 v{vA}, 8, v{vA}
        v_bfe_u32 v{vT2}, v{vLane}, 4, 1
        v_lshl_add_u32 v{vA}, v{vT2}, 5, v{vA}
        v_lshrrev_b32 v{vT2}, 5, v{vLane}
        v_lshl_add_u32 v{vA}, v{vT2}, 4, v{vA}
        s_waitcnt vmcnt(0)
        """)
        if o["stamp"] == 5: stamp(3)
        osf = ["", " sc1", " sc1 nt", " sc0 sc1", " nt"][o["os"]]
        if o["sp"]:
            for k in range(4):
                e(f"s_bitcmp1_b32 s{sSEG}, {k}\ns_cbranch_scc0 L_os{k}")
                pscale(vAL, k)
                for c in (2 * k, 2 * k + 1):
                    q, pp = c >> 2, c & 3
                    for n in range(4):
                        r = vO + 8 * (2 * pp + (n >> 1)) + 4 * q + 2 * (n & 1)
                        e(f"v_cvt_pk_bf16_f32 v{vV+4*c+n}, v{r}, v{r+1}")
                for c in (2 * k, 2 * k + 1):
                    d = vV + 4 * c
                    e(f"v_permlane16_swap_b32 v{d}, v{d+2}\nv_permlane16_swap_b32 v{d+1}, v{d+3}")
                e("s_nop 0")
                for c in (2 * k, 2 * k + 1):
                    e(f"buffer_store_dwordx4 {R4(vV+4*c)}, v{vA}, s[{SO}:{SO+3}], s{sT0 if c<4 else sT1} offen offset:{64*(c&3)}{osf}")
                e(f"L_os{k}:")
        else:
            oscale(vAL)
            for c in range(8):
                q, pp = c >> 2, c & 3
                for n in range(4):
                    r = vO + 8 * (2 * pp + (n >> 1)) + 4 * q + 2 * (n & 1)
                    e(f"v_cvt_pk_bf16_f32 v{vV+4*c+n}, v{r}, v{r+1}")
                if c:
                    d = vV + 4 * (c - 1)
                    e(f"v_permlane16_swap_b32 v{d}, v{d+2}\nv_permlane16_swap_b32 v{d+1}, v{d+3}")
                if c > 1:
                    e(f"buffer_store_dwordx4 {R4(vV+4*(c-2))}, v{vA}, s[{SO}:{SO+3}], s{sT0 if c-2<4 else sT1} offen offset:{64*((c-2)&3)}{osf}")
            e(f"s_nop 1\nv_permlane16_swap_b32 v{vV+28}, v{vV+30}\nv_permlane16_swap_b32 v{vV+29}, v{vV+31}")
            for c in (6, 7):
                e(f"buffer_store_dwordx4 {R4(vV+4*c)}, v{vA}, s[{SO}:{SO+3}], s{sT1} offen offset:{64*(c&3)}{osf}")
        e(f"s_cmp_lt_u32 s{sI}, s{sNT}\ns_cbranch_scc1 L_next")
    e("L_done:")
    if o["stamp"]:
        e("s_waitcnt vmcnt(0)")
        stamp(5); stamp(7, True)
        if o["xt"] == 2: e(f"s_getreg_b32 s3, hwreg(HW_REG_XCC_ID, 0, 16)\nv_writelane_b32 v{vST}, s3, 1")
        if o["stamp"] == 4:
            srd(e, SD, 28, 256)
            e(f"""
            s_nop 4
            v_readlane_b32 s94, v{vST}, 0
            v_readlane_b32 s95, v{vST}, 5
            v_readlane_b32 s96, v{vST}, 4
            v_readlane_b32 s97, v{vST}, 3
            v_readlane_b32 s98, v{vST}, 6
            v_readlane_b32 s99, v{vST}, 7
            s_cmp_lg_u32 s{sW}, 0
            s_cbranch_scc1 L_end
            s_sub_u32 s95, s95, s94
            s_sub_u32 s96, s96, s94
            s_sub_u32 s97, s97, s94
            s_sub_u32 s98, s99, s98
            v_mov_b32 v1, s95
            v_mov_b32 v2, s96
            v_mov_b32 v3, s97
            v_mov_b32 v4, s98
            s_mov_b64 exec, 1
            buffer_atomic_umax v1, off, s[{SD}:{SD+3}], 0 offset:4 sc1
            buffer_atomic_add v1, off, s[{SD}:{SD+3}], 0 offset:8 sc1
            buffer_atomic_umax v2, off, s[{SD}:{SD+3}], 0 offset:12 sc1
            buffer_atomic_add v2, off, s[{SD}:{SD+3}], 0 offset:16 sc1
            buffer_atomic_add v3, off, s[{SD}:{SD+3}], 0 offset:20 sc1
            buffer_atomic_add v4, off, s[{SD}:{SD+3}], 0 offset:24 sc1
            s_endpgm
            """)
        stamp_store(e, vST, sW, 0)
        if o["stamp"] == 2:
            e(f"""
            s_mov_b64 exec, -1
            s_lshl_b32 s3, s2, 2
            s_add_u32 s3, s3, s{sW}
            s_lshl_b32 s3, s3, 9
            s_add_u32 s3, s3, {STAMP_OFF + (1 << 20)}
            v_lshlrev_b32 v8, 2, v{vLane}
            buffer_store_dword v254, v8, s[{SW}:{SW+3}], s3 offen
            """)
    e("L_end:\ns_endpgm\nL_idle:")
    publish("b")
    e("s_endpgm")

    vDK0, vDK1, vDV0, vDV1, vPG, vB, vC, vSt, vM = 1, 2, 3, 4, 5, 6, 7, 8, 9
    sLD, sKD, sVD, sPK, sPV, sHF = 9, 10, 11, 12, 13, 15
    e("L_loader:")
    def lst(i):
        return f"s_memrealtime s[92:93]\ns_waitcnt lgkmcnt(0)\nv_writelane_b32 v20, s92, {i}\n" if o["stamp"] == 3 else ""
    if o["prio"]: e("s_setprio 1")
    srd(e, SB, 22, 8 * 512 * 4)
    if o["tl"]:
        e(f"""
        s_and_b32 s3, s{sW}, 3
        s_lshl_b32 s3, s3, 12
        s_add_u32 m0, s3, {2*VR}
        v_lshlrev_b32 v1, 4, v{vLane}
        """)
        for k in range(4): e(f"buffer_load_dwordx4 v1, s[{SB}:{SB+3}], s3 offen offset:{1024*k} lds")
    srd(e, SK, 18, KV_BYTES); srd(e, SV, 20, KV_BYTES)
    DS = [int(c) for c in str(o["D"])] if o["D"] else [NS - 1] * 8
    tab = sum(d << (4 * i) for i, d in enumerate(DS))
    sD = 14
    e(f"""
    s_lshr_b32 s{sT0}, s18, 8
    s_add_u32 s{sT0}, s{sT0}, s{sH}
    s_and_b32 s{sT0}, s{sT0}, 7
    s_lshl_b32 s{sT0}, s{sT0}, 2
    s_lshr_b32 s{sD}, {tab:#x}, s{sT0}
    s_and_b32 s{sD}, s{sD}, 15
    """)
    e(f"""
    s_and_b32 s{sT0}, s{sW}, 1
    s_lshl_b32 s{sT0}, s{sT0}, 3
    s_lshl_b32 s{sT1}, s{sH}, 8
    v_lshrrev_b32 v{vT}, 4, v{vLane}
    v_add_u32 v{vT2}, s{sT0}, v{vT}
    v_and_b32 v{vA}, 15, v{vLane}
    v_xor_b32 v{vM}, v{vA}, v{vT2}
    v_lshlrev_b32 v{vM}, 4, v{vM}
    v_lshl_add_u32 v{vM}, v{vT2}, 11, v{vM}
    v_add_u32 v{vDK0}, s{sT1}, v{vM}
    v_xor_b32 v{vDK1}, 64, v{vDK0}
    v_add_u32 v{vDK1}, {8192-1024}, v{vDK1}
    v_lshlrev_b32 v{vT}, 1, v{vT}
    v_xor_b32 v{vT}, s{sT0}, v{vT}
    v_xor_b32 v{vM}, v{vA}, v{vT}
    v_lshlrev_b32 v{vM}, 4, v{vM}
    v_lshl_add_u32 v{vM}, v{vT2}, 11, v{vM}
    v_add_u32 v{vDV0}, s{sT1}, v{vM}
    v_xor_b32 v{vDV1}, 128, v{vDV0}
    v_add_u32 v{vDV1}, {8192-1024}, v{vDV1}
    s_and_b32 s{sW}, s{sW}, 3
    s_lshl_b32 s{sKD}, s{sW}, 11
    s_add_u32 s{sVD}, s{sKD}, {VR + (NS-1)*8192}
    s_waitcnt lgkmcnt(0)
    {lst(58)}
    """)
    batch_tables(e)
    wg_range(e, o, sJ, sLO, sNT, sT0, sT1)
    e(f"""
    s_cmp_eq_u32 s{sNT}, 0
    s_cbranch_scc1 L_lidle
    s_lshr_b32 s{sHF}, s{sW}, 1
    s_mov_b32 s{sLD}, 0
    s_mov_b32 s{sPK}, {OOB:#x}
    """)
    def plist(vD, off):
        e(f"""
        v_add_u32 v{vM}, {off}, v{vLane}
        v_add_u32 v{vT}, s{sLO}, v{vM}
        v_mov_b32 v{vB}, 0
        v_mov_b32 v{vC}, s{SC}
        v_mov_b32 v{vSt}, 0
        """)
        for b in range(1, 8):
            e(f"v_cmpx_le_u32 vcc, s{SS+b}, v{vT}\nv_mov_b32 v{vC}, s{SC+b}\nv_mov_b32 v{vSt}, s{SS+b}\nv_mov_b32 v{vB}, {b*2048}")
        e(f"""
        s_mov_b64 exec, -1
        v_sub_u32 v{vT}, v{vT}, v{vSt}
        v_lshl_add_u32 v{vT}, v{vT}, 1, s{sHF}
        v_lshl_add_u32 v{vT2}, v{vT}, 2, v{vB}
        """)
        if o["tl"]:
            e(f"v_min_u32 v{vT2}, 16380, v{vT2}")
            if off == 0: e(lst(59) + "s_waitcnt vmcnt(0)\n" + lst(60) + "s_barrier\n" + lst(61))
            e(f"ds_read_b32 v{vD}, v{vT2} offset:{2*VR}" if 2 * VR < 65536 else f"v_add_u32 v{vT2}, {2*VR}, v{vT2}\nds_read_b32 v{vD}, v{vT2}")
        else:
            e(f"buffer_load_dword v{vD}, v{vT2}, s[{SB}:{SB+3}], 0 offen")
        e(f"""
        v_lshlrev_b32 v{vT}, 4, v{vT}
        v_cmp_lt_u32 s[94:95], v{vT}, v{vC}
        v_cmp_gt_u32 vcc, s{sNT}, v{vM}
        v_mov_b32 v{vT}, {OOB:#x}
        s_and_b64 s[94:95], s[94:95], vcc
        s_waitcnt {"lgkmcnt(0)" if o["tl"] else "vmcnt(0)"}
        v_lshlrev_b32 v{vD}, 15, v{vD}
        v_cndmask_b32 v{vD}, v{vT}, v{vD}, s[94:95]
        """)
    vPG2 = 10
    plist(vPG, 0)
    if not o["tl"]: plist(vPG2, 64)
    def fetch(first=False):
        e(f"""
        s_mov_b32 s{sPV}, s{sPK}
        v_readlane_b32 s{sPK}, v{vPG}, s{sLD}
        v_readlane_b32 s3, v{vPG2}, s{sLD}
        s_cmp_lt_u32 s{sLD}, 64
        s_cselect_b32 s{sPK}, s{sPK}, s3
        s_add_u32 s{sLD}, s{sLD}, 1
        """)
    def issue(first=False):
        e(f"""
        s_mov_b32 m0, s{sKD}
        s_add_u32 s{sKD}, s{sKD}, 8192
        buffer_load_dwordx4 v{vDK0}, s[{SK}:{SK+3}], s{sPK} offen{nt} lds
        buffer_load_dwordx4 v{vDK1}, s[{SK}:{SK+3}], s{sPK} offen offset:1024{nt} lds
        s_mov_b32 m0, s{sVD}
        s_add_u32 s{sVD}, s{sVD}, 8192
        """)
        if not first:
            e(f"""
            buffer_load_dwordx4 v{vDV0}, s[{SV}:{SV+3}], s{sPV} offen{nt} lds
            buffer_load_dwordx4 v{vDV1}, s[{SV}:{SV+3}], s{sPV} offen offset:1024{nt} lds
            """)
        e(f"""
        s_cmp_ge_u32 s{sKD}, {VR}
        s_cselect_b32 s{sT0}, {VR}, 0
        s_sub_u32 s{sKD}, s{sKD}, s{sT0}
        s_cmp_ge_u32 s{sVD}, {2*VR}
        s_cselect_b32 s{sT0}, {VR}, 0
        s_sub_u32 s{sVD}, s{sVD}, s{sT0}
        """)
    for t in range(max(DS)):
        fetch(); e("s_nop 1"); issue(t == 0)
        if t + 1 in DS and t + 1 != max(DS): e(f"s_cmp_eq_u32 s{sD}, {t+1}\ns_cbranch_scc1 L_pre{t+1}")
    for D in sorted(set(DS), reverse=True):
        e(f"L_pre{D}:")
        e(lst(62))
        if o["tl"]: plist(vPG2, 64)
        e(f"s_add_u32 s{sNT}, s{sNT}, {D+1}")
        fetch()
        e(f"L_ld{D}:\ns_waitcnt vmcnt({4*(D-1)})\ns_barrier")
        issue()
        if o["stamp"] == 3:
            e(f"s_memrealtime s[92:93]\ns_memtime s[94:95]\ns_sub_u32 s{sT0}, s{sLD}, {D+1}\ns_mov_b32 m0, s{sT0}\ns_waitcnt lgkmcnt(0)\nv_writelane_b32 v20, s92, m0\nv_writelane_b32 v21, s94, m0")
        fetch()
        e(f"s_cmp_le_u32 s{sLD}, s{sNT}\ns_cbranch_scc1 L_ld{D}\ns_branch L_ldone")
    e("L_ldone:")
    if FU:
        srd(e, SW, 30, 32 << 20); srd(e, SQ, 28, 256)
        e(f"s_mov_b32 s{sT0}, 0\ns_mov_b32 s{sKD}, 0\ns_mov_b32 s{sVD}, s{SS+1}")
        for b in range(1, 8):
            e(f"s_cmp_le_u32 s{SS+b}, s{sLO}\ns_cselect_b32 s{sT0}, {b}, s{sT0}\ns_cselect_b32 s{sKD}, s{SS+b}, s{sKD}\ns_cselect_b32 s{sVD}, s{SS+b+1}, s{sVD}")
        e(f"""
        s_cmp_lt_u32 s{sKD}, s{sLO}
        s_cbranch_scc0 L_lend
        s_add_u32 s{sLO}, s{sLO}, s{sNT}
        s_sub_u32 s{sLO}, s{sLO}, s{sD}
        s_sub_u32 s{sLO}, s{sLO}, 1
        s_cmp_lt_u32 s{sVD}, s{sLO}
        s_cbranch_scc0 L_lend
        s_mul_i32 s3, s{sW}, 8704
        s_add_u32 s3, s3, {2*VR}
        v_lshl_add_u32 v1, v{vLane}, 4, s3
        v_lshl_add_u32 v2, v{vLane}, 3, s3
        """)
        for c in range(8): e(f"ds_read_b128 v[{32+4*c}:{35+4*c}], v1 offset:{1024*c}")
        e(f"""
        ds_read_b64 v[30:31], v2 offset:8192
        s_lshl_b32 s{sPK}, s{sH}, 5
        buffer_load_dword v3, off, s[{SQ}:{SQ+3}], s{sPK} sc1
        s_mul_i32 s3, s{sH}, {NSLOT_H}
        s_add_u32 s{sT0}, s{sT0}, s3
        s_add_u32 s{sT0}, s{sT0}, s{sJ}
        s_lshl_b32 s{sT0}, s{sT0}, 2
        s_add_u32 s{sT0}, s{sT0}, s{sW}
        s_lshl_b32 s{sPV}, s{sT0}, {FS}
        s_add_u32 s{sPV}, s{sPV}, {FLAG_OFF}
        s_lshl_b32 s{sT1}, s{sT0}, 9
        s_add_u32 s{sT1}, s{sT1}, {ML_OFF}
        s_lshl_b32 s{sT0}, s{sT0}, 13
        s_add_u32 s{sKD}, s{sT0}, 4096
        v_lshlrev_b32 v1, 4, v{vLane}
        v_lshlrev_b32 v2, 3, v{vLane}
        """)
        for c in range(8):
            e(f"s_waitcnt lgkmcnt({8-c})\nbuffer_store_dwordx4 v[{32+4*c}:{35+4*c}], v1, s[{SW}:{SW+3}], s{sT0 if c<4 else sKD} offen offset:{1024*(c&3)}{sc}")
        e(f"""
        s_waitcnt lgkmcnt(0)
        buffer_store_dwordx2 v[30:31], v2, s[{SW}:{SW+3}], s{sT1} offen{sc}
        s_mov_b32 s{sVD}, {POLL:#x}
        v_mov_b32 v4, 1
        L_lgo:
        s_waitcnt vmcnt(0)
        v_readfirstlane_b32 s3, v3
        s_cmp_lg_u32 s3, 0
        s_cbranch_scc1 L_lgo_ok
        buffer_load_dword v3, off, s[{SQ}:{SQ+3}], s{sPK} sc1
        s_sub_u32 s{sVD}, s{sVD}, 1
        s_cbranch_scc0 L_lgo
        L_lgo_ok:
        s_mov_b64 exec, 1
        buffer_store_dword v4, off, s[{SW}:{SW+3}], s{sPV} sc1
        s_mov_b64 exec, -1
        L_lend:
        """)
    if o["stamp"] == 3:
        srd(e, SW, 30, 32 << 20)
        e(f"""
        s_lshl_b32 s3, s2, 2
        s_add_u32 s3, s3, s{sW}
        s_lshl_b32 s3, s3, 9
        s_add_u32 s3, s3, {STAMP_OFF + (1 << 20)}
        v_lshlrev_b32 v8, 2, v{vLane}
        buffer_store_dword v20, v8, s[{SW}:{SW+3}], s3 offen
        buffer_store_dword v21, v8, s[{SW}:{SW+3}], s3 offen offset:256
        """)
    e("L_lidle:\ns_waitcnt vmcnt(0)\ns_endpgm")
    return e.text(), NS * 16384 + (4 * 8704 if FU else 0)

def build2(**kw):
    o = dict(DEF2); o.update(kw)
    k1, lds = main_kernel2(o)
    hdr = '.amdgcn_target "amdgcn-amd-amdhsa--gfx950"\n.text\n'
    if o["fuse"] or o["single"]:
        return f"; @launch {'kernel=' + NAME + '_kernel ' if o['single'] == 2 else ''}grid=(256,1,1) block=(512,1,1) lds={lds}\n" + hdr + k1 + '.section .rodata,"a"\n' + desc(NAME + "_kernel", 256, 256)
    s = f"; @launch kernel={NAME}_kernel grid=(256,1,1) block=(512,1,1) lds={lds}\n"
    s += "; @launch kernel=combine_kernel grid=(256,1,1) block=(256,1,1) lds=0\n"
    return s + hdr + k1 + combine_kernel(o) + '.section .rodata,"a"\n' + desc(NAME + "_kernel", 256, 256) + desc("combine_kernel", 104, 104)

if __name__ == "__main__":
    kw = {}
    for a in sys.argv[2:]:
        k, v = a.split("="); kw[k] = int(v)
    open(sys.argv[1], "w").write(build2(**kw))
```
